```python
import torch

def _softmax(x, axis=-1):
    return torch.softmax(x, dim=axis)
def _gelu(x):
    return torch.nn.functional.gelu(x, approximate="tanh")
def _silu(x):
    return torch.nn.functional.silu(x)
def _sigmoid(x):
    return torch.sigmoid(x)
def _layernorm(x, axis=-1, eps=1e-5):
    m = x.mean(dim=axis, keepdim=True)
    v = x.var(dim=axis, keepdim=True, unbiased=False)
    return (x - m) / torch.sqrt(v + eps)
def _scatter_add(tgt, idx, src, axis=0):
    return tgt.clone().index_add_(axis, idx, src)
def _segment_sum(src, seg, n):
    out = torch.zeros((n,) + src.shape[1:], dtype=src.dtype)
    return out.index_add_(0, seg, src)
def _pad(x, pw):
    flat = tuple(v for pair in reversed(pw) for v in pair)
    return torch.nn.functional.pad(x, flat)

kernel_name = 'gather_scatter__cheap_equivariant_egnn__graph'

def setup_inputs():

    _w = (lambda a: (lambda t: t.to(torch.bfloat16) if t.is_floating_point() else t)(torch.as_tensor(a)))
    N, deg, D, De = 25000, 16, 128, max(16, 1)
    E = N * deg
    return {
        "h": _w((lambda *s: torch.randn(*s, dtype=torch.bfloat16) * 0.2)(N, D)),
        "pos": _w((lambda *s: torch.randn(*s, dtype=torch.bfloat16) * 0.4)(N, 3)),
        "e_attr": _w((lambda *s: torch.randn(*s, dtype=torch.bfloat16) * 0.4)(E, De)),
        "src": _w((lambda lo, hi, *s: torch.randint(lo, hi, s))(0, N, E).to(torch.int64)),
        "dst": _w((lambda lo, hi, *s: torch.randint(lo, hi, s))(0, N, E).to(torch.int64)),
        "w_e": _w(0.1 * (lambda *s: torch.randn(*s, dtype=torch.bfloat16) * 0.4)(2 * D + 1 + De, D)),
        "w_x": _w(0.1 * (lambda *s: torch.randn(*s, dtype=torch.bfloat16) * 0.2)(D, 1)),
        "w_h": _w(0.1 * (lambda *s: torch.randn(*s, dtype=torch.bfloat16) * 0.2)(2 * D, D)),
    }

def reference(h, pos, e_attr, src, dst, w_e, w_x, w_h):
    N, D = h.shape[0], h.shape[1]
    diff = pos[dst] - pos[src]
    dist2 = torch.sum(diff * diff, axis=-1, keepdims=True)
    e_in = torch.concatenate([h[dst], h[src], dist2, e_attr], axis=-1)
    m_ij = _silu(e_in @ w_e)
    coord_scale = m_ij @ w_x
    pos_new = pos + _segment_sum(diff * coord_scale, dst, N)
    m_i = _segment_sum(m_ij, dst, N)
    h_new = h + _silu(torch.concatenate([h, m_i], axis=-1) @ w_h)
    return h_new, pos_new
```

```python
import sys
N=25000; E=400000
NAME="gather_scatter__cheap_equivariant_egnn__graph"
WS_A=0; WS_B=WS_A+N*512; WS_C=WS_B+N*512; WS_M=WS_C+N*512; WS_P=WS_M+N*512
KD = """
.section .rodata,"a"
.p2align 6
.amdhsa_kernel {name}
  .amdhsa_next_free_vgpr {vgpr}
  .amdhsa_next_free_sgpr {sgpr}
  .amdhsa_accum_offset {acc}
  .amdhsa_group_segment_fixed_size 0
  .amdhsa_kernarg_size 88
  .amdhsa_user_sgpr_count 2
  .amdhsa_user_sgpr_kernarg_segment_ptr 1
  .amdhsa_system_sgpr_workgroup_id_x 1
.end_amdhsa_kernel
"""
def kernel(name, body, vgpr, sgpr=102):
    acc=(vgpr+3)//4*4
    return f""".text
.globl {name}
.p2align 8
.type {name},@function
{name}:
{body}
s_endpgm
""" + KD.format(name=name, vgpr=vgpr, sgpr=sgpr, acc=acc)

def srd(d, ptr, nbytes):
    return f"s_mov_b32 s{d}, s{ptr}\ns_mov_b32 s{d+1}, s{ptr+1}\ns_mov_b32 s{d+2}, {nbytes}\ns_mov_b32 s{d+3}, 0x20000\n"

def rnd_bf16(v, t):
    return f"v_cvt_pk_bf16_f32 v{t}, v{v}, v{v}\nv_lshlrev_b32 v{v}, 16, v{t}\n"

def load_wpairs(base_reg, nk, srdW, soff, tmp):
    b=""
    for p in range(nk//2):
        b+=f"buffer_load_dword v{tmp}, v1, s[{srdW}:{srdW+3}], s{soff} offen offset:0\n"
        b+=f"buffer_load_dword v{tmp+1}, v1, s[{srdW}:{srdW+3}], s{soff} offen offset:256\n"
        b+=f"s_add_u32 s{soff}, s{soff}, 512\n"
        b+="s_waitcnt vmcnt(0)\n"
        b+=f"v_perm_b32 v{base_reg+2*p}, v{tmp+1}, v{tmp}, s40\n"
        b+=f"v_perm_b32 v{base_reg+2*p+1}, v{tmp+1}, v{tmp}, s41\n"
    return b

GA=768
def kA():
    b=f"""
s_cmp_ge_u32 s2, {GA}
s_cbranch_scc1 A_END
s_load_dwordx2 s[4:5], s[0:1], 0
s_load_dwordx2 s[6:7], s[0:1], 40
s_load_dwordx2 s[8:9], s[0:1], 56
s_load_dwordx2 s[10:11], s[0:1], 80
v_lshrrev_b32 v2, 6, v0
v_and_b32 v0, 63, v0
v_lshlrev_b32 v1, 2, v0
v_readfirstlane_b32 s3, v2
s_lshr_b32 s42, s2, 8
s_and_b32 s43, s2, 255
s_lshl_b32 s43, s43, 2
s_add_u32 s43, s43, s3
s_mov_b32 s40, 0x05040100
s_mov_b32 s41, 0x07060302
s_waitcnt lgkmcnt(0)
"""
    b+=srd(12,6,273*256)
    b+=srd(16,10,0x10000000)
    b+=f"""
s_lshl_b32 s44, s42, 15
s_cmp_eq_u32 s42, 2
s_cbranch_scc0 A_W
s_mov_b32 s12, s8
s_mov_b32 s13, s9
s_mov_b32 s14, 65536
s_mov_b32 s44, 0
A_W:
"""
    b+=load_wpairs(16,128,12,44,4)
    b+=f"""
s_mul_i32 s45, s42, {N*512}
v_lshlrev_b32 v3, 3, v0
v_mov_b32 v8, 0
v_mov_b32 v9, 0
A_LOOP:
s_cmp_ge_u32 s43, {N}
s_cbranch_scc1 A_END
s_lshl_b32 s46, s43, 8
s_add_u32 s20, s4, s46
s_addc_u32 s21, s5, 0
s_load_dwordx16 s[48:63], s[20:21], 0
s_load_dwordx16 s[64:79], s[20:21], 64
v_mov_b32 v4, 0
v_mov_b32 v5, 0
s_waitcnt lgkmcnt(0)
"""
    for p in range(32):
        b+=f"v_dot2_f32_bf16 v4, s{48+p}, v{16+2*p}, v4\nv_dot2_f32_bf16 v5, s{48+p}, v{17+2*p}, v5\n"
    b+="""
s_nop 4
s_load_dwordx16 s[48:63], s[20:21], 128
s_load_dwordx16 s[64:79], s[20:21], 192
s_waitcnt lgkmcnt(0)
"""
    for p in range(32):
        b+=f"v_dot2_f32_bf16 v4, s{48+p}, v{80+2*p}, v4\nv_dot2_f32_bf16 v5, s{48+p}, v{81+2*p}, v5\n"
    b+=f"""
s_lshl_b32 s46, s43, 9
s_add_u32 s47, s46, s45
s_nop 4
buffer_store_dwordx2 v[4:5], v3, s[16:19], s47 offen
s_cmp_eq_u32 s42, 0
s_cbranch_scc0 A_NZ
s_add_u32 s47, s46, {WS_M}
buffer_store_dwordx2 v[8:9], v3, s[16:19], s47 offen
s_lshl_b32 s47, s43, 4
s_add_u32 s47, s47, {WS_P}
s_mov_b64 exec, 15
buffer_store_dword v8, v1, s[16:19], s47 offen
s_mov_b64 exec, -1
A_NZ:
s_add_u32 s43, s43, 1024
s_waitcnt vmcnt(0)
s_branch A_LOOP
A_END:
"""
    return kernel("ka_kernel", b, 160)

def silu(v, t):
    return f"""v_mul_f32 v{t}, 0xbfb8aa3b, v{v}
v_exp_f32 v{t}, v{t}
s_nop 0
v_add_f32 v{t}, 1.0, v{t}
v_rcp_f32 v{t}, v{t}
s_nop 0
v_mul_f32 v{v}, v{v}, v{t}
"""
GB=2048
def kB():
    b=f"""
s_cmp_ge_u32 s2, {GB}
s_cbranch_scc1 B_END
s_load_dwordx2 s[4:5], s[0:1], 8
s_load_dwordx2 s[6:7], s[0:1], 16
s_load_dwordx2 s[8:9], s[0:1], 24
s_load_dwordx2 s[10:11], s[0:1], 32
s_load_dwordx2 s[24:25], s[0:1], 40
s_load_dwordx2 s[26:27], s[0:1], 48
s_load_dwordx2 s[28:29], s[0:1], 80
v_lshrrev_b32 v2, 6, v0
v_and_b32 v0, 63, v0
v_lshlrev_b32 v1, 2, v0
v_readfirstlane_b32 s3, v2
s_lshl_b32 s43, s2, 2
s_add_u32 s43, s43, s3
s_mov_b32 s40, 0x05040100
s_mov_b32 s41, 0x07060302
s_waitcnt lgkmcnt(0)
"""
    b+=srd(12,24,273*256)
    b+=srd(16,28,0x10000000)
    b+=srd(20,4,N*6)
    b+=srd(32,26,256)
    b+="s_mov_b32 s44, %d\n"%(257*256)
    b+=load_wpairs(16,16,12,44,4)
    b+=f"""
s_mov_b32 s44, {256*256}
buffer_load_dword v4, v1, s[12:15], s44 offen
buffer_load_dword v5, v1, s[32:35], 0 offen
s_waitcnt vmcnt(0)
v_lshlrev_b32 v32, 16, v4
v_and_b32 v33, 0xffff0000, v4
v_lshlrev_b32 v34, 16, v5
v_and_b32 v35, 0xffff0000, v5
v_lshlrev_b32 v3, 3, v0
v_and_b32 v36, 3, v0
v_lshlrev_b32 v36, 1, v36
v_cmp_gt_u32 vcc, 6, v36
s_mov_b64 s[36:37], vcc
B_LOOP:
s_cmp_ge_u32 s43, {E}
s_cbranch_scc1 B_END
s_lshl_b32 s46, s43, 2
s_load_dword s48, s[8:9], s46
s_load_dword s49, s[10:11], s46
s_lshl_b32 s46, s43, 5
s_load_dwordx8 s[56:63], s[6:7], s46
s_waitcnt lgkmcnt(0)
s_lshl_b32 s50, s48, 9
s_add_u32 s50, s50, {WS_B}
s_lshl_b32 s51, s49, 9
buffer_load_dwordx2 v[4:5], v3, s[16:19], s51 offen
buffer_load_dwordx2 v[6:7], v3, s[16:19], s50 offen
s_mul_i32 s52, s48, 6
s_mul_i32 s53, s49, 6
buffer_load_ushort v8, v36, s[20:23], s53 offen
buffer_load_ushort v9, v36, s[20:23], s52 offen
s_waitcnt vmcnt(0)
v_lshlrev_b32 v8, 16, v8
v_lshlrev_b32 v9, 16, v9
v_sub_f32 v8, v8, v9
v_cndmask_b32 v8, 0, v8, s[36:37]
"""
    b+=rnd_bf16(8,10)
    b+="v_mul_f32 v9, v8, v8\n"
    b+=rnd_bf16(9,10)
    b+="""s_nop 1
v_add_f32_dpp v9, v9, v9 quad_perm:[1,0,3,2] row_mask:0xf bank_mask:0xf
s_nop 1
v_add_f32_dpp v9, v9, v9 quad_perm:[2,3,0,1] row_mask:0xf bank_mask:0xf
"""
    b+=rnd_bf16(9,10)
    b+="""v_add_f32 v4, v4, v6
v_add_f32 v5, v5, v7
v_fma_f32 v4, v9, v32, v4
v_fma_f32 v5, v9, v33, v5
"""
    for p in range(8):
        b+=f"v_dot2_f32_bf16 v4, s{56+p}, v{16+2*p}, v4\nv_dot2_f32_bf16 v5, s{56+p}, v{17+2*p}, v5\n"
    b+="s_nop 4\n"
    b+=rnd_bf16(4,10)+rnd_bf16(5,10)+silu(4,10)+silu(5,10)+rnd_bf16(4,10)+rnd_bf16(5,10)
    b+=f"""
s_add_u32 s51, s51, {WS_M}
buffer_atomic_add_f32 v4, v3, s[16:19], s51 offen
buffer_atomic_add_f32 v5, v3, s[16:19], s51 offen offset:4
v_mul_f32 v6, v4, v34
v_fma_f32 v6, v5, v35, v6
"""
    for m in (1,2,4,8,16,32):
        b+=f"v_xor_b32 v7, {m*4}, v1\nds_bpermute_b32 v10, v7, v6\ns_waitcnt lgkmcnt(0)\nv_add_f32 v6, v6, v10\n"
    b+=rnd_bf16(6,10)
    b+="v_mul_f32 v8, v8, v6\n"+rnd_bf16(8,10)
    b+=f"""
s_lshl_b32 s51, s49, 4
s_add_u32 s51, s51, {WS_P}
s_mov_b64 exec, 7
buffer_atomic_add_f32 v8, v1, s[16:19], s51 offen
s_mov_b64 exec, -1
s_add_u32 s43, s43, {GB*4}
s_waitcnt vmcnt(0)
s_branch B_LOOP
B_END:
"""
    return kernel("kb_kernel", b, 48)
GC=256
def kC():
    b=f"""
s_cmp_ge_u32 s2, {GC}
s_cbranch_scc1 C_END
s_load_dwordx2 s[4:5], s[0:1], 0
s_load_dwordx2 s[6:7], s[0:1], 8
s_load_dwordx2 s[8:9], s[0:1], 56
s_load_dwordx2 s[10:11], s[0:1], 64
s_load_dwordx2 s[28:29], s[0:1], 80
v_lshrrev_b32 v2, 6, v0
v_and_b32 v0, 63, v0
v_lshlrev_b32 v1, 2, v0
v_readfirstlane_b32 s3, v2
s_lshl_b32 s43, s2, 2
s_add_u32 s43, s43, s3
s_mov_b32 s40, 0x05040100
s_mov_b32 s41, 0x07060302
s_waitcnt lgkmcnt(0)
"""
    b+=srd(12,8,65536)
    b+=srd(16,28,0x10000000)
    b+=srd(20,6,N*6)
    b+=srd(24,4,N*256)
    b+=srd(32,10,N*262)
    b+="s_mov_b32 s44, 32768\n"
    b+=load_wpairs(16,128,12,44,4)
    b+=f"""
v_lshlrev_b32 v3, 3, v0
v_lshlrev_b32 v14, 1, v0
C_LOOP:
s_cmp_ge_u32 s43, {N}
s_cbranch_scc1 C_END
s_lshl_b32 s46, s43, 9
s_add_u32 s47, s46, {WS_C}
buffer_load_dwordx2 v[4:5], v3, s[16:19], s47 offen
s_add_u32 s47, s46, {WS_M}
buffer_load_dwordx2 v[6:7], v3, s[16:19], s47 offen
s_lshl_b32 s47, s43, 8
buffer_load_dword v8, v1, s[24:27], s47 offen
s_lshl_b32 s48, s43, 4
s_add_u32 s48, s48, {WS_P}
s_mul_i32 s49, s43, 6
s_mov_b64 exec, 7
buffer_load_dword v11, v1, s[16:19], s48 offen
buffer_load_ushort v12, v14, s[20:23], s49 offen
s_mov_b64 exec, -1
s_waitcnt vmcnt(0)
v_cvt_pk_bf16_f32 v6, v6, v7
s_nop 4
"""
    for p in range(64):
        b+=f"v_readlane_b32 s50, v6, {p}\ns_nop 3\nv_dot2_f32_bf16 v4, s50, v{16+2*p}, v4\nv_dot2_f32_bf16 v5, s50, v{17+2*p}, v5\n"
    b+="s_nop 4\n"
    b+=rnd_bf16(4,10)+rnd_bf16(5,10)+silu(4,10)+silu(5,10)+rnd_bf16(4,10)+rnd_bf16(5,10)
    b+=f"""
v_lshlrev_b32 v9, 16, v8
v_and_b32 v8, 0xffff0000, v8
v_add_f32 v4, v4, v9
v_add_f32 v5, v5, v8
v_cvt_pk_bf16_f32 v4, v4, v5
buffer_store_dword v4, v1, s[32:35], s47 offen
"""
    b+=rnd_bf16(11,10)
    b+=f"""
v_lshlrev_b32 v12, 16, v12
v_add_f32 v11, v11, v12
v_cvt_pk_bf16_f32 v11, v11, v11
s_add_u32 s49, s49, {N*256}
s_mov_b64 exec, 7
buffer_store_short v11, v14, s[32:35], s49 offen
s_mov_b64 exec, -1
s_add_u32 s43, s43, {GC*4}
s_waitcnt vmcnt(0)
s_branch C_LOOP
C_END:
"""
    return kernel("kc_kernel", b, 160)

def extra_empty(name):
    return kernel(name, "s_nop 0\n", 8)

def extra_stream(name, arg_off, nbytes_per_wg, G, total):
    n=nbytes_per_wg//(1024*16)
    b=f"""
s_cmp_ge_u32 s2, {G}
s_cbranch_scc1 {name}_END
s_load_dwordx2 s[4:5], s[0:1], {arg_off}
s_load_dwordx2 s[10:11], s[0:1], 80
s_mul_i32 s30, s2, {nbytes_per_wg}
v_lshlrev_b32 v1, 4, v0
s_waitcnt lgkmcnt(0)
"""
    b+=srd(12,4,total)+srd(16,10,0x10000000)
    for i in range(n):
        b+=f"buffer_load_dwordx4 v[{8+4*i}:{11+4*i}], v1, s[12:15], s30 offen\ns_add_u32 s30, s30, 16384\n"
    b+="s_waitcnt vmcnt(0)\n"
    for i in range(1,n): b+=f"v_xor_b32 v8, v8, v{8+4*i}\n"
    b+=f"s_lshl_b32 s31, s2, 12\ns_add_u32 s31, s31, {0x8000000}\nv_lshlrev_b32 v1, 2, v0\nbuffer_store_dword v8, v1, s[16:19], s31 offen\n{name}_END:\n"
    return kernel(name, b, 64)

def build(variant):
    L=[]; K=""
    if variant=="stream":
        L.append(("xs_kernel",256,1024)); K+=extra_stream("xs_kernel",16,49152,256,E*32)
    if variant=="stream2":
        L.append(("xs_kernel",256,1024)); L.append(("xs_kernel",256,1024)); K+=extra_stream("xs_kernel",16,49152,256,E*32)
    if variant=="empty1":
        L.append(("xe_kernel",256,256)); K+=extra_empty("xe_kernel")
    if variant=="empty4":
        L+= [("xe_kernel",256,256)]*4; K+=extra_empty("xe_kernel")
    L+=[("ka_kernel",GA,256),("kb_kernel",GB,256),("kc_kernel",GC,256)]
    hdr="".join(f"; @launch kernel={k} grid=({g},1,1) block=({bl},1,1) lds=0\n" for k,g,bl in L)
    return hdr+'.amdgcn_target "amdgcn-amd-amdhsa--gfx950"\n'+K+kA()+kB()+kC()
if __name__=="__main__":
    for v in ("base","empty1","empty4","stream","stream2"):
        open(f"simple_{v}.s","w").write(build(v))
    open(f"cdna_kernels/{NAME}.s","w").write(build("base"))
```

```python
from simple import *
def chase(name, arg_off, base, stride, n):
    b=f"""
s_cmp_ge_u32 s2, 1
s_cbranch_scc1 {name}_END
s_load_dwordx2 s[4:5], s[0:1], {arg_off}
s_load_dwordx2 s[10:11], s[0:1], 80
s_waitcnt lgkmcnt(0)
"""
    b+=srd(12,4,0x10000000)+srd(16,10,0x10000000)
    b+=f"""
v_mov_b32 v1, {base}
s_mov_b32 s20, {n}
v_mov_b32 v3, 0
{name}_L:
buffer_load_dword v2, v1, s[12:15], 0 offen
s_waitcnt vmcnt(0)
v_and_b32 v2, 0, v2
v_add_u32 v1, v1, v2
v_add_u32 v1, {stride}, v1
s_sub_u32 s20, s20, 1
s_cmp_lg_u32 s20, 0
s_cbranch_scc1 {name}_L
v_mov_b32 v1, 0x9000000
buffer_store_dword v2, v1, s[16:19], 0 offen
{name}_END:
"""
    return kernel(name,b,8)
def build3(pre, mid, spec):
    L=[("xc_kernel",1,64)]*pre+[("ka_kernel",GA,256),("kb_kernel",GB,256)]+[("xc_kernel",1,64)]*mid+[("kc_kernel",GC,256)]
    K=chase("xc_kernel",*spec)
    hdr="".join(f"; @launch kernel={k} grid=({g},1,1) block=({bl},1,1) lds=0\n" for k,g,bl in L)
    return hdr+'.amdgcn_target "amdgcn-amd-amdhsa--gfx950"\n'+K+kA()+kB()+kC()
S={"ea":(16,0,12800,1000),"h":(0,0,6400,1000),"src":(24,0,1536,1000),"out":(64,0,6400,1000),"wslo":(80,0x5000000,12800,1000),"wshi":(80,0xF000000,12800,1000)}
for k,sp in S.items():
    open(f"ch_{k}_pre.s","w").write(build3(1,0,sp))
    open(f"ch_{k}_mid.s","w").write(build3(0,1,sp))
    open(f"ch_{k}_pre2.s","w").write(build3(2,0,sp))
```

```python
from host import *
ITER=24
def mk(name, body_lines, vgpr=256):
    init = "\n".join(f"v_mov_b32 v{i}, 1.0" for i in range(2,vgpr))
    body = "\n".join(body_lines)
    return kernel(name, f"""
s_load_dwordx2 s[4:5], s[0:1], 0
s_load_dwordx2 s[12:13], s[0:1], 8
{init}
v_lshrrev_b32 v1, 6, v0
s_nop 1
v_readfirstlane_b32 s21, v1
s_lshl_b32 s30, s21, 13
s_add_u32 s30, s30, 65536
v_and_b32 v1, 63, v0
v_lshlrev_b32 v240, 4, v1
v_and_b32 v241, 15, v1
v_lshlrev_b32 v241, 4, v241
v_lshrrev_b32 v242, 4, v0
s_lshl_b32 s3, s2, 5
v_add_u32 v242, s3, v242
s_mov_b32 s24, 0x9E3779B1
v_mul_lo_u32 v242, v242, s24
s_mov_b32 s25, 1664525
v_and_b32 v243, 31, v1
v_lshlrev_b32 v244, 8, v243
v_and_b32 v243, 15, v243
v_lshrrev_b32 v245, 5, v1
v_xor_b32 v243, v243, v245
v_lshl_add_u32 v244, v243, 4, v244
v_add_u32 v244, s30, v244
s_mov_b32 s20, {ITER}
s_waitcnt lgkmcnt(0)
s_mov_b32 s14, 0x800000
s_mov_b32 s15, 0x20000
s_barrier
s_memtime s[8:9]
s_waitcnt lgkmcnt(0)
.p2align 6
L_{name}:
{body}
s_sub_u32 s20, s20, 1
s_cmp_lg_u32 s20, 0
s_cbranch_scc1 L_{name}
s_waitcnt vmcnt(0) lgkmcnt(0)
s_barrier
s_memtime s[10:11]
s_waitcnt lgkmcnt(0)
s_sub_u32 s10, s10, s8
v_lshrrev_b32 v1, 6, v0
s_lshl_b32 s3, s2, 4
v_add_u32 v1, s3, v1
v_lshlrev_b32 v1, 2, v1
v_mov_b32 v2, s10
global_store_dword v1, v2, s[4:5]
s_waitcnt vmcnt(0)
""", vgpr=vgpr)
def blockstream(j):
    y0=2+16*(j%3); y1=2+16*((j+1)%3); t0=50+16*(j%2); t1=50+16*((j+1)%2); o0=82
    L=[]
    for i in range(0,16,2): L.append(("c",f"v_cvt_pk_bf16_f32 v{o0+i//2}, v{t1+i}, v{t1+1+i}"))
    for i in range(16): L.append(("t",f"v_rcp_f32 v{t0+i}, v{t0+i}"))
    for i in range(16): L.append(("t",f"v_exp_f32 v{t1+i}, -v{y1+i}"))
    for i in range(0,16,2): L.append(("p",f"v_pk_mul_f32 v[{t0+i}:{t0+1+i}], v[{t0+i}:{t0+1+i}], v[{y0+i}:{y0+1+i}]"))
    for i in range(0,16,2): L.append(("p",f"v_pk_add_f32 v[{t1+i}:{t1+1+i}], v[{t1+i}:{t1+1+i}], 1.0 op_sel_hi:[1,0]"))
    return L
def M(c,j):
    d=128+16*(j%4)
    return f"v_mfma_f32_32x32x16_bf16 v[{d}:{d+15}], v[96:99], v[100:103], v[{d}:{d+15}]"
def tile(nm, dma, wlds, extra, mode="dma"):
    out=[]
    for j in range(4):
        L=blockstream(j)
        fill=[]
        if wlds:
            for i in range(wlds): fill.append(f"ds_read_b128 v[{200+4*(i%6)}:{203+4*(i%6)}], v240 offset:{1024*(i+8*j)}")
        if dma and j==2:
            fill.append("s_waitcnt vmcnt(0)")
            for i in range(8): fill.append(f"ds_read_b128 v[{104+4*(i%4)}:{107+4*(i%4)}], v244 offset:{32*i}")
        ex=[]
        if dma and j==3:
            for i in range(8):
                ex.append(f"v_mul_lo_u32 v242, v242, s25" if False else f"v_add_u32 v242, 0x9E3779B1, v242")
                ex.append(f"v_lshrrev_b32 v246, 17, v242")
                ex.append(f"v_lshl_add_u32 v{230+i}, v246, 8, v241")
                if mode=="dma":
                    ex.append(f"s_add_u32 m0, s30, {1024*i}\nbuffer_load_dwordx4 v{230+i}, s[12:15], 0 offen lds")
                else:
                    ex.append(f"buffer_load_dwordx4 v[{192+4*(i%2)}:{195+4*(i%2)}], v{230+i}, s[12:15], 0 offen")
        for i in range(extra): ex.append(f"v_and_b32 v{247+i%4}, v241, v240")
        cost=[8 if t=="t" else 4 for t,_ in L]
        c=0; since=99; k=nm//4; fi=0; ei=0
        for i,(t,x) in enumerate(L):
            rem=0;q=i
            while q<len(L) and L[q][0]!="p": rem+=cost[q]; q+=1
            if c<k and since>=24 and rem>=24:
                out.append(M(c,j)); c+=1; since=0
                if fi<len(fill): out.append(fill[fi]); fi+=1
                if fi<len(fill) and len(fill)>k: out.append(fill[fi]); fi+=1
            out.append(x); since+=cost[i]
            if t!="p" and ei<len(ex):
                out.append(ex[ei]); since+=4 if ex[ei].startswith("v_") else 0; ei+=1
        assert c==k,(c,k)
        out+=fill[fi:]+ex[ei:]
    return out
tests={}
for nm in (24,48):
    tests[f"m{nm}_base"]=tile(nm,0,0,0)
    tests[f"m{nm}_dma"]=tile(nm,1,0,0)
    tests[f"m{nm}_reg"]=tile(nm,1,0,0,"reg")
    tests[f"m{nm}_w8"]=tile(nm,0,8,0)
    tests[f"m{nm}_dma_w8"]=tile(nm,1,8,0)
    tests[f"m{nm}_dma_w4"]=tile(nm,1,4,0)
asm=HEAD; names=[]; K=[]
for nm,L in tests.items():
    kn=f"{nm}_kernel"; asm+=mk(kn,L); names.append((kn,(256,1,1),(512,1,1),0)); K.append(kn)
co=build(asm,names,11,"valu4")
if len(sys.argv)>1: raise SystemExit
m=Mod(co); out=DeviceBuffer(1<<16); tab=DeviceBuffer(8<<20)
for kn in K:
    r=[]
    for blk in (256,512):
        for rep in range(2):
            m.launch(kn,(256,1,1),(blk,1,1),160*1024,[out.ptr,tab.ptr]+[out.ptr]*9); sync()
        o=out.to_numpy(np.uint32,(256,16))[:,0]
        r.append(np.median(o)/ITER/(blk//256))
    print(f"{kn:34s} cyc per tile: 1w={r[0]:7.0f} 2w={r[1]:7.0f}")
```

```python
import re
KD = """
.section .rodata,"a"
.p2align 6
.amdhsa_kernel {name}
  .amdhsa_next_free_vgpr {vgpr}
  .amdhsa_next_free_sgpr {sgpr}
  .amdhsa_accum_offset {acc}
  .amdhsa_group_segment_fixed_size 0
  .amdhsa_kernarg_size 88
  .amdhsa_user_sgpr_count 2
  .amdhsa_user_sgpr_kernarg_segment_ptr 1
  .amdhsa_system_sgpr_workgroup_id_x 1
.end_amdhsa_kernel
"""
class Asm:
    def __init__(self): self.L=[]
    def __call__(self, s):
        for l in s.split("\n"):
            l=l.split(";")[0].strip()
            if l: self.L.append(l)
    def extend(self, lst):
        for s in lst: self(s)
    def text(self): return "\n".join(self.L)+"\n"
def kernel(name, a, vgpr, acc=None, sgpr=102):
    if acc is None: acc=(vgpr+3)//4*4
    return f""".text
.globl {name}
.p2align 8
.type {name},@function
{name}:
{a.text()}s_endpgm
""" + KD.format(name=name, vgpr=vgpr, sgpr=sgpr, acc=acc)
def srd(a, d, ptr, nbytes):
    a(f"s_mov_b32 s{d}, s{ptr}\ns_mov_b32 s{d+1}, s{ptr+1}\ns_mov_b32 s{d+2}, {nbytes}\ns_mov_b32 s{d+3}, 0x20000")
def vr(b,n=1,k="v"):
    return f"{k}{b}" if n==1 else f"{k}[{b}:{b+n-1}]"
def ar(b,n=1): return vr(b,n,"a")
def sr(b,n=1): return vr(b,n,"s")

RX=re.compile(r"^(-|\|)?([vas])(\d+)\|?$|^(-|\|)?([vas])\[(\d+):(\d+)\]\|?$")
def regs(tok):
    tok=tok.strip()
    if tok=="vcc": return {("s",106),("s",107)}
    if tok=="vcc_lo": return {("s",106)}
    if tok=="vcc_hi": return {("s",107)}
    if tok=="exec": return {("s",126),("s",127)}
    if tok=="exec_lo": return {("s",126)}
    if tok=="exec_hi": return {("s",127)}
    if tok=="m0": return {("s",124)}
    m=RX.match(tok)
    if not m: return set()
    if m.group(2): return {(m.group(2),int(m.group(3)))}
    return {(m.group(5),i) for i in range(int(m.group(6)),int(m.group(7))+1)}
TRANS=("v_exp_","v_log_","v_rcp_","v_rsq_","v_sqrt_","v_sin_","v_cos_")
def parse(l):
    p=l.split(None,1); op=p[0]; rest=p[1] if len(p)>1 else ""
    toks=[t.strip() for t in rest.split(",")] if rest else []
    mods=""
    if toks:
        q=toks[-1].split(None,1)
        toks[-1]=q[0]; mods=q[1] if len(q)>1 else ""
    ops=[];
    for t in toks:
        ops.append(t.split()[0] if t else t)
    d=dict(op=op,line=l,defs=set(),uses=set(),cls="other",srcC=set(),ab=set(),mods=l)
    R=[regs(t) for t in ops]
    def U(idx):
        s=set()
        for i in idx:
            if i<len(R): s|=R[i]
        return s
    n=len(R)
    if op.startswith("v_mfma"):
        d["cls"]="mfma"; d["defs"]=R[0]; d["ab"]=R[1]|R[2]; d["srcC"]=R[3] if n>3 else set(); d["uses"]=d["ab"]|d["srcC"]
        d["passes"]=8 if "32x32" in op else 4
    elif op.startswith("v_cmp"):
        d["cls"]="valu"; d["defs"]=R[0]; d["uses"]=U(range(1,n))
        if op.startswith("v_cmpx"): d["defs"]=d["defs"]|regs("exec")
    elif op.startswith("v_readlane") or op.startswith("v_readfirstlane"):
        d["cls"]="valu"; d["defs"]=R[0]; d["uses"]=U(range(1,n)); d["rl"]=True
        d["lanesel"]=R[2] if n>2 else set()
    elif op.startswith("v_writelane"):
        d["cls"]="valu"; d["defs"]=R[0]; d["uses"]=U(range(0,n)); d["lanesel"]=R[2]
    elif op.startswith("v_permlane"):
        d["cls"]="valu"; d["defs"]=R[0]|R[1]; d["uses"]=R[0]|R[1]; d["perm"]=True
    elif op.startswith("v_"):
        d["cls"]="valu"; d["defs"]=R[0]; d["uses"]=U(range(1,n))
        if "_co_" in op: d["defs"]=R[0]|R[1]; d["uses"]=U(range(2,n))
        if op.startswith(("v_fmac","v_mac","v_dot2c","v_pk_fmac")): d["uses"]|=R[0]
        if op.startswith("v_cndmask") and n==3: d["uses"]|=regs("vcc")
        if "UNUSED_PRESERVE" in l or "row_mask" in l: d["uses"]|=R[0]
        d["trans"]=op.startswith(TRANS)
        d["dot"]=op.startswith("v_dot")
        d["dpp"]=("_dpp" in op) or ("row_" in l) or ("quad_perm" in l)
        d["dstsel"]=("dst_sel:" in l and "dst_sel:DWORD" not in l)
    elif op.startswith("ds_"):
        d["cls"]="ds"
        if op.startswith(("ds_read","ds_bpermute","ds_permute","ds_swizzle")) or "_rtn_" in op:
            d["defs"]=R[0]; d["uses"]=U(range(1,n))
        else: d["uses"]=U(range(0,n))
    elif op.startswith(("buffer_","global_")):
        d["cls"]="vmem"
        lds=l.rstrip().endswith(" lds") or " lds " in l
        if "load" in op and not lds: d["defs"]=R[0]; d["uses"]=U(range(1,n))
        else: d["uses"]=U(range(0,n))
        if lds: d["uses"]|=regs("m0"); d["lds"]=True
        if "store" in op and ("x3" in op or "x4" in op):
            d["wide"]=R[0] if op.startswith("buffer_") else R[1]
    elif op.startswith("s_"):
        d["cls"]="salu"
        if op.startswith(("s_cmp","s_bitcmp","s_waitcnt","s_nop","s_barrier","s_branch","s_cbranch","s_endpgm","s_setprio","s_sleep")):
            d["uses"]=U(range(0,n))
        else:
            d["defs"]=R[0] if n else set(); d["uses"]=U(range(1,n))
            if "saveexec" in op: d["defs"]=d["defs"]|regs("exec")
    return d
def states(d):
    if d["op"]=="s_nop": return int(d["line"].split()[1],0)+1
    return 1
def check(lines, name="", window=20):
    P=[parse(l) for l in lines if not l.endswith(":") and not l.startswith(".")]
    bad=0
    V=lambda s:{r for r in s if r[0] in "va"}
    S=lambda s:{r for r in s if r[0]=="s"}
    for i,c in enumerate(P):
        dist=0
        for j in range(i-1,max(-1,i-window-1),-1):
            p=P[j]
            if p["op"] in("s_branch","s_endpgm"): break
            need=0
            if p["cls"]=="mfma":
                w=12 if p["passes"]==8 else 8
                if c["cls"]=="mfma":
                    if p["defs"]&c["ab"]: need=w
                    if p["defs"]&c["srcC"] and p["defs"]!=c["srcC"]: need=max(need,w-2)
                elif c["cls"] in("valu","ds","vmem"):
                    if p["defs"]&(c["uses"]|c["defs"]): need=w
                    if c["cls"]=="valu" and p["srcC"]&c["defs"]: need=max(need,7 if p["passes"]==8 else 3)
            if p["cls"]=="valu":
                if c["cls"]=="mfma" and V(p["defs"])&c["uses"]: need=max(need,2)
                if c["cls"]=="mfma" and p["defs"]&regs("exec"): need=max(need,4)
                if c["cls"]=="vmem" and S(p["defs"])&c["uses"]: need=max(need,5)
                if c["cls"]=="valu":
                    if S(p["defs"])&c["uses"]: need=max(need,2)
                    if S(p["defs"])&c.get("lanesel",set()): need=max(need,4)
                    if c.get("dpp") and V(p["defs"])&c["uses"]: need=max(need,2)
                    if c.get("perm") and V(p["defs"])&c["uses"]: need=max(need,2)
                    if c.get("rl") and V(p["defs"])&c["uses"]: need=max(need,1)
                    if p.get("trans") and not c.get("trans") and p["defs"]&c["uses"]: need=max(need,1)
                    if p.get("dstsel") and p["defs"]&(c["uses"]|c["defs"]): need=max(need,1)
                    if c.get("dpp") and p["defs"]&regs("exec"): need=max(need,5)
                    if c.get("rl") and p["defs"]&regs("exec"): need=max(need,4)
                if p.get("dot") and c["cls"] in("valu","ds","vmem","mfma") and p["defs"]&(c["uses"]|c["defs"]): need=max(need,3)
            if p["cls"]=="vmem" and p.get("wide") and p["wide"]&c["defs"]: need=max(need,2 if c["cls"]=="valu" else 1)
            if p["cls"]=="salu" and regs("m0")&p["defs"] and c.get("lds"): need=max(need,1)
            if need>dist:
                bad+=1; print(f"HAZARD[{name}] need {need} have {dist}: '{p['line']}' -> '{c['line']}'")
            dist+=states(p)
            if dist>=window: break
    return bad
```

```python
from asmlib import *
N=25000; E=400000; NB=98; C=1024; NCH=391
WS_W=0; WS_REC=0x22000; WS_OFF=0x1A9000+0; WS_END=WS_OFF+NCH*1024
NWF=133; NWG_W=34
G1=NCH+NWG_W
LOG2E=0xbfb8aa3b
def k1():
    a=Asm()
    a(f"""
s_cmp_ge_u32 s2, {G1}
s_cbranch_scc1 K1_END
s_cmp_lt_u32 s2, {NWG_W}
s_cbranch_scc1 K1_W
s_load_dwordx4 s[4:7], s[0:1], 24
s_load_dwordx2 s[8:9], s[0:1], 80
s_sub_u32 s3, s2, {NWG_W}
v_lshlrev_b32 v1, 4, v0
s_lshl_b32 s10, s3, 12
v_add_u32 v2, s10, v1
v_lshlrev_b32 v3, 2, v0
v_mov_b32 v4, 0
ds_write_b32 v3, v4
s_mov_b32 s14, {E*4}
s_mov_b32 s15, 0x20000
s_mov_b32 s18, {E*4}
s_mov_b32 s19, 0x20000
s_mov_b32 s22, {WS_END}
s_mov_b32 s23, 0x20000
s_movk_i32 s24, 21400
s_movk_i32 s25, -98
v_mov_b32 v5, 1
v_lshlrev_b32 v6, 24, v0
s_waitcnt lgkmcnt(0)
s_mov_b32 s12, s6
s_mov_b32 s13, s7
s_mov_b32 s16, s4
s_mov_b32 s17, s5
buffer_load_dwordx4 v[8:11], v2, s[12:15], 0 offen
buffer_load_dwordx4 v[12:15], v2, s[16:19], 0 offen
s_mov_b32 s20, s8
s_mov_b32 s21, s9
v_cmp_gt_u32 vcc, s14, v2
s_mov_b32 s26, {1<<22}
s_mov_b32 s27, {2<<22}
s_mov_b32 s28, {3<<22}
v_and_b32 v7, 63, v0
v_lshlrev_b32 v7, 4, v7
s_barrier
s_and_saveexec_b64 s[30:31], vcc
s_waitcnt vmcnt(1)
""")
    for i in range(4): a(f"v_mul_u32_u24 v{16+i}, s24, v{8+i}")
    for i in range(4): a(f"v_lshrrev_b32 v{16+i}, 21, v{16+i}")
    for i in range(4): a(f"v_lshlrev_b32 v{20+i}, 2, v{16+i}\nds_add_rtn_u32 v{24+i}, v{20+i}, v5")
    for i in range(4): a(f"v_mad_i32_i24 v{8+i}, v{16+i}, s25, v{8+i}")
    a("s_waitcnt vmcnt(0)")
    for i in range(4): a(f"v_lshl_or_b32 v{8+i}, v{8+i}, 15, v{12+i}")
    a("v_or_b32 v8, v8, v6")
    for i in range(1,4): a(f"v_or3_b32 v{8+i}, v{8+i}, v6, s{25+i}")
    a("""
s_mov_b64 exec, s[30:31]
s_waitcnt lgkmcnt(0)
s_barrier
ds_read_b128 v[12:15], v7
s_waitcnt lgkmcnt(0)
v_add_u32 v16, v12, v13
v_add3_u32 v16, v16, v14, v15
v_mov_b32 v17, v16
s_nop 1
v_add_u32_dpp v17, v17, v17 row_shr:1 row_mask:0xf bank_mask:0xf bound_ctrl:0
s_nop 1
v_add_u32_dpp v17, v17, v17 row_shr:2 row_mask:0xf bank_mask:0xf bound_ctrl:0
s_nop 1
v_add_u32_dpp v17, v17, v17 row_shr:4 row_mask:0xf bank_mask:0xf bound_ctrl:0
s_nop 1
v_add_u32_dpp v17, v17, v17 row_shr:8 row_mask:0xf bank_mask:0xf bound_ctrl:0
s_nop 1
v_add_u32_dpp v17, v17, v17 row_bcast:15 row_mask:0xa bank_mask:0xf
s_nop 1
v_add_u32_dpp v17, v17, v17 row_bcast:31 row_mask:0xc bank_mask:0xf
v_sub_u32 v28, v17, v16
v_add_u32 v29, v28, v12
v_add_u32 v30, v29, v13
v_add_u32 v31, v30, v14
ds_write_b128 v7, v[28:31] offset:1024
""")
    for i in range(4): a(f"ds_read_b32 v{16+i}, v{20+i} offset:1024")
    for i in range(4): a(f"v_lshl_or_b32 v{12+i}, v{12+i}, 16, v{28+i}")
    a(f"""
s_lshl_b32 s11, s3, 10
s_add_u32 s11, s11, {WS_OFF}
v_add_u32 v7, s11, v7
v_cmp_gt_u32 s[32:33], 64, v0
s_mov_b64 exec, s[32:33]
buffer_store_dwordx4 v[12:15], v7, s[20:23], 0 offen
s_mov_b64 exec, vcc
s_waitcnt lgkmcnt(0)
""")
    for i in range(4): a(f"v_add_lshl_u32 v{16+i}, v{16+i}, v{24+i}, 2\nds_write_b32 v{16+i}, v{8+i} offset:2048")
    a(f"""
s_mov_b64 exec, s[30:31]
s_waitcnt lgkmcnt(0)
s_barrier
ds_read_b128 v[12:15], v1 offset:2048
v_add_u32 v2, {WS_REC}, v2
s_waitcnt lgkmcnt(0)
buffer_store_dwordx4 v[12:15], v2, s[20:23], 0 offen
s_endpgm
K1_W:
s_load_dwordx2 s[4:5], s[0:1], 40
s_load_dwordx2 s[6:7], s[0:1], 56
s_load_dwordx2 s[8:9], s[0:1], 80
v_lshrrev_b32 v1, 6, v0
v_and_b32 v2, 31, v0
v_bfe_u32 v3, v0, 5, 1
v_readfirstlane_b32 s3, v1
s_lshl_b32 s10, s2, 2
s_add_u32 s10, s10, s3
s_cmp_ge_u32 s10, {NWF}
s_cbranch_scc1 K1_END
; s10=f  s11=group(f>>5) s24=s s25=b
s_lshr_b32 s11, s10, 5
s_bfe_u32 s24, s10, 0x30002
s_and_b32 s25, s10, 3
v_and_b32 v4, 0x13, v2
v_and_b32 v5, 4, v2
v_lshl_or_b32 v4, v5, 1, v4
v_and_b32 v5, 8, v2
v_lshrrev_b32 v5, 1, v5
v_or_b32 v4, v4, v5
s_lshl_b32 s26, s24, 4
s_movk_i32 s27, 2048
s_movk_i32 s28, 512
s_movk_i32 s29, 256
s_mov_b32 s30, {LOG2E}
s_mov_b32 s14, {273*256}
s_mov_b32 s15, 0x20000
s_mov_b32 s18, {WS_W+NWF*1024}
s_mov_b32 s19, 0x20000
s_waitcnt lgkmcnt(0)
s_mov_b32 s12, s4
s_mov_b32 s13, s5
s_mov_b32 s16, s8
s_mov_b32 s17, s9
s_cmp_eq_u32 s11, 1
s_cbranch_scc1 K1_WGO
s_cmp_eq_u32 s11, 0
s_cbranch_scc0 K1_W2
s_add_u32 s26, s26, 128
s_branch K1_WGO
K1_W2:
s_cmp_eq_u32 s11, 4
s_cbranch_scc0 K1_W3
s_movk_i32 s26, 257
s_cmp_eq_u32 s10, 132
s_cbranch_scc0 K1_WGO
s_movk_i32 s26, 256
s_mov_b32 s27, 0
s_mov_b32 s28, 4
s_mov_b32 s29, 2
v_and_b32 v2, 15, v0
v_lshlrev_b32 v2, 3, v2
s_branch K1_WGO
K1_W3:
s_mov_b32 s12, s6
s_mov_b32 s13, s7
s_mov_b32 s14, 65536
v_mov_b32 v2, v4
s_cmp_eq_u32 s11, 2
s_cbranch_scc1 K1_WGO
s_mov_b32 s30, 1.0
s_lshr_b32 s26, s24, 2
s_lshl_b32 s26, s26, 6
s_and_b32 s31, s24, 3
s_lshl_b32 s31, s31, 3
s_add_u32 s26, s26, s31
s_add_u32 s26, s26, 128
s_movk_i32 s27, 1024
s_movk_i32 s28, 256
s_movk_i32 s29, 8192
K1_WGO:
s_lshl_b32 s26, s26, 8
s_lshl_b32 s25, s25, 6
s_add_u32 s26, s26, s25
v_mul_u32_u24 v3, s27, v3
v_lshl_add_u32 v3, v2, 1, v3
""")
    for i in range(4):
        a(f"""buffer_load_ushort v{8+2*i}, v3, s[12:15], s26 offen
s_add_u32 s31, s26, s29
buffer_load_ushort v{9+2*i}, v3, s[12:15], s31 offen
s_add_u32 s26, s26, s28""")
    a(f"""
s_lshl_b32 s10, s10, 10
s_add_u32 s10, s10, {WS_W}
v_and_b32 v1, 63, v0
v_lshlrev_b32 v1, 4, v1
v_add_u32 v1, s10, v1
s_waitcnt vmcnt(0)
""")
    for i in range(8): a(f"v_lshlrev_b32 v{8+i}, 16, v{8+i}")
    for i in range(8): a(f"v_mul_f32 v{8+i}, s30, v{8+i}")
    for i in range(4): a(f"v_cvt_pk_bf16_f32 v{16+i}, v{8+2*i}, v{9+2*i}")
    a("""
buffer_store_dwordx4 v[16:19], v1, s[16:19], 0 offen
K1_END:
""")
    check(a.L,"k1")
    return kernel("k1_kernel", a, 32)
K1_LDS=2048+4096
if __name__=="__main__":
    print(len(k1()))
```

```python
from asmlib import *
import k1 as K1
N=25000; E=400000; NB=98; CAP=1792
WS_W,WS_REC,WS_OFF,WS_END=K1.WS_W,K1.WS_REC,K1.WS_OFF,K1.WS_END
PD=0; REC=1568; CNT=REC+CAP*16; BASE=CNT+512; SC=BASE+576; TRASH=SC+32
SRC=REC+(CAP+96)*16; TB=SRC+CAP*2; WD=TB+128; AT=WD+256; ZR=AT+98*264; MT=ZR+256; PT=MT+98*272; SB=PT+98*16
STG=98304; LDS=163840; ZF0=SB+8192-9*4096
assert SB+8192<=STG and TRASH+272<=SRC and ZF0%16==0 and MT%16==0 and ZF0<=ZR and REC==98*16
H=4; EA=8; POS=12; WS=16; OUT=20; WX=24
sN0=28; sNN=29; sW=30; sR0=31; sNT=32; sM=33; sCap=34; sNP=35; sK=36; sk=37; sEv=38; sTF=39; sTW=40
sNb=41; sNbF=42; sKm1=43; sKh=44; sKe=45; sM0=46; sCEA=50; sC256=51; sNeg10=52; sNeg01=53; sNRH=54; sNRE=55
sT=56
sMask=60
sInit=74; sB=75; sU=76
sTS=84
NRH=N*256+3072; NRE=E*32
DX=0; DY=32; D2=64; T_=128; P_=160; FT=176
aAh=192; cDma=200; vSrc=208; vRec=212; vPd=216; vEid=219; vPs=220; vDA=222; vWx=224
aRec=228; aSrc=229; aS=230; cSc=231; aSc=232; vOH=234; mulL=235; vX=236; vInc=237; vH16=238; aPB=239; aPS=240
vS16=241; vN8=242; cAW0=243; cAW1=244; cMT=245; cPT=246; vFL=247; vB=248; vT=254; vEA=255
aW2=0; aW3=128; aAW=144; aH=160; aHL=192; aE=224; aOH=232; aSf=236; aZ=244; aSel=248
MF="v_mfma_f32_32x32x16_bf16"
def mf(d,A,B,c=None,dk="v"):
    return f"{MF} {vr(d,16,dk)}, {A}, {B}, {vr(d,16,dk) if c is None else c}"
def scan(a,regs,op="add"):
    ins={"add":"v_add_u32_dpp","max":"v_max_u32_dpp"}[op]
    steps=["row_shr:1 row_mask:0xf bank_mask:0xf bound_ctrl:0","row_shr:2 row_mask:0xf bank_mask:0xf bound_ctrl:0",
           "row_shr:4 row_mask:0xf bank_mask:0xf bound_ctrl:0","row_shr:8 row_mask:0xf bank_mask:0xf bound_ctrl:0",
           "row_bcast:15 row_mask:0xa bank_mask:0xf","row_bcast:31 row_mask:0xc bank_mask:0xf"]
    for s in steps:
        if len(regs)<3: a(f"s_nop {2-len(regs)}")
        for r in regs: a(f"{ins} v{r}, v{r}, v{r} {s}")

def cost(l):
    op=l.split()[0]
    if op.startswith(TRANS): return 8
    if op.startswith("v_mfma"): return 8
    return 4
def sched(ph1,mid,ph2,end,mfs,n1):
    out=[]
    def phase(ops,ms):
        ops=list(ops)
        tot=sum(cost(o) for o in ops)+sum(sum(cost(x) for x in m[1])+sum(cost(x) for x in m[2]) for m in ms)-sum(cost(x) for x in ms[0][2])
        n=len(ms); done=0
        for i,(m,post,pre) in enumerate(ms):
            out.extend(pre); out.append(m); out.extend(post)
            g=sum(cost(x) for x in post)
            if i+1<n: g+=sum(cost(x) for x in ms[i+1][2])
            tgt=(tot-done)/(n-i)
            while ops and (i+1==n or g<24 or g+cost(ops[0])/2<=tgt):
                o=ops.pop(0); out.append(o); g+=cost(o)
            done+=g
        assert not ops
    phase(ph1,mfs[:n1]); out.extend(mid); phase(ph2,mfs[n1:]); out.extend(end)
    return out
def spine(D):
    cvt=[f"v_cvt_pk_bf16_f32 v{P_+j}, v{T_+2*j}, v{T_+2*j+1}" for j in range(16)]
    ex=[f"v_exp_f32 v{T_+i}, v{D+i}" for i in range(32)]
    ad=[f"v_pk_add_f32 {vr(T_+2*j,2)}, {vr(T_+2*j,2)}, 1.0 op_sel_hi:[1,0]" for j in range(16)]
    rc=[f"v_rcp_f32 v{T_+i}, v{T_+i}" for i in range(32)]
    mu=[f"v_pk_mul_f32 {vr(T_+2*j,2)}, {vr(D+2*j,2)}, {vr(T_+2*j,2)}" for j in range(16)]
    return cvt,ex,ad,rc,mu
def mainmf(D,b0,epar):
    W=lambda s,i: mf(D+16*i, ar(aH+4*s,4), ar(aW2+4*(4*s+b0+i),4), "0" if s==0 else None)
    Ee=lambda i: mf(D+16*i, ar(aE+4*epar,4), ar(aW3+4*(b0+i),4))
    O=lambda i: mf(D+16*i, ar(aOH,4), ar(aAW+4*(b0+i),4))
    return W,Ee,O
def seg(b0,s,i): return mf(D2+16*(b0+i), ar(aSf+4*s,4), vr(P_+8*i+4*s,4))
def phaseB(ps,pd,s16,addr,off,tb=vB):
    return [f"v_lshlrev_b32 v{tb}, 4, v{s16}",
      f"v_alignbit_b32 v{tb+1}, v{ps+1}, v{ps}, v{tb}",
      f"v_lshrrev_b32 v{tb+2}, v{tb}, v{ps+1}",
      f"v_dot2_f32_bf16 v{tb+3}, v{tb+1}, s{sNeg10}, v{pd}",
      f"v_dot2_f32_bf16 v{tb+4}, v{tb+1}, s{sNeg01}, v{pd+1}",
      f"v_dot2_f32_bf16 v{tb+5}, v{tb+2}, s{sNeg10}, v{pd+2}",
      f"v_mul_f32 v{tb}, v{tb+3}, v{tb+3}",
      f"v_cvt_pk_bf16_f32 v{tb+1}, v{tb+3}, v{tb+4}",
      f"v_fmac_f32 v{tb}, v{tb+4}, v{tb+4}",
      f"v_fmac_f32 v{tb}, v{tb+5}, v{tb+5}",
      f"v_cvt_pk_bf16_f32 v{tb+2}, v{tb+5}, v{tb}",
      f"ds_write_b32 v{addr}, v{tb+1} offset:{off}",
      f"ds_write_b16 v{addr}, v{tb+2} offset:{off+4}",
      f"ds_write_b16_d16_hi v{addr}, v{tb+2} offset:{off+8}"]
def dma(i,src,da):
    return (f"v_mad_u32_u16 v{da}, v{src+(i>>1)}, s{sC256}, v{cDma+i} op_sel:[{i&1},0,0,0]",
            f"buffer_load_dwordx4 v{da}, {sr(H,4)}, 0 offen offset:{1024*(i&3)} lds")
def slotA(p):
    cvt,ex,ad,rc,mu=spine(DX)
    W,Ee,O=mainmf(DY,2,p)
    buf=8192*(1-p)
    rd=lambda s: f"ds_read_b128 {ar(aH+4*s,4)}, v{aAh+s} offset:{buf}"
    tr=lambda j: f"ds_read_b64_tr_b16 {ar(aSf+2*j,2)}, v{aS} offset:{512*j}"
    M=[W(0,0),W(0,1),W(1,0),W(1,1),W(2,0),W(2,1),seg(2,0,0),seg(2,0,1),W(3,0),W(3,1),seg(2,1,0),seg(2,1,1),
       W(4,0),W(4,1),W(5,0),W(5,1),W(6,0),W(6,1),W(7,0),W(7,1),Ee(0),Ee(1),O(0),O(1)]
    post=[[] for _ in M]; pre=[[] for _ in M]
    post[0]+=[f"ds_read_b128 {vr(vRec,4)}, v{aRec} offset:{512*(1+p)}"]
    post[1]+=["s_waitcnt vmcnt(9)",rd(0)]
    post[2]+=[f"ds_read_b32 v{vEid}, v{aRec} offset:{512*(2+p)+12}"]
    post[3]+=[rd(1)]
    post[4]+=[f"ds_read_b128 {vr(vSrc,4)}, v{aSrc} offset:{192+64*p}"]
    post[5]+=[rd(2)]
    post[7]+=[tr(0),tr(1)]
    post[9]+=[rd(3)]
    post[11]+=[tr(2),tr(3)]
    post[13]+=[rd(4)]; post[15]+=[rd(5)]; post[17]+=[rd(6)]; post[19]+=[rd(7)]
    if p==0:
        B=phaseB(vPs,vPd,vS16,aPB,1024)
        post[6]+=B[0:3]; post[8]+=B[3:6]; post[10]+=B[6:8]; post[12]+=B[8:11]
        post[14]+=B[11:12]; post[16]+=B[12:14]
        post[18]+=[f"ds_read_u16 v{vS16}, v{aPS} offset:256"]
        post[20]+=[f"ds_read_u16 v{vN8}, v{aPB} offset:{2048+10}"]
    else:
        post[6]+=[f"v_mul_u32_u24 v{vB}, 6, v{vS16}",f"v_and_b32 v{vB}, -4, v{vB}",f"v_lshlrev_b32 v{vB+1}, 1, v{vN8}"]
        post[8]+=[f"buffer_load_dwordx2 {vr(vPs,2)}, v{vB}, {sr(POS,4)}, 0 offen"]
        post[10]+=[f"ds_read_b96 {vr(vPd,3)}, v{vB+1} offset:{PD}"]
        post[12]+=[f"v_add_u32 v{aRec}, 1024, v{aRec}",f"v_add_u32 v{aSrc}, 128, v{aSrc}"]
        post[14]+=[f"v_add_u32 v{aPB}, 1024, v{aPB}",f"v_add_u32 v{aPS}, 128, v{aPS}"]
    post[21]+=[f"s_add_u32 s{sk}, s{sk}, 1"]
    return sched(cvt+ex,ad,rc,mu,list(zip(M,post,pre)),13)
def slotB(p):
    cvt,ex,ad,rc,mu=spine(DY)
    W,Ee,O=mainmf(DX,0,1-p)
    M=[W(0,0),W(0,1),W(1,0),W(1,1),W(2,0),W(2,1),seg(0,0,0),seg(0,0,1),W(3,0),W(3,1),seg(0,1,0),seg(0,1,1),
       W(4,0),W(4,1),W(5,0),W(5,1),W(6,0),W(6,1),W(7,0),W(7,1),Ee(0),Ee(1),O(0),O(1)]
    post=[[] for _ in M]; pre=[[] for _ in M]
    post[0]+=[f"ds_write_b64 v{aSc+p}, {ar(aZ,2)}",
              f"v_dot2_u32_u16 v{vEA}, v{vEid}, s{sCEA}, v{vH16}",
              f"v_mad_u32_u16 v{vOH}, v{vRec+2}, v{mulL}, v{vX} op_sel:[1,0,0,0]"]
    post[1]+=[f"ds_read_b128 {ar(aOH,4)}, v{vOH}",
              f"v_mad_u32_u16 v{aSc+1-p}, v{vRec+2}, 1, v{cSc} op_sel:[1,0,0,0]",
              f"s_cmp_lt_i32 s{sk}, s{sKe}",f"s_cselect_b32 s{EA+2}, s{sNRE}, 0"]
    post[2]+=[f"ds_write_b64 v{aSc+1-p}, {vr(vRec,2)}",
              f"s_cmp_lt_i32 s{sk}, s{sKh}",f"s_cselect_b32 s{H+2}, s{sNRH}, 0"]
    d=[dma(i,vSrc,vDA+(i&1)) for i in range(8)]
    post[3]+=[f"buffer_load_dwordx4 {ar(aE+4*p,4)}, v{vEA}, {sr(EA,4)}, 0 offen",
              f"s_mov_b32 m0, s{sM0+2*(1-p)}",d[0][0]]
    for i in range(8):
        post[4+i]+=[d[i][1]]
        if i==3: post[4+i]+=[f"s_mov_b32 m0, s{sM0+2*(1-p)+1}"]
        if i<7: post[4+i]+=[d[i+1][0]]
    post[12]+=[f"v_add_u32 v{vX}, v{vInc}, v{vX}"]
    pre[20]+=[f"s_waitcnt vmcnt({17+p}) lgkmcnt(0)"]
    return sched(cvt+ex,ad,rc,mu,list(zip(M,post,pre)),14)

def k2(dbg=None,ts=False,opt=()):
    a=Asm()
    tsn=[0]
    def TS():
        if ts:
            a(f"s_memtime {sr(sU+6,2)}\ns_waitcnt lgkmcnt(0)\ns_mov_b32 s{sTS+tsn[0]}, s{sU+6}"); tsn[0]+=1
    def dump(tag):
        if dbg!=tag: return
        a(f"""s_waitcnt vmcnt(0) lgkmcnt(0)
s_barrier
s_mul_i32 s{sT}, s2, {LDS}
s_add_u32 s{sT}, s{sT}, 0x400000
s_mov_b32 s{WS+2}, 0x8000000
v_lshlrev_b32 v1, 4, v{vT}
s_mov_b32 s{sT+1}, 0
DUMPL:
ds_read_b128 v[4:7], v1
s_waitcnt lgkmcnt(0)
buffer_store_dwordx4 v[4:7], v1, {sr(WS,4)}, s{sT} offen
v_add_u32 v1, 4096, v1
s_waitcnt vmcnt(0)
s_add_u32 s{sT+1}, s{sT+1}, 1
s_cmp_lt_u32 s{sT+1}, 40
s_cbranch_scc1 DUMPL
s_endpgm""")
    def whdma():
        a(f"v_and_b32 v{vB}, 63, v{vT}\nv_lshlrev_b32 v{vB}, 4, v{vB}\ns_lshl_b32 s{sT}, s{sW}, 14\ns_add_u32 s{sT}, s{sT}, {WS_W+65536}")
        for q in range(4):
            a(f"s_mov_b32 m0, s{sM0+q}")
            if q: a(f"s_add_u32 s{sT}, s{sT}, 4096")
            else: a("s_nop 0")
            for i in range(4): a(f"buffer_load_dwordx4 v{vB}, {sr(WS,4)}, s{sT} offen offset:{1024*i} lds")
    a(f"""
s_cmp_ge_u32 s2, 256
s_cbranch_scc1 K2_END
s_load_dwordx2 {sr(WS,2)}, s[0:1], 80
s_load_dwordx2 {sr(H,2)}, s[0:1], 0
s_load_dwordx2 {sr(POS,2)}, s[0:1], 8
s_load_dwordx2 {sr(EA,2)}, s[0:1], 16
s_load_dwordx2 {sr(WX,2)}, s[0:1], 48
s_load_dwordx2 {sr(OUT,2)}, s[0:1], 64
v_mov_b32 v{vT}, v0
v_lshrrev_b32 v1, 6, v0
s_and_b32 s{sT}, s2, 7
s_lshl_b32 s{sT}, s{sT}, 5
s_lshr_b32 s{sT+1}, s2, 3
s_add_u32 s{sB}, s{sT}, s{sT+1}
v_readfirstlane_b32 s{sW}, v1
s_mul_i32 s{sN0}, s{sB}, {NB}
s_sub_u32 s{sNN}, {N}, s{sN0}
s_min_u32 s{sNN}, s{sNN}, {NB}
s_mov_b32 s{WS+2}, {WS_END}
s_mov_b32 s{WS+3}, 0x20000
s_mov_b32 s{sNRH}, {NRH}
s_mov_b32 s{H+3}, 0x20000
s_mov_b32 s{sR0}, 0
s_movk_i32 s{sCap}, {CAP}
s_mov_b32 s{sInit}, 0
s_lshl_b32 s{sM0}, s{sW}, 14
s_add_u32 s{sM0}, s{sM0}, {STG}
s_add_u32 s{sM0+1}, s{sM0}, 4096
s_add_u32 s{sM0+2}, s{sM0}, 8192
s_add_u32 s{sM0+3}, s{sM0}, 12288
s_waitcnt lgkmcnt(0)
s_sub_u32 s{H}, s{H}, 3072
s_subb_u32 s{H+1}, s{H+1}, 0
""")
    TS()
    a(f"""
K2_ROUND:
s_lshl_b32 s{sT}, s{sB}, 2
s_add_u32 s{sT}, s{sT}, {WS_OFF}
v_lshl_add_u32 v2, v{vT}, 11, s{sT}
v_add_u32 v3, 1024, v2
buffer_load_dword v2, v2, {sr(WS,4)}, 0 offen
buffer_load_dword v3, v3, {sr(WS,4)}, 0 offen
v_and_b32 v4, 63, v{vT}
v_lshlrev_b32 v1, 4, v4
s_lshl_b32 s{sT}, s{sW}, 13
s_mov_b32 s{H+2}, s{sNRH}
""")
    for q in range(4):
        a(f"s_mov_b32 m0, s{sM0+q}")
        a(f"s_add_u32 s{sT+1}, s{sT}, {WS_W+(q&1)*4096+(q>>1)*32768}")
        for i in range(4): a(f"buffer_load_dwordx4 v1, {sr(WS,4)}, s{sT+1} offen offset:{1024*i} lds")
    a(f"""
v_and_b32 v5, 31, v4
v_lshrrev_b32 v6, 5, v4
v_lshl_add_u32 v7, s{sW}, 5, v5
v_lshlrev_b32 v{vH16}, 4, v6
v_add_u32 v8, s{sN0}, v7
v_lshl_add_u32 v8, v8, 8, v{vH16}
v_add_u32 v8, 3072, v8
""")
    for s in range(8): a(f"buffer_load_dwordx4 {ar(aHL+4*s,4)}, v8, {sr(H,4)}, 0 offen offset:{32*s}")
    a(f"s_mov_b32 s{sT}, {WS_W+128*1024}")
    for b in range(4): a(f"buffer_load_dwordx4 {ar(aW3+4*b,4)}, v1, {sr(WS,4)}, s{sT} offen offset:{1024*b}")
    a(f"""
s_mov_b32 s{POS+2}, {N*6}
s_mov_b32 s{POS+3}, 0x20000
s_movk_i32 s{WX+2}, 256
s_mov_b32 s{WX+3}, 0x20000
v_add_u32 v9, s{sN0}, v{vT}
v_mul_u32_u24 v9, 6, v9
v_mov_b32 v12, 0
v_mov_b32 v13, 0
v_mov_b32 v14, 0
v_mov_b32 v15, 0
buffer_load_short_d16_hi v12, v9, {sr(POS,4)}, 0 offen
buffer_load_short_d16_hi v13, v9, {sr(POS,4)}, 0 offen offset:2
buffer_load_short_d16_hi v14, v9, {sr(POS,4)}, 0 offen offset:4
v_lshlrev_b32 v10, 1, v5
""")
    for b in range(4): a(f"v_mov_b32 v{vWx+b}, 0")
    for b in range(4): a(f"buffer_load_short_d16_hi v{vWx+b}, v10, {sr(WX,4)}, 0 offen offset:{64*b}")
    a(f"""
s_mov_b32 s{sT}, {WS_W+132*1024}
buffer_load_dwordx4 v[16:19], v1, {sr(WS,4)}, s{sT} offen
""")
    TS()
    a(f"""
v_mov_b32 v20, 0
v_mov_b32 v21, 0
v_mov_b32 v22, 0
v_mov_b32 v23, 0
v_lshlrev_b32 v11, 4, v{vT}
ds_write_b128 v11, v[20:23] offset:{REC}
ds_write_b128 v11, v[20:23] offset:{REC+4096}
v_lshlrev_b32 v24, 3, v4
ds_write_b64 v24, v[20:21] offset:{CNT}
s_cmp_lg_u32 s{sInit}, 0
s_cbranch_scc1 K2_NOZ
s_mov_b32 s{sInit}, 1
v_add_u32 v25, {ZF0}, v11
""")
    for i in range(9): a(f"ds_write_b128 v25, v[20:23] offset:{4096*i}")
    a(f"""
K2_NOZ:
s_mov_b32 s{EA+3}, 0x20000
s_mov_b32 s{OUT+2}, {N*262}
s_mov_b32 s{OUT+3}, 0x20000
s_mov_b32 s{sCEA}, {32|(32768<<16)}
s_movk_i32 s{sC256}, 256
s_mov_b32 s{sNeg10}, 0xBF80
s_mov_b32 s{sNeg01}, 0xBF800000
s_mov_b32 s{sNRE}, {NRE}
v_lshrrev_b32 v26, 3, v5
v_and_b32 v27, 3, v5
v_cmp_eq_u32 vcc, v26, v27
v_lshlrev_b32 v26, 2, v5
v_and_b32 v27, 16, v26
v_mov_b32 v28, 0x3F80
v_lshlrev_b32 v28, v27, v28
v_cndmask_b32 v28, 0, v28, vcc
ds_write_b32 v26, v28 offset:{TB}
v_and_b32 v26, 7, v5
v_lshlrev_b32 v26, 2, v26
v_lshrrev_b32 v27, 3, v5
v_add_lshl_u32 v26, v26, v27, 8
v_and_b32 v27, 15, v5
v_xor_b32 v27, v6, v27
v_lshl_or_b32 v26, v27, 4, v26
v_add_u32 v{aAh}, s{sM0}, v26
""")
    for s in range(1,8): a(f"v_xor_b32 v{aAh+s}, {32*s}, v{aAh}")
    a(f"""
v_and_b32 v26, 15, v4
v_bfe_u32 v27, v4, 4, 1
v_lshlrev_b32 v28, 3, v27
v_xor_b32 v26, v26, v28
v_lshlrev_b32 v26, 4, v26
""")
    for i in range(8): a(f"v_xor_b32 v{cDma+i}, {16*i|(3072-1024*(i&3))}, v26")
    a(f"""
v_bfe_u32 v28, v4, 2, 2
v_and_b32 v29, 3, v4
v_lshlrev_b32 v29, 3, v29
v_lshl_or_b32 v29, v27, 5, v29
v_lshl_add_u32 v30, v6, 2, v28
v_lshl_add_u32 v30, v30, 6, v29
s_lshl_b32 s{sT}, s{sW}, 11
s_add_u32 s{sT}, s{sT}, {SB}
v_add_u32 v{aS}, s{sT}, v30
v_lshl_add_u32 v{cSc}, v5, 6, s{sT}
v_mov_b32 v{aSc+1}, v{cSc}
v_mov_b32 v{aSc}, v{cSc}
v_cmp_eq_u32 vcc, 0, v6
v_cmp_eq_u32 {sr(sU,2)}, 0, v28
v_lshlrev_b32 v{vInc}, 9, v6
v_cndmask_b32 v{mulL}, 0, 2, vcc
v_mul_u32_u24 v30, 264, v28
v_add3_u32 v30, v30, v29, s{sC256}
v_add_u32 v30, {AT-256}, v30
v_mov_b32 v31, {ZR}
v_cndmask_b32 v{cAW0}, v31, v30, vcc
v_add_u32 v30, {4*264}, v30
v_add_u32 v29, {WD}, v29
v_cndmask_b32 v31, v31, v29, {sr(sU,2)}
v_cndmask_b32 v{cAW1}, v31, v30, vcc
v_lshlrev_b32 v30, 2, v5
v_add_u32 v{cPT}, {PT}, v30
v_mul_u32_u24 v31, 272, v6
v_add_u32 v31, {MT}, v31
v_add_u32 v{cMT}, v31, v30
v_lshlrev_b32 v30, 2, v6
v_sub_u32 v30, v5, v30
v_subrev_u32 v31, 16, v30
""")
    for f in range(2):
        e=30+f
        a(f"""v_and_b32 v34, -12, v{e}
v_cmp_eq_u32 vcc, 0, v34
v_and_b32 v34, 3, v{e}
v_bfe_u32 v35, v{e}, 3, 1
v_lshl_or_b32 v34, v35, 2, v34
v_lshlrev_b32 v34, 4, v34
v_add_u32 v34, {TB}, v34
v_mov_b32 v35, {ZR}
v_cndmask_b32 v{32+f}, v35, v34, vcc""")
    a(f"""
v_mul_u32_u24 v34, 264, v7
v_lshl_add_u32 v34, v6, 3, v34
v_add_u32 v34, {AT}, v34
v_cmp_gt_u32 vcc, {NB}, v7
v_mov_b32 v35, {TRASH}
s_lshl_b32 s{sT}, s{sW}, 2
v_cndmask_b32 v34, v35, v34, vcc
v_mov_b32 v35, s{sT}
""")
    TS()
    a(f"""
s_waitcnt vmcnt(36)
""")
    TS()
    a(f"""
v_lshrrev_b32 v36, 16, v2
v_lshrrev_b32 v37, 16, v3
v_add_u32 v38, v36, v37
v_mov_b32 v39, v38
""")
    scan(a,[39])
    a(f"""
s_mov_b32 exec_lo, 0
s_brev_b32 exec_hi, 1
ds_write_b32 v35, v39 offset:{SC}
s_mov_b64 exec, -1
v_mov_b32 v40, 0
s_waitcnt lgkmcnt(0)
s_barrier
ds_read_b128 v[44:47], v40 offset:{SC}
ds_read_b128 {ar(aSel,4)}, v32
ds_read_b128 {ar(aSel+4,4)}, v33
ds_read_b128 {ar(aZ,4)}, v40 offset:{ZR}
ds_read_b128 {ar(aSf,4)}, v40 offset:{ZR}
ds_read_b128 {ar(aSf+4,4)}, v40 offset:{ZR}
v_sub_u32 v39, v39, v38
v_and_b32 v2, 0xffff, v2
v_and_b32 v3, 0xffff, v3
v_lshl_add_u32 v2, v{vT}, 11, v2
v_lshl_add_u32 v3, v{vT}, 11, v3
v_add_u32 v3, 1024, v3
s_waitcnt lgkmcnt(5)
v_readfirstlane_b32 s{sU}, v44
v_readfirstlane_b32 s{sU+1}, v45
v_readfirstlane_b32 s{sU+2}, v46
v_readfirstlane_b32 s{sU+3}, v47
s_add_u32 s{sU+1}, s{sU+1}, s{sU}
s_add_u32 s{sU+2}, s{sU+2}, s{sU+1}
s_add_u32 s{sNT}, s{sU+3}, s{sU+2}
s_cmp_eq_u32 s{sW}, 1
s_cselect_b32 s{sT}, s{sU}, 0
s_cmp_eq_u32 s{sW}, 2
s_cselect_b32 s{sT}, s{sU+1}, s{sT}
s_cmp_eq_u32 s{sW}, 3
s_cselect_b32 s{sT}, s{sU+2}, s{sT}
s_sub_u32 s{sT}, s{sT}, s{sR0}
s_sub_u32 s{sM}, s{sNT}, s{sR0}
s_min_u32 s{sM}, s{sM}, s{sCap}
v_add_u32 v39, s{sT}, v39
v_add_u32 v40, v39, v36
v_add_u32 v41, v40, v37
v_sub_u32 v2, v2, v39
v_sub_u32 v3, v3, v40
v_min_i32 v41, s{sM}, v41
v_min_i32 v42, s{sM}, v40
v_max_i32 v39, 0, v39
v_max_i32 v40, 0, v40
v_lshlrev_b32 v39, 2, v39
v_lshlrev_b32 v40, 2, v40
v_lshlrev_b32 v41, 2, v41
v_lshlrev_b32 v42, 2, v42
v_cmp_lt_i32 {sr(sU,2)}, v39, v42
v_cmp_lt_i32 {sr(sU+2,2)}, v40, v41
K2_MK:
s_mov_b64 exec, {sr(sU,2)}
ds_write_b32 v39, v2 offset:{REC}
s_mov_b64 exec, {sr(sU+2,2)}
ds_write_b32 v40, v3 offset:{REC}
s_mov_b64 exec, -1
v_or_b32 v39, 0xff, v39
v_or_b32 v40, 0xff, v40
v_add_u32 v39, 1, v39
v_add_u32 v40, 1, v40
v_cmp_lt_i32 {sr(sU,2)}, v39, v42
v_cmp_lt_i32 {sr(sU+2,2)}, v40, v41
s_or_b64 vcc, {sr(sU,2)}, {sr(sU+2,2)}
s_cbranch_scc1 K2_MK
v_lshlrev_b32 v39, 2, v{vT}
s_waitcnt lgkmcnt(0)
s_barrier
""")
    TS()
    IDX=40; RC=48
    for j in range(7): a(f"ds_read_b32 v{IDX+j}, v39 offset:{REC+1024*j}")
    for j in range(7):
        a(f"s_sub_i32 s{sT}, s{sM}, {256*j}\nv_cmp_gt_i32 {sr(sMask+2*j,2)}, s{sT}, v{vT}")
    a(f"s_mov_b32 s{sT}, {WS_REC}\ns_waitcnt lgkmcnt(0)")
    scan(a,[IDX+j for j in range(7)],"max")
    for j in range(7):
        if j: a(f"v_add_u32 v39, {256*j}, v{vT}\nv_add_lshl_u32 v{IDX+j}, v{IDX+j}, v39, 2")
        else: a(f"v_add_lshl_u32 v{IDX}, v{IDX}, v{vT}, 2")
        a(f"buffer_load_dword v{RC+j}, v{IDX+j}, {sr(WS,4)}, s{sT} offen")
    TS()
    a(f"""
v_cmp_gt_u32 vcc, {NB}, v{vT}
v_cmp_gt_u32 {sr(sU,2)}, 16, v{vT}
s_mov_b32 s{sT}, 0xbf317218
v_add_u32 v35, {STG}, v1
s_waitcnt vmcnt(7)
s_mov_b64 exec, vcc
ds_write_b128 v11, v[12:15] offset:{PD}
s_mov_b64 exec, {sr(sU,2)}
ds_write_b128 v11, v[16:19] offset:{WD}
s_mov_b64 exec, -1
""")
    for b in range(4): a(f"v_mul_f32 v{vWx+b}, s{sT}, v{vWx+b}")
    a("s_waitcnt lgkmcnt(0)\ns_barrier")
    TS()
    order=[(s,b) for bp in (0,2) for s in range(8) for b in (bp,bp+1)]
    woff=lambda f,x: (f>>3)*16384+(f&7)*1024+x
    q=[]
    def dsi(l,tag): a(l); q.append(tag)
    def dsw(tag):
        n=len(q)-1-q.index(tag); a(f"s_waitcnt lgkmcnt({min(n,15)})")
    rd1=lambda i: dsi(f"ds_read_b128 {vr(128+4*(i&15),4)}, v35 offset:{woff(4*order[i][0]+order[i][1],8192)}",("w1",i))
    for i in range(4): rd1(i)
    wr=[]
    def atw(b):
        L=[]
        for qq in range(4):
            t=56+2*(qq&1)
            L+=[f"v_cvt_pk_bf16_f32 v{t}, v{64+16*b+4*qq}, v{65+16*b+4*qq}",f"v_cvt_pk_bf16_f32 v{t+1}, v{66+16*b+4*qq}, v{67+16*b+4*qq}",
                f"ds_write_b64 v34, {vr(t,2)} offset:{64*b+16*qq}"]
        return L
    pend=atw(0)+atw(1)
    for i,(s,b) in enumerate(order):
        dsw(("w1",i))
        a(mf(64+16*b, vr(128+4*(i&15),4), ar(aHL+4*s,4), "0" if s==0 else None))
        if i+4<32: rd1(i+4)
        dsi(f"ds_read_b128 {ar(aW2+4*i,4)}, v35 offset:{woff(i,0)}",("w2",i))
        if i>=20:
            for _ in range(3):
                if pend:
                    l=pend.pop(0)
                    if l.startswith("ds_"): dsi(l,("w",l))
                    else: a(l)
    assert not pend
    ND=12; RK=20; WP=128
    a("v_mov_b32 v27, 1\ns_waitcnt vmcnt(0)")
    for j in range(7): a(f"v_lshrrev_b32 v{ND+j}, 13, v{RC+j}\nv_and_b32 v{ND+j}, 0x1fc, v{ND+j}")
    for j in range(7): a(f"s_mov_b64 exec, {sr(sMask+2*j,2)}\nds_add_rtn_u32 v{RK+j}, v{ND+j}, v27 offset:{CNT}")
    a("s_mov_b64 exec, -1")
    for l in atw(2)+atw(3): a(l)
    for j in range(7):
        a(f"""v_lshlrev_b32 v{WP+2*j}, 17, v{ND+j}
v_lshlrev_b32 v{WP+2*j+1}, 4, v{IDX+j}
v_lshrrev_b32_sdwa v{WP+2*j+1}, 22, v{RC+j} dst_sel:WORD_0 dst_unused:UNUSED_PRESERVE src0_sel:DWORD src1_sel:DWORD
v_and_b32 v{144+j}, 0x7fff, v{RC+j}""")
    a(f"""
v_lshlrev_b32 v28, 3, v4
v_mov_b32 v30, 0
v_mov_b32 v31, 1.0
s_waitcnt lgkmcnt(0)
s_barrier
""")
    TS()
    a(f"""
ds_read_b64 v[36:37], v28 offset:{CNT}
v_add_u32 v29, {BASE}, v28
s_waitcnt lgkmcnt(0)
v_add_u32 v38, v36, v37
v_mov_b32 v39, v38
""")
    scan(a,[39])
    a(f"""
v_sub_u32 v56, v39, v38
v_add_u32 v56, {NB}, v56
v_add_u32 v57, v56, v36
ds_write_b64 v28, v[56:57] offset:{BASE}
v_readlane_b32 s{sNP}, v39, 63
ds_read2_b32 v[58:59], v29 offset0:7 offset1:8
""")
    for j in range(7): a(f"ds_read_b32 v{IDX+j}, v{ND+j} offset:{BASE}")
    a(f"""
s_cmp_eq_u32 s{sNP}, 0
s_cbranch_scc1 K2_K0
s_add_u32 s{sT}, s{sNP}, {NB}
s_waitcnt lgkmcnt(7)
v_sub_u32 v60, v58, v56
v_sub_u32 v61, v59, v57
v_cmp_gt_u32 {sr(sU,2)}, 31, v60
v_cmp_gt_u32 {sr(sU+2,2)}, s{sT}, v58
v_cmp_gt_u32 {sr(sU+4,2)}, 31, v61
v_cmp_gt_u32 vcc, s{sT}, v59
s_and_b64 {sr(sU,2)}, {sr(sU,2)}, {sr(sU+2,2)}
s_and_b64 vcc, vcc, {sr(sU+4,2)}
s_or_b64 vcc, vcc, {sr(sU,2)}
s_and_b32 vcc_hi, vcc_hi, 0x1ffff
s_cmp_lg_u64 vcc, 0
s_cbranch_scc1 K2_PAD
K2_PADRET:
v_cmp_lt_u32 vcc, 0, v38
s_add_u32 s{sU+4}, s{sNP}, 31
s_lshr_b32 s{sU+4}, s{sU+4}, 5
s_flbit_i32_b64 s{sT}, vcc
s_sub_u32 s{sT}, 63, s{sT}
v_readlane_b32 s{sT+1}, v37, s{sT}
s_lshl_b32 s{sT+2}, s{sU+4}, 5
s_sub_u32 s{sT+2}, s{sT+2}, s{sNP}
s_cmp_lg_u32 s{sT+1}, 0
s_addc_u32 s{sT}, s{sT}, s{sT}
v_cmp_gt_u32 vcc, s{sT+2}, v4
s_lshl_b32 s{sT+1}, s{sT}, 19
s_add_u32 s{sT}, s{sT}, s{sN0}
s_add_u32 s{sT+2}, s{sNP}, {NB}
v_mov_b32 v60, 0
v_mov_b32 v61, 0
v_mov_b32 v62, s{sT+1}
v_mov_b32 v63, 0
v_mov_b32 v58, s{sT}
v_add_lshl_u32 v56, v4, s{sT+2}, 4
v_add_lshl_u32 v57, v4, s{sT+2}, 1
s_mov_b64 exec, vcc
ds_write_b128 v56, v[60:63]
ds_write_b16 v57, v58 offset:{SRC-2*NB}
s_mov_b64 exec, -1
s_waitcnt lgkmcnt(2)
""")
    for j in range(7):
        a(f"v_add_lshl_u32 v{ND+j}, v{IDX+j}, v{RK+j}, 4\nv_add_lshl_u32 v{IDX+j}, v{IDX+j}, v{RK+j}, 1")
    for j in range(7):
        a(f"""s_mov_b64 exec, {sr(sMask+2*j,2)}
ds_write2_b64 v{ND+j}, v[30:31], {vr(WP+2*j,2)} offset0:0 offset1:1
ds_write_b16 v{IDX+j}, v{144+j} offset:{SRC-2*NB}""")
    a(f"""
s_mov_b64 exec, -1
s_lshr_b32 s{sT}, s{sU+4}, 2
s_and_b32 s{sT+1}, s{sU+4}, 3
s_mul_i32 s{sT+2}, s{sT}, s{sW}
s_min_u32 s{sT+3}, s{sW}, s{sT+1}
s_add_u32 s{sT+2}, s{sT+2}, s{sT+3}
s_cmp_lt_u32 s{sW}, s{sT+1}
s_addc_u32 s{sK}, s{sT}, 0
s_lshl_b32 s{sT}, s{sT+2}, 9
s_add_u32 s{sT}, s{sT}, {REC}
s_lshl_b32 s{sT+1}, s{sT+2}, 6
s_add_u32 s{sT+1}, s{sT+1}, {SRC}
v_lshl_add_u32 v{aRec}, v5, 4, s{sT}
v_lshl_add_u32 v{aPB}, v4, 4, s{sT}
v_lshl_add_u32 v{aPS}, v4, 1, s{sT+1}
v_and_b32 v2, 48, v4
v_add_u32 v{aSrc}, s{sT+1}, v2
v_mul_u32_u24 v2, 496, v6
v_lshl_add_u32 v2, v5, 9, v2
v_add_u32 v2, s{sT}, v2
v_cmp_eq_u32 vcc, 0, v6
v_mov_b32 v3, {TB}
s_sub_u32 s{sKm1}, s{sK}, 1
v_cndmask_b32 v{vX}, v{aRec}, v3, vcc
s_sub_u32 s{sKe}, s{sK}, 2
s_sub_u32 s{sKh}, s{sK}, 3
s_cmp_eq_u32 s{sK}, 0
s_waitcnt lgkmcnt(0)
s_barrier
s_cbranch_scc1 K2_K0
""")
    TS()
    dump("sort")
    a(f"""
ds_read_u16 v8, v{aPS}
ds_read_b128 v[12:15], v{aSrc}
ds_read_b32 v9, v{aRec} offset:12
ds_read_b128 v[16:19], v{aSrc} offset:64
ds_read_u16 v{vS16}, v{aPS} offset:128
ds_read_u16 v10, v{aPB} offset:10
ds_read_u16 v{vN8}, v{aPB} offset:{1024+10}
ds_read_u16 v{vFL}, v2 offset:10
ds_read_b128 {vr(vSrc,4)}, v{aSrc} offset:128
ds_read_b32 v{vEid}, v{aRec} offset:{512+12}
s_mov_b32 s{EA+2}, s{sNRE}
s_mov_b32 m0, s{sM0}
s_waitcnt lgkmcnt(9)
v_mul_u32_u24 v20, 6, v8
v_and_b32 v20, -4, v20
buffer_load_dwordx2 v[22:23], v20, {sr(POS,4)}, 0 offen
s_waitcnt lgkmcnt(7)
v_dot2_u32_u16 v{vEA}, v9, s{sCEA}, v{vH16}
""")
    for i in range(8):
        d=dma(i,12,vDA+(i&1))
        if i==4: a(f"s_mov_b32 m0, s{sM0+1}")
        a(d[0]); a(d[1])
    a(f"""buffer_load_dwordx4 {ar(aE,4)}, v{vEA}, {sr(EA,4)}, 0 offen
s_cmp_gt_u32 s{sK}, 1
s_cselect_b32 s{H+2}, s{sNRH}, 0
s_mov_b32 m0, s{sM0+2}
s_waitcnt lgkmcnt(3)""")
    for i in range(8):
        d=dma(i,16,vDA+(i&1))
        if i==4: a(f"s_mov_b32 m0, s{sM0+3}")
        a(d[0]); a(d[1])
    a(f"""
v_mul_u32_u24 v20, 6, v{vS16}
v_and_b32 v20, -4, v20
buffer_load_dwordx2 {vr(vPs,2)}, v20, {sr(POS,4)}, 0 offen
v_lshlrev_b32 v10, 1, v10
v_lshlrev_b32 v11, 1, v{vN8}
ds_read_b96 v[24:26], v10 offset:{PD}
ds_read_b96 {vr(vPd,3)}, v11 offset:{PD}
v_cmp_gt_u32 vcc, s{sK}, v5
v_mov_b32 v3, 0xffff
s_mov_b32 s{sk}, -1
s_mov_b32 s{sTF}, -2
s_mov_b32 s{sNb}, 0
""")
    Z=ar(aZ,4)
    for d in (D2,D2+16,D2+32,D2+48,T_,T_+16,DY,DY+16): a(mf(d,Z,Z,"0"))
    a(f"s_waitcnt vmcnt(18) lgkmcnt(0)\nv_cndmask_b32 v{vFL}, v3, v{vFL}, vcc")
    B=phaseB(22,24,8,aPB,0,tb=vB)
    for l in B[:6]: a(l)
    a("s_nop 1")
    for l in B[6:]: a(l)
    a(f"ds_read_b128 {vr(vRec,4)}, v{aRec}\ns_waitcnt vmcnt(10)")
    for s in range(8): a(f"ds_read_b128 {ar(aH+4*s,4)}, v{aAh+s}")
    TS()
    if "nomem" in opt: a(f"s_mov_b32 s{sNRH}, 0\ns_mov_b32 s{sNRE}, 0")
    if "noea" in opt: a(f"s_mov_b32 s{sNRE}, 0")
    if "noh" in opt: a(f"s_mov_b32 s{sNRH}, 0")
    a("s_waitcnt lgkmcnt(0)\ns_branch K2_NEWWIN")
    A0,A1,B0,B1=slotA(0),slotA(1),slotB(0),slotB(1)
    bnd=f"s_cmp_ge_i32 s{sk}, s{sEv}\ns_waitcnt lgkmcnt(0)\ns_cbranch_scc1 K2_H"
    a("K2_LOOP:"); a.extend(A0); a(bnd); a("K2_B0:"); a.extend(B0)
    a.extend(A1); a(bnd); a("K2_B1:"); a.extend(B1); a("s_branch K2_LOOP")
    check(B1+A0,"wrap")
    a(f"""
K2_H:
s_cmp_lg_u32 s{sk}, s{sTF}
s_cbranch_scc1 K2_NOFL
s_mul_i32 s{sT}, s{sNbF}, 34
s_lshl_b32 s{sT+1}, s{sNbF}, 1
v_add_u32 v{vOH}, s{sT}, v{cMT}
v_add_u32 v{vEA}, s{sT+1}, v{cPT}
""")
    for b in range(4):
        wxp=vr(vWx+(b&2),2); o=b&1
        for j in range(8):
            if b==0: a(f"v_pk_mul_f32 {vr(FT+2*j,2)}, {vr(D2+2*j,2)}, {wxp} op_sel:[0,{o}] op_sel_hi:[1,{o}]")
            else: a(f"v_pk_fma_f32 {vr(FT+2*j,2)}, {vr(D2+16*b+2*j,2)}, {wxp}, {vr(FT+2*j,2)} op_sel:[0,{o},0] op_sel_hi:[1,{o},1]")
    for j in range(8): a(f"v_cvt_pk_bf16_f32 v{P_+j}, v{FT+2*j}, v{FT+2*j+1}")
    mc=[]
    for pb in range(2):
        for qq in range(4):
            mc.append((f"v_cvt_pk_bf16_f32 v{P_+8+4*pb+qq}, v{D2+32*pb+4*qq+3}, v{D2+32*pb+16+4*qq+3}",
                       f"ds_pk_add_bf16 v{vOH}, v{P_+8+4*pb+qq} offset:{544*qq+128*pb}"))
    a(mc[0][0]); a(mc[1][0])
    a(mf(FT,vr(P_,4),ar(aSel,4),"0"))
    a(mc[0][1]); a(mc[1][1]); a(mc[2][0]); a(mc[3][0]); a(mc[2][1]); a(mc[3][1])
    a(mf(FT,vr(P_+4,4),ar(aSel+4,4)))
    a(mc[4][0]); a(mc[5][0]); a(mc[6][0]); a(mc[7][0]); a(mc[4][1]); a(mc[5][1])
    a(mf(D2,Z,Z,"0"))
    a(mc[6][1]); a(mc[7][1]); a("s_nop 3")
    a(mf(D2+16,Z,Z,"0"))
    ad=[f"v_add_f32 v{FT+i}, v{FT+i}, v{FT+i+w}" for w in (8,4,2,1) for i in range(w)]
    for l in ad[:6]: a(l)
    a(mf(D2+32,Z,Z,"0"))
    for l in ad[6:12]: a(l)
    a(mf(D2+48,Z,Z,"0"))
    for l in ad[12:]: a(l)
    a(f"""
ds_add_f32 v{vEA}, v{FT}
s_cmp_eq_u32 s{sk}, s{sK}
s_cbranch_scc1 K2_REND
K2_NOFL:
s_cmp_eq_u32 s{sk}, s{sKm1}
s_cbranch_scc1 K2_TAIL
s_mov_b32 s{sEv}, s{sTW}
s_cmp_lg_u32 s{sk}, s{sTW}
s_cbranch_scc1 K2_RET
s_add_u32 s{sTF}, s{sk}, 1
s_mov_b32 s{sNbF}, s{sNb}
K2_NEWWIN:
s_add_u32 s{sT}, s{sk}, 1
v_readlane_b32 s{sT}, v{vFL}, s{sT}
s_min_u32 s{sT}, s{sT}, {90*8}
s_add_u32 s{sT+1}, s{sT}, 56
s_mul_i32 s{sT+2}, s{sT}, 33
v_cmp_lt_u32 vcc, s{sT+1}, v{vFL}
s_lshr_b32 s{sT+2}, s{sT+2}, 1
v_mad_u32_u24 v{vOH}, v{mulL}, s{sT+2}, v{cAW0}
v_mad_u32_u24 v{vEA}, v{mulL}, s{sT+2}, v{cAW1}
s_sub_i32 s{sT+3}, s{sNb}, s{sT}
s_mov_b32 s{sNb}, s{sT}
""")
    for b in range(4):
        a(f"ds_read_b64_tr_b16 {ar(aAW+4*b,2)}, v{vOH} offset:{64*b}\nds_read_b64_tr_b16 {ar(aAW+4*b+2,2)}, v{vEA} offset:{64*b}")
    a(f"""
v_mad_i32_i24 v{vX}, v{mulL}, s{sT+3}, v{vX}
v_add_u32 v{cSc}, s{sT+3}, v{cSc}
s_ff1_i32_b32 s{sTW}, vcc_hi
s_sub_u32 s{sTW}, s{sTW}, 1
s_cmp_gt_i32 s{sTF}, s{sk}
s_cselect_b32 s{sEv}, s{sTF}, s{sTW}
K2_RET:
s_bitcmp1_b32 s{sk}, 0
s_cbranch_scc1 K2_B1
s_branch K2_B0
K2_TAIL:
""")
    whdma()
    cvt,ex,ad,rc,mu=spine(DY)
    for l in cvt: a(l)
    sg=[seg(0,0,0),seg(0,0,1),seg(0,1,0),seg(0,1,1)]
    for i,l in enumerate(ex):
        if i%4==1 and sg: a(sg.pop(0))
        a(l)
    for l in ad+rc+mu+cvt: a(l)
    a(f"s_mov_b32 s{sk}, s{sK}\ns_mov_b32 s{sTF}, s{sK}")
    for l in [seg(2,0,0),seg(2,0,1),seg(2,1,0),seg(2,1,1)]: a(l)
    a(f"""
ds_write_b64 v{aSc}, {ar(aZ,2)}
ds_write_b64 v{aSc+1}, {ar(aZ,2)}
s_mov_b32 s{sNbF}, s{sNb}
s_nop 7
s_branch K2_H
K2_PAD:
s_waitcnt lgkmcnt(0)
s_barrier
v_cmp_gt_u32 vcc, 49, v4
v_add_u32 v60, 3, v36
v_add_u32 v61, 3, v37
v_and_b32 v60, -4, v60
v_and_b32 v61, -4, v61
v_max_u32 v60, 4, v60
v_max_u32 v61, 4, v61
v_cndmask_b32 v60, 0, v60, vcc
v_cndmask_b32 v61, 0, v61, vcc
v_add_u32 v38, v60, v61
v_mov_b32 v39, v38
""")
    scan(a,[39])
    a(f"""
v_sub_u32 v56, v39, v38
v_add_u32 v56, {NB}, v56
v_add_u32 v57, v56, v60
v_readlane_b32 s{sNP}, v39, 63
ds_write_b64 v28, v[56:57] offset:{BASE}
s_cmp_le_u32 s{sNP}, {CAP}
s_cbranch_scc1 K2_PAD2
s_movk_i32 s{sCap}, {CAP-4*NB}
s_waitcnt lgkmcnt(0)
s_barrier
s_branch K2_ROUND
K2_PAD2:
""")
    for j in range(7): a(f"ds_read_b32 v{IDX+j}, v{ND+j} offset:{BASE}")
    a(f"""
v_mov_b32 v152, 0
v_mov_b32 v153, 0
v_mov_b32 v155, 0
""")
    for u in range(2):
        a(f"""v_add_u32 v36, s{sW}, v{36+u}
v_cmp_lt_u32 vcc, v36, v{60+u}
v_lshl_or_b32 v58, v4, 1, {u}
v_lshlrev_b32 v154, 19, v58
v_add_u32 v58, s{sN0}, v58
v_add_lshl_u32 v59, v36, v{56+u}, 4
v_add_lshl_u32 v36, v36, v{56+u}, 1
s_mov_b64 exec, vcc
ds_write_b128 v59, v[152:155]
ds_write_b16 v36, v58 offset:{SRC-2*NB}
s_mov_b64 exec, -1""")
    a(f"""
v_mov_b32 v37, v61
s_waitcnt lgkmcnt(0)
s_branch K2_PADRET
K2_K0:
""")
    whdma()
    a(f"""
K2_REND:
s_add_u32 s{sR0}, s{sR0}, s{sM}
s_movk_i32 s{sCap}, {CAP}
s_cmp_lt_u32 s{sR0}, s{sNT}
s_waitcnt vmcnt(0) lgkmcnt(0)
s_barrier
s_cbranch_scc1 K2_ROUND
""")
    TS()
    dump("end")
    MFR=64; HF=128; TT=96; OS=112
    a(f"""
v_and_b32 v192, 63, v{vT}
v_and_b32 v193, 31, v192
v_lshl_add_u32 v193, s{sW}, 5, v193
v_mul_u32_u24 v194, 272, v193
v_add_u32 v194, v{vH16}, v194
v_lshlrev_b32 v195, 4, v192
v_add_u32 v195, {STG}, v195
""")
    q=[]
    eo=[(s,b,0) for b in range(4) for s in range(8)]
    eord=[]
    for b in range(4):
        eord+=[(s,b,0) for s in range(8)]+[(s,b,1) for s in range(8)]
    fo=lambda i: (lambda s,b,g: (32*g+4*s+b))(*eord[i])
    rdw=lambda i: dsi(f"ds_read_b128 {ar(4*(i&31),4)}, v195 offset:{(fo(i)>>4)*16384+(fo(i)&15)*1024}",("w",i))
    for i in range(4): rdw(i)
    for s in range(8): dsi(f"ds_read_b128 {vr(MFR+4*s,4)}, v194 offset:{MT+32*s}",("m",s))
    side=[]
    side+=[f"v_lshlrev_b32 v196, 4, v{vT}",("ds",f"ds_read_b96 v[200:202], v196 offset:{PD}","pd"),f"v_add_u32 v203, {PT}, v196",("ds",f"ds_read_b96 v[204:206], v203","pt"),
           f"v_add_u32 v197, s{sN0}, v{vT}",f"v_mul_u32_u24 v197, 6, v197",f"v_add_u32 v197, {N*256}, v197",
           f"v_cmp_gt_u32 vcc, s{sNN}, v{vT}",f"v_bfrev_b32 v198, 2",f"s_mov_b32 s{sT}, 0xffff0000",f"v_cndmask_b32 v197, v198, v197, vcc",
           f"v_add_u32 v199, s{sN0}, v193",f"v_lshl_add_u32 v199, v199, 8, v{vH16}",f"v_cmp_gt_u32 vcc, s{sNN}, v193",
           f"s_mov_b32 s{sT+2}, {K1.LOG2E}",f"s_mov_b32 s{sT+3}, {K1.LOG2E}",f"v_cndmask_b32 v199, v198, v199, vcc",
           ("wait","pt"),
           "v_add_f32 v200, v200, v204","v_add_f32 v201, v201, v205","v_add_f32 v202, v202, v206",
           "v_cvt_pk_bf16_f32 v200, v200, v201","v_cvt_pk_bf16_f32 v202, v202, v202",
           f"buffer_store_short v200, v197, {sr(OUT,4)}, 0 offen",f"buffer_store_short_d16_hi v200, v197, {sr(OUT,4)}, 0 offen offset:2",
           f"buffer_store_short v202, v197, {sr(OUT,4)}, 0 offen offset:4"]
    def unp(b):
        L=[]
        for x in range(8):
            L+=[f"v_accvgpr_read_b32 v{HF+16*b+2*x+1}, a{aHL+8*b+x}",f"v_lshlrev_b32 v{HF+16*b+2*x}, 16, v{HF+16*b+2*x+1}",
                f"v_and_b32 v{HF+16*b+2*x+1}, s{sT}, v{HF+16*b+2*x+1}"]
        return L
    def silu(b):
        D=16*b; c=sr(sT+2,2)
        e1=[f"v_exp_f32 v{TT+i}, v{D+i}" for i in range(16)]
        p1=[f"v_pk_fma_f32 {vr(TT+2*j,2)}, {vr(TT+2*j,2)}, {c}, {c}" for j in range(8)]
        r1=[f"v_rcp_f32 v{TT+i}, v{TT+i}" for i in range(16)]
        p2=[f"v_pk_fma_f32 {vr(TT+2*j,2)}, {vr(D+2*j,2)}, {vr(TT+2*j,2)}, {vr(HF+D+2*j,2)}" for j in range(8)]
        cv=[f"v_cvt_pk_bf16_f32 v{OS+8*(b&1)+j}, v{TT+2*j}, v{TT+2*j+1}" for j in range(8)]
        st=[f"buffer_store_dwordx4 {vr(OS+8*(b&1)+4*x,4)}, v199, {sr(OUT,4)}, 0 offen offset:{64*b+32*x}" for x in range(2)]
        return e1+p1+r1+p2+cv+st
    side+=unp(0)+unp(1)
    def doside(n):
        g=0
        while side and g<n:
            l=side.pop(0)
            if isinstance(l,tuple):
                if l[0]=="ds": dsi(l[1],l[2])
                elif l[0]=="wait": dsw(l[1])
                g+=4
            else: a(l); g+=cost(l)
    for i,(s,b,g) in enumerate(eord):
        dsw(("w",i))
        if g==1 and b==0: dsw(("m",s))
        a(mf(16*b, ar(4*(i&31),4), ar(aHL+4*s,4) if g==0 else vr(MFR+4*s,4), "0" if (s==0 and g==0) else None))
        if i+4<64: rdw(i+4)
        if i%16==2 and b>0:
            doside(10**6)
            side+=(unp(b+1) if b<3 else [])[:0]
        if i%16==4 and b>0: side+=silu(b-1)+(unp(b+1) if b<3 else [])
        doside(24)
    doside(10**6)
    a("s_nop 7\ns_nop 3")
    for l in silu(3): a(l)
    if ts:
        TS()
        a(f"s_mov_b32 s{WS+2}, 0x8000000\ns_lshl_b32 s{sT}, s2, 2\ns_add_u32 s{sT}, s{sT}, s{sW}\ns_lshl_b32 s{sT}, s{sT}, 6\ns_add_u32 s{sT}, s{sT}, 0x300000\nv_mov_b32 v1, 0")
        for i in range(tsn[0]): a(f"v_mov_b32 v2, s{sTS+i}\nbuffer_store_dword v2, v1, {sr(WS,4)}, s{sT} offen offset:{4*i}")
        a(f"v_mov_b32 v2, s{sK}\nbuffer_store_dword v2, v1, {sr(WS,4)}, s{sT} offen offset:60")
    a("K2_END:")
    check(a.L,"k2")
    return kernel("k2_kernel", a, 512, acc=256)
if __name__=="__main__":
    t=k2(); print(len(t.split("\n")))
    for nm,s in (("A0",slotA(0)),("A1",slotA(1)),("B0",slotB(0)),("B1",slotB(1))):
        print(nm,len(s),sum(cost(l) for l in s))
```

```python
import sys
sys.path.insert(0,"gen")
import k1, k2
def full(**kw):
    hdr=f"; @launch kernel=k1_kernel grid=({k1.G1},1,1) block=(256,1,1) lds={k1.K1_LDS}\n; @launch kernel=k2_kernel grid=(256,1,1) block=(256,1,1) lds={k2.LDS}\n"
    return hdr+'.amdgcn_target "amdgcn-amd-amdhsa--gfx950"\n'+k1.k1()+k2.k2(**kw)
if __name__=="__main__":
    out=sys.argv[1] if len(sys.argv)>1 else "gather_scatter__cheap_equivariant_egnn__graph.s"
    open(out,"w").write(full())
```

```python
from asmlib import *
import k1 as K1
N=25000; E=400000; NB=98; CAP=1792
WS_W,WS_REC,WS_OFF,WS_END=K1.WS_W,K1.WS_REC,K1.WS_OFF,K1.WS_END
PD=0; REC=1568; CNT=REC+CAP*16; BASE=CNT+512; SC=BASE+576; TRASH=SC+32
SRC=REC+(CAP+96)*16; TB=SRC+CAP*2; WD=TB+128; AT=WD+256; ZR=AT+98*264; SB=ZR+256; MT=SB+8192; FX=MT+101*272; LEND=FX+16
STG=98304; LDS=163840; ZF0=LEND-9*4096
assert LEND<=STG and TRASH+272<=SRC and ZF0%16==0 and MT%16==0 and ZF0<=ZR and REC==98*16
H=4; EA=8; POS=12; WS=16; OUT=20; WX=24
sN0=28; sNN=29; sW=30; sR0=31; sNT=32; sM=33; sCap=34; sNP=35; sK=36; sk=37; sEv=38; sTF=39; sTW=40
sNb=41; sNbF=42; sKm1=43; sKh=44; sKe=45; sM0=46; sCEA=50; sC256=51; sNeg10=52; sNeg01=53; sNRH=54; sNRE=55
sT=56
sMask=60
sFM=60; sFP=62; sXM=64; sOne10=65; sOne01=66
sInit=74; sB=75; sU=76
sTS=84
NRH=N*256+3072; NRE=E*32
DX=0; DY=32; D2=64; T_=128; P_=160; FT=176
aAh=192; cDma=200; vSrc=208; vRec=212; vPd=216; vEid=219; vPs=220; vDA=222; vWx=224
aRec=228; aSrc=229; aS=230; cSc=231; aSc=232; vOH=234; mulL=235; vX=236; vInc=237; vH16=238; aPB=239; aPS=240
vS16=241; vN8=242; cAW0=243; cAW1=244; cMT=245; cPT=246; vFL=247; vB=248; vT=254; vEA=255
aW2=0; aW3=128; aAW=144; aH=160; aHL=192; aE=224; aOH=232; aSf=236; aZ=244; aSel=248
MF="v_mfma_f32_32x32x16_bf16"
def mf(d,A,B,c=None,dk="v"):
    return f"{MF} {vr(d,16,dk)}, {A}, {B}, {vr(d,16,dk) if c is None else c}"
def scan(a,regs,op="add"):
    ins={"add":"v_add_u32_dpp","max":"v_max_u32_dpp"}[op]
    steps=["row_shr:1 row_mask:0xf bank_mask:0xf bound_ctrl:0","row_shr:2 row_mask:0xf bank_mask:0xf bound_ctrl:0",
           "row_shr:4 row_mask:0xf bank_mask:0xf bound_ctrl:0","row_shr:8 row_mask:0xf bank_mask:0xf bound_ctrl:0",
           "row_bcast:15 row_mask:0xa bank_mask:0xf","row_bcast:31 row_mask:0xc bank_mask:0xf"]
    for s in steps:
        if len(regs)<3: a(f"s_nop {2-len(regs)}")
        for r in regs: a(f"{ins} v{r}, v{r}, v{r} {s}")

def cost(l):
    op=l.split()[0]
    if op.startswith(TRANS): return 8
    if op.startswith("v_mfma"): return 8
    return 4
def sched(ph1,mid,ph2,end,mfs,n1):
    out=[]
    def phase(ops,ms):
        ops=list(ops)
        tot=sum(cost(o) for o in ops)+sum(sum(cost(x) for x in m[1])+sum(cost(x) for x in m[2]) for m in ms)-sum(cost(x) for x in ms[0][2])
        n=len(ms); done=0
        for i,(m,post,pre) in enumerate(ms):
            out.extend(pre); out.append(m); out.extend(post)
            g=sum(cost(x) for x in post)
            if i+1<n: g+=sum(cost(x) for x in ms[i+1][2])
            tgt=(tot-done)/(n-i)
            while ops and (i+1==n or g<24 or g+cost(ops[0])/2<=tgt):
                o=ops.pop(0); out.append(o); g+=cost(o)
            done+=g
        assert not ops
    phase(ph1,mfs[:n1]); out.extend(mid); phase(ph2,mfs[n1:]); out.extend(end)
    return out
def spine(D):
    cvt=[f"v_cvt_pk_bf16_f32 v{P_+j}, v{T_+2*j}, v{T_+2*j+1}" for j in range(16)]
    ex=[f"v_exp_f32 v{T_+i}, v{D+i}" for i in range(32)]
    ad=[f"v_pk_add_f32 {vr(T_+2*j,2)}, {vr(T_+2*j,2)}, 1.0 op_sel_hi:[1,0]" for j in range(16)]
    rc=[f"v_rcp_f32 v{T_+i}, v{T_+i}" for i in range(32)]
    mu=[f"v_pk_mul_f32 {vr(T_+2*j,2)}, {vr(D+2*j,2)}, {vr(T_+2*j,2)}" for j in range(16)]
    return cvt,ex,ad,rc,mu
def mainmf(D,b0,epar):
    W=lambda s,i: mf(D+16*i, ar(aH+4*s,4), ar(aW2+4*(4*s+b0+i),4), "0" if s==0 else None)
    Ee=lambda i: mf(D+16*i, ar(aE+4*epar,4), ar(aW3+4*(b0+i),4))
    O=lambda i: mf(D+16*i, ar(aOH,4), ar(aAW+4*(b0+i),4))
    return W,Ee,O
def seg(b0,s,i): return mf(D2+16*(b0+i), ar(aSf+4*s,4), vr(P_+8*i+4*s,4))
def phaseB(ps,pd,s16,addr,off,tb=vB):
    return [f"v_lshlrev_b32 v{tb}, 4, v{s16}",
      f"v_alignbit_b32 v{tb+1}, v{ps+1}, v{ps}, v{tb}",
      f"v_lshrrev_b32 v{tb+2}, v{tb}, v{ps+1}",
      f"v_dot2_f32_bf16 v{tb+3}, v{tb+1}, s{sNeg10}, v{pd}",
      f"v_dot2_f32_bf16 v{tb+4}, v{tb+1}, s{sNeg01}, v{pd+1}",
      f"v_dot2_f32_bf16 v{tb+5}, v{tb+2}, s{sNeg10}, v{pd+2}",
      f"v_mul_f32 v{tb}, v{tb+3}, v{tb+3}",
      f"v_cvt_pk_bf16_f32 v{tb+1}, v{tb+3}, v{tb+4}",
      f"v_fmac_f32 v{tb}, v{tb+4}, v{tb+4}",
      f"v_fmac_f32 v{tb}, v{tb+5}, v{tb+5}",
      f"v_cvt_pk_bf16_f32 v{tb+2}, v{tb+5}, v{tb}",
      f"ds_write_b32 v{addr}, v{tb+1} offset:{off}",
      f"ds_write_b16 v{addr}, v{tb+2} offset:{off+4}",
      f"ds_write_b16_d16_hi v{addr}, v{tb+2} offset:{off+8}"]
def dma(i,src,da):
    return (f"v_mad_u32_u16 v{da}, v{src+(i>>1)}, s{sC256}, v{cDma+i} op_sel:[{i&1},0,0,0]",
            f"buffer_load_dwordx4 v{da}, {sr(H,4)}, 0 offen offset:{1024*(i&3)} lds")
def slotA(p):
    cvt,ex,ad,rc,mu=spine(DX)
    W,Ee,O=mainmf(DY,2,p)
    buf=8192*(1-p)
    rd=lambda s: f"ds_read_b128 {ar(aH+4*s,4)}, v{aAh+s} offset:{buf}"
    tr=lambda j: f"ds_read_b64_tr_b16 {ar(aSf+2*j,2)}, v{aS} offset:{512*j}"
    M=[W(0,0),W(0,1),W(1,0),W(1,1),W(2,0),W(2,1),seg(2,0,0),seg(2,0,1),W(3,0),W(3,1),seg(2,1,0),seg(2,1,1),
       W(4,0),W(4,1),W(5,0),W(5,1),W(6,0),W(6,1),W(7,0),W(7,1),Ee(0),Ee(1),O(0),O(1)]
    post=[[] for _ in M]; pre=[[] for _ in M]
    post[0]+=[f"ds_read_b128 {vr(vRec,4)}, v{aRec} offset:{512*(1+p)}"]
    post[1]+=["s_waitcnt vmcnt(9)",rd(0)]
    post[2]+=[f"ds_read_b32 v{vEid}, v{aRec} offset:{512*(2+p)+12}"]
    post[3]+=[rd(1)]
    post[4]+=[f"ds_read_b128 {vr(vSrc,4)}, v{aSrc} offset:{192+64*p}"]
    post[5]+=[rd(2)]
    post[7]+=[tr(0),tr(1)]
    post[9]+=[rd(3)]
    post[11]+=[tr(2),tr(3)]
    post[13]+=[rd(4)]; post[15]+=[rd(5)]; post[17]+=[rd(6)]; post[19]+=[rd(7)]
    if p==0:
        B=phaseB(vPs,vPd,vS16,aPB,1024)
        post[6]+=B[0:3]; post[8]+=B[3:6]; post[10]+=B[6:8]; post[12]+=B[8:11]
        post[14]+=B[11:12]; post[16]+=B[12:14]
        post[18]+=[f"ds_read_u16 v{vS16}, v{aPS} offset:256"]
        post[20]+=[f"ds_read_u16 v{vN8}, v{aPB} offset:{2048+10}"]
    else:
        post[6]+=[f"v_mul_u32_u24 v{vB}, 6, v{vS16}",f"v_and_b32 v{vB}, -4, v{vB}",f"v_lshlrev_b32 v{vB+1}, 1, v{vN8}"]
        post[8]+=[f"buffer_load_dwordx2 {vr(vPs,2)}, v{vB}, {sr(POS,4)}, 0 offen"]
        post[10]+=[f"ds_read_b96 {vr(vPd,3)}, v{vB+1} offset:{PD}"]
        post[12]+=[f"v_add_u32 v{aRec}, 1024, v{aRec}",f"v_add_u32 v{aSrc}, 128, v{aSrc}"]
        post[14]+=[f"v_add_u32 v{aPB}, 1024, v{aPB}",f"v_add_u32 v{aPS}, 128, v{aPS}"]
    post[21]+=[f"s_add_u32 s{sk}, s{sk}, 1"]
    return sched(cvt+ex,ad,rc,mu,list(zip(M,post,pre)),13)
def slotB(p):
    cvt,ex,ad,rc,mu=spine(DY)
    W,Ee,O=mainmf(DX,0,1-p)
    M=[W(0,0),W(0,1),W(1,0),W(1,1),W(2,0),W(2,1),seg(0,0,0),seg(0,0,1),W(3,0),W(3,1),seg(0,1,0),seg(0,1,1),
       W(4,0),W(4,1),W(5,0),W(5,1),W(6,0),W(6,1),W(7,0),W(7,1),Ee(0),Ee(1),O(0),O(1)]
    post=[[] for _ in M]; pre=[[] for _ in M]
    post[0]+=[f"ds_write_b64 v{aSc+p}, {ar(aZ,2)}",
              f"v_dot2_u32_u16 v{vEA}, v{vEid}, s{sCEA}, v{vH16}",
              f"v_mad_u32_u16 v{vOH}, v{vRec+2}, v{mulL}, v{vX} op_sel:[1,0,0,0]"]
    post[1]+=[f"ds_read_b128 {ar(aOH,4)}, v{vOH}",
              f"v_mad_u32_u16 v{aSc+1-p}, v{vRec+2}, 1, v{cSc} op_sel:[1,0,0,0]",
              f"s_cmp_lt_i32 s{sk}, s{sKe}",f"s_cselect_b32 s{EA+2}, s{sNRE}, 0"]
    post[2]+=[f"ds_write_b64 v{aSc+1-p}, {vr(vRec,2)}",
              f"s_cmp_lt_i32 s{sk}, s{sKh}",f"s_cselect_b32 s{H+2}, s{sNRH}, 0"]
    d=[dma(i,vSrc,vDA+(i&1)) for i in range(8)]
    post[3]+=[f"buffer_load_dwordx4 {ar(aE+4*p,4)}, v{vEA}, {sr(EA,4)}, 0 offen",
              f"s_mov_b32 m0, s{sM0+2*(1-p)}",d[0][0]]
    for i in range(8):
        post[4+i]+=[d[i][1]]
        if i==3: post[4+i]+=[f"s_mov_b32 m0, s{sM0+2*(1-p)+1}"]
        if i<7: post[4+i]+=[d[i+1][0]]
    post[12]+=[f"v_add_u32 v{vX}, v{vInc}, v{vX}"]
    pre[20]+=[f"s_waitcnt vmcnt({17+p}) lgkmcnt(0)"]
    return sched(cvt+ex,ad,rc,mu,list(zip(M,post,pre)),14)

def k2(dbg=None,ts=False,opt=()):
    a=Asm()
    tsn=[0]
    def TS():
        if ts:
            a(f"s_memtime {sr(sU+6,2)}\ns_waitcnt lgkmcnt(0)\ns_mov_b32 s{sTS+tsn[0]}, s{sU+6}"); tsn[0]+=1
    def dump(tag):
        if dbg!=tag: return
        a(f"""s_waitcnt vmcnt(0) lgkmcnt(0)
s_barrier
s_mul_i32 s{sT}, s2, {LDS}
s_add_u32 s{sT}, s{sT}, 0x400000
s_mov_b32 s{WS+2}, 0x8000000
v_lshlrev_b32 v1, 4, v{vT}
s_mov_b32 s{sT+1}, 0
DUMPL:
ds_read_b128 v[4:7], v1
s_waitcnt lgkmcnt(0)
buffer_store_dwordx4 v[4:7], v1, {sr(WS,4)}, s{sT} offen
v_add_u32 v1, 4096, v1
s_waitcnt vmcnt(0)
s_add_u32 s{sT+1}, s{sT+1}, 1
s_cmp_lt_u32 s{sT+1}, 40
s_cbranch_scc1 DUMPL
s_endpgm""")
    def whdma():
        a(f"v_and_b32 v{vB}, 63, v{vT}\nv_lshlrev_b32 v{vB}, 4, v{vB}\ns_lshl_b32 s{sT}, s{sW}, 14\ns_add_u32 s{sT}, s{sT}, {WS_W+65536}")
        for q in range(4):
            a(f"s_mov_b32 m0, s{sM0+q}")
            if q: a(f"s_add_u32 s{sT}, s{sT}, 4096")
            else: a("s_nop 0")
            for i in range(4): a(f"buffer_load_dwordx4 v{vB}, {sr(WS,4)}, s{sT} offen offset:{1024*i} lds")
    a(f"""
s_cmp_ge_u32 s2, 256
s_cbranch_scc1 K2_END
s_load_dwordx2 {sr(WS,2)}, s[0:1], 80
s_load_dwordx2 {sr(H,2)}, s[0:1], 0
s_load_dwordx2 {sr(POS,2)}, s[0:1], 8
s_load_dwordx2 {sr(EA,2)}, s[0:1], 16
s_load_dwordx2 {sr(WX,2)}, s[0:1], 48
s_load_dwordx2 {sr(OUT,2)}, s[0:1], 64
v_mov_b32 v{vT}, v0
v_lshrrev_b32 v1, 6, v0
s_and_b32 s{sT}, s2, 7
s_lshl_b32 s{sT}, s{sT}, 5
s_lshr_b32 s{sT+1}, s2, 3
s_add_u32 s{sB}, s{sT}, s{sT+1}
v_readfirstlane_b32 s{sW}, v1
s_mul_i32 s{sN0}, s{sB}, {NB}
s_sub_u32 s{sNN}, {N}, s{sN0}
s_min_u32 s{sNN}, s{sNN}, {NB}
s_mov_b32 s{WS+2}, {WS_END}
s_mov_b32 s{WS+3}, 0x20000
s_mov_b32 s{sNRH}, {NRH}
s_mov_b32 s{H+3}, 0x20000
s_mov_b32 s{sR0}, 0
s_movk_i32 s{sCap}, {CAP}
s_mov_b32 s{sInit}, 0
s_lshl_b32 s{sM0}, s{sW}, 14
s_add_u32 s{sM0}, s{sM0}, {STG}
s_add_u32 s{sM0+1}, s{sM0}, 4096
s_add_u32 s{sM0+2}, s{sM0}, 8192
s_add_u32 s{sM0+3}, s{sM0}, 12288
s_waitcnt lgkmcnt(0)
s_sub_u32 s{H}, s{H}, 3072
s_subb_u32 s{H+1}, s{H+1}, 0
""")
    TS()
    a(f"""
K2_ROUND:
s_lshl_b32 s{sT}, s{sB}, 2
s_add_u32 s{sT}, s{sT}, {WS_OFF}
v_lshl_add_u32 v2, v{vT}, 11, s{sT}
v_add_u32 v3, 1024, v2
buffer_load_dword v2, v2, {sr(WS,4)}, 0 offen
buffer_load_dword v3, v3, {sr(WS,4)}, 0 offen
v_and_b32 v4, 63, v{vT}
v_lshlrev_b32 v1, 4, v4
s_lshl_b32 s{sT}, s{sW}, 13
s_mov_b32 s{H+2}, s{sNRH}
""")
    for q in range(4):
        a(f"s_mov_b32 m0, s{sM0+q}")
        a(f"s_add_u32 s{sT+1}, s{sT}, {WS_W+(q&1)*4096+(q>>1)*32768}")
        for i in range(4): a(f"buffer_load_dwordx4 v1, {sr(WS,4)}, s{sT+1} offen offset:{1024*i} lds")
    a(f"""
v_and_b32 v5, 31, v4
v_lshrrev_b32 v6, 5, v4
v_lshl_add_u32 v7, s{sW}, 5, v5
v_lshlrev_b32 v{vH16}, 4, v6
v_add_u32 v8, s{sN0}, v7
v_lshl_add_u32 v8, v8, 8, v{vH16}
v_add_u32 v8, 3072, v8
""")
    for s in range(8): a(f"buffer_load_dwordx4 {ar(aHL+4*s,4)}, v8, {sr(H,4)}, 0 offen offset:{32*s}")
    a(f"s_mov_b32 s{sT}, {WS_W+128*1024}")
    for b in range(4): a(f"buffer_load_dwordx4 {ar(aW3+4*b,4)}, v1, {sr(WS,4)}, s{sT} offen offset:{1024*b}")
    a(f"""
s_mov_b32 s{POS+2}, {N*6}
s_mov_b32 s{POS+3}, 0x20000
s_movk_i32 s{WX+2}, 256
s_mov_b32 s{WX+3}, 0x20000
v_add_u32 v9, s{sN0}, v{vT}
v_mul_u32_u24 v9, 6, v9
v_mov_b32 v12, 0
v_mov_b32 v13, 0
v_mov_b32 v14, 0
v_mov_b32 v15, 0
buffer_load_short_d16_hi v12, v9, {sr(POS,4)}, 0 offen
buffer_load_short_d16_hi v13, v9, {sr(POS,4)}, 0 offen offset:2
buffer_load_short_d16_hi v14, v9, {sr(POS,4)}, 0 offen offset:4
v_lshlrev_b32 v10, 1, v5
""")
    for b in range(4): a(f"v_mov_b32 v{vWx+b}, 0")
    for b in range(4): a(f"buffer_load_short_d16_hi v{vWx+b}, v10, {sr(WX,4)}, 0 offen offset:{64*b}")
    a(f"""
s_mov_b32 s{sT}, {WS_W+132*1024}
buffer_load_dwordx4 v[16:19], v1, {sr(WS,4)}, s{sT} offen
""")
    TS()
    a(f"""
v_mov_b32 v20, 0
v_mov_b32 v21, 0
v_mov_b32 v22, 0
v_mov_b32 v23, 0
v_lshlrev_b32 v11, 4, v{vT}
ds_write_b128 v11, v[20:23] offset:{REC}
ds_write_b128 v11, v[20:23] offset:{REC+4096}
v_lshlrev_b32 v24, 3, v4
ds_write_b64 v24, v[20:21] offset:{CNT}
s_cmp_lg_u32 s{sInit}, 0
s_cbranch_scc1 K2_NOZ
s_mov_b32 s{sInit}, 1
v_add_u32 v25, {ZF0}, v11
""")
    for i in range(9): a(f"ds_write_b128 v25, v[20:23] offset:{4096*i}")
    a(f"""
K2_NOZ:
s_mov_b32 s{EA+3}, 0x20000
s_mov_b32 s{OUT+2}, {N*262}
s_mov_b32 s{OUT+3}, 0x20000
s_mov_b32 s{sCEA}, {32|(32768<<16)}
s_movk_i32 s{sC256}, 256
s_mov_b32 s{sNeg10}, 0xBF80
s_mov_b32 s{sNeg01}, 0xBF800000
s_mov_b32 s{sNRE}, {NRE}
v_lshrrev_b32 v26, 3, v5
v_and_b32 v27, 3, v5
v_cmp_eq_u32 vcc, v26, v27
v_lshlrev_b32 v26, 2, v5
v_and_b32 v27, 16, v26
v_mov_b32 v28, 0x3F80
v_lshlrev_b32 v28, v27, v28
v_cndmask_b32 v28, 0, v28, vcc
ds_write_b32 v26, v28 offset:{TB}
v_and_b32 v26, 7, v5
v_lshlrev_b32 v26, 2, v26
v_lshrrev_b32 v27, 3, v5
v_add_lshl_u32 v26, v26, v27, 8
v_and_b32 v27, 15, v5
v_xor_b32 v27, v6, v27
v_lshl_or_b32 v26, v27, 4, v26
v_add_u32 v{aAh}, s{sM0}, v26
""")
    for s in range(1,8): a(f"v_xor_b32 v{aAh+s}, {32*s}, v{aAh}")
    a(f"""
v_and_b32 v26, 15, v4
v_bfe_u32 v27, v4, 4, 1
v_lshlrev_b32 v28, 3, v27
v_xor_b32 v26, v26, v28
v_lshlrev_b32 v26, 4, v26
""")
    for i in range(8): a(f"v_xor_b32 v{cDma+i}, {16*i|(3072-1024*(i&3))}, v26")
    a(f"""
v_bfe_u32 v28, v4, 2, 2
v_and_b32 v29, 3, v4
v_lshlrev_b32 v29, 3, v29
v_lshl_or_b32 v29, v27, 5, v29
v_lshl_add_u32 v30, v6, 2, v28
v_lshl_add_u32 v30, v30, 6, v29
s_lshl_b32 s{sT}, s{sW}, 11
s_add_u32 s{sT}, s{sT}, {SB}
v_add_u32 v{aS}, s{sT}, v30
v_lshl_add_u32 v{cSc}, v5, 6, s{sT}
v_mov_b32 v{aSc+1}, v{cSc}
v_mov_b32 v{aSc}, v{cSc}
v_cmp_eq_u32 vcc, 0, v6
v_cmp_eq_u32 {sr(sU,2)}, 0, v28
v_lshlrev_b32 v{vInc}, 9, v6
v_cndmask_b32 v{mulL}, 0, 2, vcc
v_mul_u32_u24 v30, 264, v28
v_add3_u32 v30, v30, v29, s{sC256}
v_add_u32 v30, {AT-256}, v30
v_mov_b32 v31, {ZR}
v_cndmask_b32 v{cAW0}, v31, v30, vcc
v_add_u32 v30, {4*264}, v30
v_add_u32 v29, {WD}, v29
v_cndmask_b32 v31, v31, v29, {sr(sU,2)}
v_cndmask_b32 v{cAW1}, v31, v30, vcc
v_lshrrev_b32 v30, 2, v5
v_mul_u32_u24 v30, 256, v30
v_lshl_add_u32 v30, v5, 2, v30
v_add_u32 v{cPT}, {MT+256}, v30
v_lshlrev_b32 v30, 2, v5
v_mul_u32_u24 v31, 272, v6
v_add_u32 v31, {MT}, v31
v_add_u32 v{cMT}, v31, v30
v_lshlrev_b32 v30, 2, v6
v_sub_u32 v30, v5, v30
v_subrev_u32 v31, 16, v30
""")
    for f in range(2):
        e=30+f
        a(f"""v_and_b32 v34, -12, v{e}
v_cmp_eq_u32 vcc, 0, v34
v_and_b32 v34, 3, v{e}
v_bfe_u32 v35, v{e}, 3, 1
v_lshl_or_b32 v34, v35, 2, v34
v_lshlrev_b32 v34, 4, v34
v_add_u32 v34, {TB}, v34
v_mov_b32 v35, {ZR}
v_cndmask_b32 v{32+f}, v35, v34, vcc""")
    a(f"""
v_mul_u32_u24 v34, 264, v7
v_lshl_add_u32 v34, v6, 3, v34
v_add_u32 v34, {AT}, v34
v_cmp_gt_u32 vcc, {NB}, v7
v_mov_b32 v35, {TRASH}
s_lshl_b32 s{sT}, s{sW}, 2
v_cndmask_b32 v34, v35, v34, vcc
v_mov_b32 v35, s{sT}
""")
    TS()
    a(f"""
s_waitcnt vmcnt(36)
""")
    TS()
    a(f"""
v_lshrrev_b32 v36, 16, v2
v_lshrrev_b32 v37, 16, v3
v_add_u32 v38, v36, v37
v_mov_b32 v39, v38
""")
    scan(a,[39])
    a(f"""
s_mov_b32 exec_lo, 0
s_brev_b32 exec_hi, 1
ds_write_b32 v35, v39 offset:{SC}
s_mov_b64 exec, -1
v_mov_b32 v40, 0
s_waitcnt lgkmcnt(0)
s_barrier
ds_read_b128 v[44:47], v40 offset:{SC}
ds_read_b128 {ar(aSel,4)}, v32
ds_read_b128 {ar(aSel+4,4)}, v33
ds_read_b128 {ar(aZ,4)}, v40 offset:{ZR}
ds_read_b128 {ar(aSf,4)}, v40 offset:{ZR}
ds_read_b128 {ar(aSf+4,4)}, v40 offset:{ZR}
v_sub_u32 v39, v39, v38
v_and_b32 v2, 0xffff, v2
v_and_b32 v3, 0xffff, v3
v_lshl_add_u32 v2, v{vT}, 11, v2
v_lshl_add_u32 v3, v{vT}, 11, v3
v_add_u32 v3, 1024, v3
s_waitcnt lgkmcnt(5)
v_readfirstlane_b32 s{sU}, v44
v_readfirstlane_b32 s{sU+1}, v45
v_readfirstlane_b32 s{sU+2}, v46
v_readfirstlane_b32 s{sU+3}, v47
s_add_u32 s{sU+1}, s{sU+1}, s{sU}
s_add_u32 s{sU+2}, s{sU+2}, s{sU+1}
s_add_u32 s{sNT}, s{sU+3}, s{sU+2}
s_cmp_eq_u32 s{sW}, 1
s_cselect_b32 s{sT}, s{sU}, 0
s_cmp_eq_u32 s{sW}, 2
s_cselect_b32 s{sT}, s{sU+1}, s{sT}
s_cmp_eq_u32 s{sW}, 3
s_cselect_b32 s{sT}, s{sU+2}, s{sT}
s_sub_u32 s{sT}, s{sT}, s{sR0}
s_sub_u32 s{sM}, s{sNT}, s{sR0}
s_min_u32 s{sM}, s{sM}, s{sCap}
v_add_u32 v39, s{sT}, v39
v_add_u32 v40, v39, v36
v_add_u32 v41, v40, v37
v_sub_u32 v2, v2, v39
v_sub_u32 v3, v3, v40
v_min_i32 v41, s{sM}, v41
v_min_i32 v42, s{sM}, v40
v_max_i32 v39, 0, v39
v_max_i32 v40, 0, v40
v_lshlrev_b32 v39, 2, v39
v_lshlrev_b32 v40, 2, v40
v_lshlrev_b32 v41, 2, v41
v_lshlrev_b32 v42, 2, v42
v_cmp_lt_i32 {sr(sU,2)}, v39, v42
v_cmp_lt_i32 {sr(sU+2,2)}, v40, v41
K2_MK:
s_mov_b64 exec, {sr(sU,2)}
ds_write_b32 v39, v2 offset:{REC}
s_mov_b64 exec, {sr(sU+2,2)}
ds_write_b32 v40, v3 offset:{REC}
s_mov_b64 exec, -1
v_or_b32 v39, 0xff, v39
v_or_b32 v40, 0xff, v40
v_add_u32 v39, 1, v39
v_add_u32 v40, 1, v40
v_cmp_lt_i32 {sr(sU,2)}, v39, v42
v_cmp_lt_i32 {sr(sU+2,2)}, v40, v41
s_or_b64 vcc, {sr(sU,2)}, {sr(sU+2,2)}
s_cbranch_scc1 K2_MK
v_lshlrev_b32 v39, 2, v{vT}
s_waitcnt lgkmcnt(0)
s_barrier
""")
    TS()
    IDX=40; RC=48
    for j in range(7): a(f"ds_read_b32 v{IDX+j}, v39 offset:{REC+1024*j}")
    for j in range(7):
        a(f"s_sub_i32 s{sT}, s{sM}, {256*j}\nv_cmp_gt_i32 {sr(sMask+2*j,2)}, s{sT}, v{vT}")
    a(f"s_mov_b32 s{sT}, {WS_REC}\ns_waitcnt lgkmcnt(0)")
    scan(a,[IDX+j for j in range(7)],"max")
    for j in range(7):
        if j: a(f"v_add_u32 v39, {256*j}, v{vT}\nv_add_lshl_u32 v{IDX+j}, v{IDX+j}, v39, 2")
        else: a(f"v_add_lshl_u32 v{IDX}, v{IDX}, v{vT}, 2")
        a(f"buffer_load_dword v{RC+j}, v{IDX+j}, {sr(WS,4)}, s{sT} offen")
    TS()
    a(f"""
v_cmp_gt_u32 vcc, {NB}, v{vT}
v_cmp_gt_u32 {sr(sU,2)}, 16, v{vT}
s_mov_b32 s{sT}, 0xbf317218
v_add_u32 v35, {STG}, v1
s_waitcnt vmcnt(7)
s_mov_b64 exec, vcc
ds_write_b128 v11, v[12:15] offset:{PD}
s_mov_b64 exec, {sr(sU,2)}
ds_write_b128 v11, v[16:19] offset:{WD}
s_mov_b64 exec, -1
""")
    for b in range(4): a(f"v_mul_f32 v{vWx+b}, s{sT}, v{vWx+b}")
    a("s_waitcnt lgkmcnt(0)\ns_barrier")
    TS()
    order=[(s,b) for bp in (0,2) for s in range(8) for b in (bp,bp+1)]
    woff=lambda f,x: (f>>3)*16384+(f&7)*1024+x
    q=[]
    def dsi(l,tag): a(l); q.append(tag)
    def dsw(tag):
        n=len(q)-1-q.index(tag); a(f"s_waitcnt lgkmcnt({min(n,15)})")
    rd1=lambda i: dsi(f"ds_read_b128 {vr(128+4*(i&15),4)}, v35 offset:{woff(4*order[i][0]+order[i][1],8192)}",("w1",i))
    for i in range(4): rd1(i)
    wr=[]
    def atw(b):
        L=[]
        for qq in range(4):
            t=56+2*(qq&1)
            L+=[f"v_cvt_pk_bf16_f32 v{t}, v{64+16*b+4*qq}, v{65+16*b+4*qq}",f"v_cvt_pk_bf16_f32 v{t+1}, v{66+16*b+4*qq}, v{67+16*b+4*qq}",
                f"ds_write_b64 v34, {vr(t,2)} offset:{64*b+16*qq}"]
        return L
    pend=atw(0)+atw(1)
    for i,(s,b) in enumerate(order):
        dsw(("w1",i))
        a(mf(64+16*b, vr(128+4*(i&15),4), ar(aHL+4*s,4), "0" if s==0 else None))
        if i+4<32: rd1(i+4)
        dsi(f"ds_read_b128 {ar(aW2+4*i,4)}, v35 offset:{woff(i,0)}",("w2",i))
        if i>=20:
            for _ in range(3):
                if pend:
                    l=pend.pop(0)
                    if l.startswith("ds_"): dsi(l,("w",l))
                    else: a(l)
    assert not pend
    ND=12; RK=20; WP=128
    a("v_mov_b32 v27, 1\ns_waitcnt vmcnt(0)")
    for j in range(7): a(f"v_lshrrev_b32 v{ND+j}, 13, v{RC+j}\nv_and_b32 v{ND+j}, 0x1fc, v{ND+j}")
    for j in range(7): a(f"s_mov_b64 exec, {sr(sMask+2*j,2)}\nds_add_rtn_u32 v{RK+j}, v{ND+j}, v27 offset:{CNT}")
    a("s_mov_b64 exec, -1")
    for l in atw(2)+atw(3): a(l)
    for j in range(7):
        a(f"""v_lshlrev_b32 v{WP+2*j}, 17, v{ND+j}
v_lshlrev_b32 v{WP+2*j+1}, 4, v{IDX+j}
v_lshrrev_b32_sdwa v{WP+2*j+1}, 22, v{RC+j} dst_sel:WORD_0 dst_unused:UNUSED_PRESERVE src0_sel:DWORD src1_sel:DWORD
v_and_b32 v{144+j}, 0x7fff, v{RC+j}""")
    a(f"""
v_lshlrev_b32 v28, 3, v4
v_mov_b32 v30, 0
v_mov_b32 v31, 1.0
s_waitcnt lgkmcnt(0)
s_barrier
""")
    TS()
    a(f"""
ds_read_b64 v[36:37], v28 offset:{CNT}
v_add_u32 v29, {BASE}, v28
s_waitcnt lgkmcnt(0)
v_add_u32 v38, v36, v37
v_mov_b32 v39, v38
""")
    scan(a,[39])
    a(f"""
v_sub_u32 v56, v39, v38
v_add_u32 v56, {NB}, v56
v_add_u32 v57, v56, v36
ds_write_b64 v28, v[56:57] offset:{BASE}
v_readlane_b32 s{sNP}, v39, 63
ds_read2_b32 v[58:59], v29 offset0:7 offset1:8
""")
    for j in range(7): a(f"ds_read_b32 v{IDX+j}, v{ND+j} offset:{BASE}")
    a(f"""
s_cmp_eq_u32 s{sNP}, 0
s_cbranch_scc1 K2_K0
s_add_u32 s{sT}, s{sNP}, {NB}
s_waitcnt lgkmcnt(7)
v_sub_u32 v60, v58, v56
v_sub_u32 v61, v59, v57
v_cmp_gt_u32 {sr(sU,2)}, 31, v60
v_cmp_gt_u32 {sr(sU+2,2)}, s{sT}, v58
v_cmp_gt_u32 {sr(sU+4,2)}, 31, v61
v_cmp_gt_u32 vcc, s{sT}, v59
s_and_b64 {sr(sU,2)}, {sr(sU,2)}, {sr(sU+2,2)}
s_and_b64 vcc, vcc, {sr(sU+4,2)}
s_or_b64 vcc, vcc, {sr(sU,2)}
s_and_b32 vcc_hi, vcc_hi, 0x1ffff
s_cmp_lg_u64 vcc, 0
s_cbranch_scc1 K2_PAD
K2_PADRET:
v_cmp_lt_u32 vcc, 0, v38
s_add_u32 s{sU+4}, s{sNP}, 31
s_lshr_b32 s{sU+4}, s{sU+4}, 5
s_flbit_i32_b64 s{sT}, vcc
s_sub_u32 s{sT}, 63, s{sT}
v_readlane_b32 s{sT+1}, v37, s{sT}
s_lshl_b32 s{sT+2}, s{sU+4}, 5
s_sub_u32 s{sT+2}, s{sT+2}, s{sNP}
s_cmp_lg_u32 s{sT+1}, 0
s_addc_u32 s{sT}, s{sT}, s{sT}
v_cmp_gt_u32 vcc, s{sT+2}, v4
s_lshl_b32 s{sT+1}, s{sT}, 19
s_add_u32 s{sT}, s{sT}, s{sN0}
s_add_u32 s{sT+2}, s{sNP}, {NB}
v_mov_b32 v60, 0
v_mov_b32 v61, 0
v_mov_b32 v62, s{sT+1}
v_mov_b32 v63, 0
v_mov_b32 v58, s{sT}
v_add_lshl_u32 v56, v4, s{sT+2}, 4
v_add_lshl_u32 v57, v4, s{sT+2}, 1
s_mov_b64 exec, vcc
ds_write_b128 v56, v[60:63]
ds_write_b16 v57, v58 offset:{SRC-2*NB}
s_mov_b64 exec, -1
s_waitcnt lgkmcnt(2)
""")
    for j in range(7):
        a(f"v_add_lshl_u32 v{ND+j}, v{IDX+j}, v{RK+j}, 4\nv_add_lshl_u32 v{IDX+j}, v{IDX+j}, v{RK+j}, 1")
    for j in range(7):
        a(f"""s_mov_b64 exec, {sr(sMask+2*j,2)}
ds_write2_b64 v{ND+j}, v[30:31], {vr(WP+2*j,2)} offset0:0 offset1:1
ds_write_b16 v{IDX+j}, v{144+j} offset:{SRC-2*NB}""")
    a(f"""
s_mov_b64 exec, -1
s_lshr_b32 s{sT}, s{sU+4}, 2
s_and_b32 s{sT+1}, s{sU+4}, 3
s_mul_i32 s{sT+2}, s{sT}, s{sW}
s_min_u32 s{sT+3}, s{sW}, s{sT+1}
s_add_u32 s{sT+2}, s{sT+2}, s{sT+3}
s_cmp_lt_u32 s{sW}, s{sT+1}
s_addc_u32 s{sK}, s{sT}, 0
s_lshl_b32 s{sT}, s{sT+2}, 9
s_add_u32 s{sT}, s{sT}, {REC}
s_lshl_b32 s{sT+1}, s{sT+2}, 6
s_add_u32 s{sT+1}, s{sT+1}, {SRC}
v_lshl_add_u32 v{aRec}, v5, 4, s{sT}
v_lshl_add_u32 v{aPB}, v4, 4, s{sT}
v_lshl_add_u32 v{aPS}, v4, 1, s{sT+1}
v_and_b32 v2, 48, v4
v_add_u32 v{aSrc}, s{sT+1}, v2
v_mul_u32_u24 v2, 496, v6
v_lshl_add_u32 v2, v5, 9, v2
v_add_u32 v2, s{sT}, v2
v_cmp_eq_u32 vcc, 0, v6
v_mov_b32 v3, {TB}
s_sub_u32 s{sKm1}, s{sK}, 1
v_cndmask_b32 v{vX}, v{aRec}, v3, vcc
s_sub_u32 s{sKe}, s{sK}, 2
s_sub_u32 s{sKh}, s{sK}, 3
s_cmp_eq_u32 s{sK}, 0
s_waitcnt lgkmcnt(0)
s_barrier
s_cbranch_scc1 K2_K0
""")
    TS()
    dump("sort")
    a(f"""
ds_read_u16 v8, v{aPS}
ds_read_b128 v[12:15], v{aSrc}
ds_read_b32 v9, v{aRec} offset:12
ds_read_b128 v[16:19], v{aSrc} offset:64
ds_read_u16 v{vS16}, v{aPS} offset:128
ds_read_u16 v10, v{aPB} offset:10
ds_read_u16 v{vN8}, v{aPB} offset:{1024+10}
ds_read_u16 v{vFL}, v2 offset:10
ds_read_b128 {vr(vSrc,4)}, v{aSrc} offset:128
ds_read_b32 v{vEid}, v{aRec} offset:{512+12}
s_mov_b32 s{EA+2}, s{sNRE}
s_mov_b32 m0, s{sM0}
s_waitcnt lgkmcnt(9)
v_mul_u32_u24 v20, 6, v8
v_and_b32 v20, -4, v20
buffer_load_dwordx2 v[22:23], v20, {sr(POS,4)}, 0 offen
s_waitcnt lgkmcnt(7)
v_dot2_u32_u16 v{vEA}, v9, s{sCEA}, v{vH16}
""")
    for i in range(8):
        d=dma(i,12,vDA+(i&1))
        if i==4: a(f"s_mov_b32 m0, s{sM0+1}")
        a(d[0]); a(d[1])
    a(f"""buffer_load_dwordx4 {ar(aE,4)}, v{vEA}, {sr(EA,4)}, 0 offen
s_cmp_gt_u32 s{sK}, 1
s_cselect_b32 s{H+2}, s{sNRH}, 0
s_mov_b32 m0, s{sM0+2}
s_waitcnt lgkmcnt(3)""")
    for i in range(8):
        d=dma(i,16,vDA+(i&1))
        if i==4: a(f"s_mov_b32 m0, s{sM0+3}")
        a(d[0]); a(d[1])
    a(f"""
v_mul_u32_u24 v20, 6, v{vS16}
v_and_b32 v20, -4, v20
buffer_load_dwordx2 {vr(vPs,2)}, v20, {sr(POS,4)}, 0 offen
v_lshlrev_b32 v10, 1, v10
v_lshlrev_b32 v11, 1, v{vN8}
ds_read_b96 v[24:26], v10 offset:{PD}
ds_read_b96 {vr(vPd,3)}, v11 offset:{PD}
v_cmp_gt_u32 vcc, s{sK}, v5
v_mov_b32 v3, 0xffff
s_mov_b32 s{sk}, -1
s_mov_b32 s{sTF}, -2
s_mov_b32 s{sNb}, 0
""")
    Z=ar(aZ,4)
    for d in (D2,D2+16,D2+32,D2+48,T_,T_+16,DY,DY+16): a(mf(d,Z,Z,"0"))
    a(f"""s_cmp_lg_u32 s{sW}, 0
s_cselect_b32 s{sFM}, -1, 0
s_mov_b32 s{sFM+1}, 0
s_cselect_b32 s{sFP}, 15, 0
s_cselect_b32 s{sFP+1}, 15, 0
s_add_u32 s{sXM}, s{sW}, 97
s_mul_i32 s{sXM}, s{sXM}, 272
s_movk_i32 s{sOne10}, 0x3F80
s_mov_b32 s{sOne01}, 1.0
s_lshl_b32 s{sT}, s{sW}, 2
s_add_u32 s{sT}, s{sT}, {FX}
v_mov_b32 v2, s{sT}
s_waitcnt vmcnt(18) lgkmcnt(0)
v_cndmask_b32 v{vFL}, v3, v{vFL}, vcc
s_mov_b64 exec, 1
ds_write_b32 v2, v{vFL}
s_mov_b64 exec, -1""")
    B=phaseB(22,24,8,aPB,0,tb=vB)
    for l in B[:6]: a(l)
    a("s_nop 1")
    for l in B[6:]: a(l)
    a(f"ds_read_b128 {vr(vRec,4)}, v{aRec}\ns_waitcnt vmcnt(10)")
    for s in range(8): a(f"ds_read_b128 {ar(aH+4*s,4)}, v{aAh+s}")
    TS()
    if "nomem" in opt: a(f"s_mov_b32 s{sNRH}, 0\ns_mov_b32 s{sNRE}, 0")
    if "noea" in opt: a(f"s_mov_b32 s{sNRE}, 0")
    if "noh" in opt: a(f"s_mov_b32 s{sNRH}, 0")
    a("s_waitcnt lgkmcnt(0)\ns_branch K2_NEWWIN")
    A0,A1,B0,B1=slotA(0),slotA(1),slotB(0),slotB(1)
    bnd=f"s_cmp_ge_i32 s{sk}, s{sEv}\ns_waitcnt lgkmcnt(0)\ns_cbranch_scc1 K2_H"
    def TL(i):
        if "tl" in opt: a(f"s_memtime s[96:97]\ns_add_u32 s98, s{sk}, 2\ns_lshl_b64 exec, 1, s98\ns_waitcnt lgkmcnt(0)\nv_mov_b32 v{vWx+i}, s96\ns_mov_b64 exec, -1\ns_nop 3")
    a("K2_LOOP:"); TL(0); a.extend(A0); TL(1); a(bnd); a("K2_B0:"); TL(2); a.extend(B0)
    TL(0); a.extend(A1); TL(1); a(bnd); a("K2_B1:"); TL(2); a.extend(B1); a("s_branch K2_LOOP")
    check(B1+A0,"wrap")
    a(f"""
K2_H:
s_cmp_lg_u32 s{sk}, s{sTF}
s_cbranch_scc1 K2_NOFL
s_add_u32 s{sT+2}, s{sk}, 31
s_mul_i32 s{sT}, s{sNbF}, 34
v_readlane_b32 s{sT+2}, v{vFL}, s{sT+2}
v_add_u32 v{vOH}, s{sT}, v{cMT}
v_add_u32 v{vEA}, s{sT}, v{cPT}
v_add_u32 v8, s{sXM}, v{cMT}
v_add_u32 v9, s{sXM}, v{cPT}
v_cndmask_b32 v8, v{vOH}, v8, {sr(sFM,2)}
v_cndmask_b32 v{vEA}, v{vEA}, v9, {sr(sFP,2)}
""")
    mad=lambda q,pb: f"v8 offset:{128*pb}" if q==0 else f"v{vOH} offset:{544*q+128*pb}"
    pk=[]
    for b in range(4):
        wxp=vr(vWx+(b&2),2); o=b&1
        for j in range(8):
            if b==0: pk.append(f"v_pk_mul_f32 {vr(FT+2*j,2)}, {vr(D2+2*j,2)}, {wxp} op_sel:[0,{o}] op_sel_hi:[1,{o}]")
            else: pk.append(f"v_pk_fma_f32 {vr(FT+2*j,2)}, {vr(D2+16*b+2*j,2)}, {wxp}, {vr(FT+2*j,2)} op_sel:[0,{o},0] op_sel_hi:[1,{o},1]")
    rd=[f"ds_read_b32 v{2*q+pb}, {mad(q,pb)}" for q in range(4) for pb in range(2)]+[f"ds_read_b32 v10, v{vEA}"]
    for i,l in enumerate(pk):
        a(l)
        if i<9: a(rd[i])
    a(f"""s_sub_u32 s{sT+2}, s{sT+2}, s{sNbF}
s_mul_i32 s{sT+3}, s{sT+2}, 34
s_lshl_b32 s{sT+2}, s{sT+2}, 1
s_add_u32 s{sT+3}, s{sT+3}, {MT+256+12}
s_mov_b64 {sr(sFM,2)}, 0
s_mov_b64 {sr(sFP,2)}, 0""")
    for j in range(8): a(f"v_cvt_pk_bf16_f32 v{P_+j}, v{FT+2*j}, v{FT+2*j+1}")
    lo=lambda q,pb: D2+32*pb+4*q+3
    dots=[]; cv=[]
    for pb in range(2):
        for q in range(4):
            dots+=[f"v_dot2_f32_bf16 v{lo(q,pb)}, v{2*q+pb}, s{sOne10}, v{lo(q,pb)}",f"v_dot2_f32_bf16 v{lo(q,pb)+16}, v{2*q+pb}, s{sOne01}, v{lo(q,pb)+16}"]
            cv.append(f"v_cvt_pk_bf16_f32 v{P_+8+4*pb+q}, v{lo(q,pb)}, v{lo(q,pb)+16}")
    a("s_waitcnt lgkmcnt(0)")
    a(dots[0]); a(dots[1])
    a(mf(FT,vr(P_,4),ar(aSel,4),"0"))
    for l in dots[2:8]: a(l)
    a(mf(FT,vr(P_+4,4),ar(aSel+4,4)))
    for l in dots[8:11]+cv[:4]: a(l)
    a(mf(D2,Z,Z,"0"))
    for l in dots[11:16]: a(l)
    a("s_nop 0")
    a(mf(D2+16,Z,Z,"0"))
    for l in cv[4:8]: a(l)
    ad=[f"v_add_f32 v{FT+i}, v{FT+i}, v{FT+i+w}" for w in (8,4,2,1) for i in range(w)]
    for l in ad[:2]: a(l)
    a(mf(D2+32,Z,Z,"0"))
    for l in ad[2:8]: a(l)
    a(mf(D2+48,Z,Z,"0"))
    for l in ad[8:]: a(l)
    a(f"v_mov_b32 v11, v{FT}")
    for q in range(4):
        a(f"v_cmpx_ge_i32 vcc, s{sT+2}, v{vH16}")
        if q<3: a(f"s_sub_i32 s{sT+2}, s{sT+2}, 32")
        for pb in range(2):
            m=mad(q,pb).split(); a(f"ds_write_b32 {m[0]}, v{P_+8+4*pb+q} {m[1]}")
    a(f"""
s_mov_b64 exec, -1
s_nop 0
v_permlane32_swap_b32 v11, v{FT}
v_add_f32 v10, v10, v11
v_add_f32 v10, v10, v{FT}
v_cmpx_ge_u32 vcc, s{sT+3}, v{cPT}
ds_write_b32 v{vEA}, v10
s_mov_b64 exec, -1
s_cmp_eq_u32 s{sk}, s{sK}
s_cbranch_scc1 K2_REND
K2_NOFL:
s_cmp_eq_u32 s{sk}, s{sKm1}
s_cbranch_scc1 K2_TAIL
s_mov_b32 s{sEv}, s{sTW}
s_cmp_lg_u32 s{sk}, s{sTW}
s_cbranch_scc1 K2_RET
s_add_u32 s{sTF}, s{sk}, 1
s_mov_b32 s{sNbF}, s{sNb}
K2_NEWWIN:
s_add_u32 s{sT}, s{sk}, 1
v_readlane_b32 s{sT}, v{vFL}, s{sT}
s_add_u32 s{sT+1}, s{sT}, 56
s_mul_i32 s{sT+2}, s{sT}, 33
v_cmp_lt_u32 vcc, s{sT+1}, v{vFL}
s_lshr_b32 s{sT+2}, s{sT+2}, 1
v_mad_u32_u24 v{vOH}, v{mulL}, s{sT+2}, v{cAW0}
v_mad_u32_u24 v{vEA}, v{mulL}, s{sT+2}, v{cAW1}
s_sub_i32 s{sT+3}, s{sNb}, s{sT}
s_mov_b32 s{sNb}, s{sT}
""")
    for b in range(4):
        a(f"ds_read_b64_tr_b16 {ar(aAW+4*b,2)}, v{vOH} offset:{64*b}\nds_read_b64_tr_b16 {ar(aAW+4*b+2,2)}, v{vEA} offset:{64*b}")
    a(f"""
v_mad_i32_i24 v{vX}, v{mulL}, s{sT+3}, v{vX}
v_add_u32 v{cSc}, s{sT+3}, v{cSc}
s_ff1_i32_b32 s{sTW}, vcc_hi
s_sub_u32 s{sTW}, s{sTW}, 1
s_cmp_gt_i32 s{sTF}, s{sk}
s_cselect_b32 s{sEv}, s{sTF}, s{sTW}
K2_RET:
s_bitcmp1_b32 s{sk}, 0
s_cbranch_scc1 K2_B1
s_branch K2_B0
K2_TAIL:
""")
    whdma()
    cvt,ex,ad,rc,mu=spine(DY)
    for l in cvt: a(l)
    sg=[seg(0,0,0),seg(0,0,1),seg(0,1,0),seg(0,1,1)]
    for i,l in enumerate(ex):
        if i%4==1 and sg: a(sg.pop(0))
        a(l)
    for l in ad+rc+mu+cvt: a(l)
    a(f"s_mov_b32 s{sk}, s{sK}\ns_mov_b32 s{sTF}, s{sK}")
    for l in [seg(2,0,0),seg(2,0,1),seg(2,1,0),seg(2,1,1)]: a(l)
    a(f"""
ds_write_b64 v{aSc}, {ar(aZ,2)}
ds_write_b64 v{aSc+1}, {ar(aZ,2)}
s_mov_b32 s{sNbF}, s{sNb}
s_nop 7
s_branch K2_H
K2_PAD:
s_waitcnt lgkmcnt(0)
s_barrier
v_cmp_gt_u32 vcc, 49, v4
v_add_u32 v60, 3, v36
v_add_u32 v61, 3, v37
v_and_b32 v60, -4, v60
v_and_b32 v61, -4, v61
v_max_u32 v60, 4, v60
v_max_u32 v61, 4, v61
v_cndmask_b32 v60, 0, v60, vcc
v_cndmask_b32 v61, 0, v61, vcc
v_add_u32 v38, v60, v61
v_mov_b32 v39, v38
""")
    scan(a,[39])
    a(f"""
v_sub_u32 v56, v39, v38
v_add_u32 v56, {NB}, v56
v_add_u32 v57, v56, v60
v_readlane_b32 s{sNP}, v39, 63
ds_write_b64 v28, v[56:57] offset:{BASE}
s_cmp_le_u32 s{sNP}, {CAP}
s_cbranch_scc1 K2_PAD2
s_movk_i32 s{sCap}, {CAP-4*NB}
s_waitcnt lgkmcnt(0)
s_barrier
s_branch K2_ROUND
K2_PAD2:
""")
    for j in range(7): a(f"ds_read_b32 v{IDX+j}, v{ND+j} offset:{BASE}")
    a(f"""
v_mov_b32 v152, 0
v_mov_b32 v153, 0
v_mov_b32 v155, 0
""")
    for u in range(2):
        a(f"""v_add_u32 v36, s{sW}, v{36+u}
v_cmp_lt_u32 vcc, v36, v{60+u}
v_lshl_or_b32 v58, v4, 1, {u}
v_lshlrev_b32 v154, 19, v58
v_add_u32 v58, s{sN0}, v58
v_add_lshl_u32 v59, v36, v{56+u}, 4
v_add_lshl_u32 v36, v36, v{56+u}, 1
s_mov_b64 exec, vcc
ds_write_b128 v59, v[152:155]
ds_write_b16 v36, v58 offset:{SRC-2*NB}
s_mov_b64 exec, -1""")
    a(f"""
v_mov_b32 v37, v61
s_waitcnt lgkmcnt(0)
s_branch K2_PADRET
K2_K0:
""")
    whdma()
    a(f"""
K2_REND:
s_add_u32 s{sR0}, s{sR0}, s{sM}
s_movk_i32 s{sCap}, {CAP}
s_cmp_lt_u32 s{sR0}, s{sNT}
s_waitcnt vmcnt(0) lgkmcnt(0)
s_barrier
s_cbranch_scc1 K2_MORE
""")
    TS()
    if "tl" in opt:
        a(f"s_mov_b32 s{WS+2}, 0x8000000\ns_lshl_b32 s{sT}, s2, 2\ns_add_u32 s{sT}, s{sT}, s{sW}\ns_lshl_b32 s{sT}, s{sT}, 10\ns_add_u32 s{sT}, s{sT}, 0x500000\nv_and_b32 v1, 63, v{vT}\nv_lshlrev_b32 v1, 2, v1")
        for i in range(3): a(f"buffer_store_dword v{vWx+i}, v1, {sr(WS,4)}, s{sT} offen offset:{256*i}")
        a("s_waitcnt vmcnt(0)")
    MFR=64; HF=128; TT=96; OS=112
    def merge():
        L=[f"v_mov_b32 v208, {FX}",("ds",f"ds_read_b128 v[208:211], v208","fx"),
           f"v_and_b32 v212, 63, v{vT}",f"v_lshlrev_b32 v212, 2, v212",f"v_add_u32 v213, {MT+98*272}, v212",
           f"v_cmp_gt_u32 {sr(sFM,2)}, 16, v212",f"v_add_u32 v214, {TRASH-256}, v212",
           f"s_movk_i32 s{sOne10}, 0x3F80",f"s_mov_b32 s{sOne01}, 1.0",f"s_mov_b32 s{sXM}, 0xffff0000"]
        for w in range(3): L+=[("ds",f"ds_read_b32 v{216+2*w}, v213 offset:{272*w}",("x",w)),("ds",f"ds_read_b32 v{217+2*w}, v213 offset:{272*w+256}",("xp",w))]
        L+=[("wait","fx")]
        for w in range(3): L+=[f"v_readfirstlane_b32 s{sU+w}, v{209+w}"]
        for w in range(3):
            L+=[f"s_lshr_b32 s{sU+3}, s{sU+w}, 8",f"s_mul_i32 s{sU+w}, s{sU+w}, 34",f"s_add_u32 s{sU+w}, s{sU+w}, {MT}",f"s_cmp_eq_u32 s{sU+3}, s{sW}",
                f"s_cselect_b32 s{sU+w}, s{sU+w}, {TRASH}",f"v_add_u32 v{209+w}, s{sU+w}, v212"]
        for w in range(3):
            L+=[("ds",f"ds_read_b32 v222, v{209+w}",("mm",w)),("ds",f"ds_read_b32 v223, v{209+w} offset:256",("mp",w)),
                f"v_cndmask_b32 v215, v214, v{209+w}, {sr(sFM,2)}",("gap",2),("wait",("mp",w)),
                f"v_lshlrev_b32 v224, 16, v222",f"v_and_b32 v225, s{sXM}, v222",
                f"v_dot2_f32_bf16 v224, v{216+2*w}, s{sOne10}, v224",f"v_dot2_f32_bf16 v225, v{216+2*w}, s{sOne01}, v225",
                f"v_add_f32 v223, v223, v{217+2*w}",("ds",f"ds_write_b32 v215, v223 offset:256",("wp",w)),"s_nop 0",
                f"v_cvt_pk_bf16_f32 v224, v224, v225",("ds",f"ds_write_b32 v{209+w}, v224",("wm",w))]
        return L
    a(f"""
v_and_b32 v192, 63, v{vT}
v_and_b32 v193, 31, v192
v_lshl_add_u32 v193, s{sW}, 5, v193
v_mul_u32_u24 v194, 272, v193
v_add_u32 v194, v{vH16}, v194
v_add_u32 v194, {MT}, v194
v_lshlrev_b32 v195, 4, v192
v_add_u32 v195, {STG}, v195
""")
    q=[]
    eord=[]
    for b,g in ((0,0),(1,0),(0,1),(1,1),(2,0),(2,1),(3,0),(3,1)): eord+=[(s,b,g) for s in range(8)]
    fo=lambda i: (lambda s,b,g: (32*g+4*s+b))(*eord[i])
    rdw=lambda i: dsi(f"ds_read_b128 {ar(4*(i&31),4)}, v195 offset:{(fo(i)>>4)*16384+(fo(i)&15)*1024}",("w",i))
    for i in range(4): rdw(i)
    side=merge()
    side+=[("ds",f"ds_read_b128 {vr(MFR+4*s,4)}, v194 offset:{32*s}",("m",s)) for s in range(8)]+[("mark","m")]
    side+=[f"v_lshlrev_b32 v196, 4, v193",("ds",f"ds_read_b96 v[200:202], v196 offset:{PD}","pd"),f"v_sub_u32 v203, v194, v{vH16}",("ds",f"ds_read_b96 v[204:206], v203 offset:256","pt"),
           f"v_add_u32 v199, s{sN0}, v193",f"v_mul_u32_u24 v197, 6, v199",f"v_add_u32 v197, {N*256}, v197",
           f"v_cmp_gt_u32 vcc, s{sNN}, v193",f"v_bfrev_b32 v198, 2",f"s_mov_b32 s{sT}, 0xffff0000",f"v_lshl_add_u32 v199, v199, 8, v{vH16}",
           f"v_lshl_add_u32 v197, v{vH16}, 26, v197",f"v_cndmask_b32 v199, v198, v199, vcc",f"v_cndmask_b32 v197, v198, v197, vcc",
           f"s_mov_b32 s{sT+2}, {K1.LOG2E}",f"s_mov_b32 s{sT+3}, {K1.LOG2E}",
           ("wait","pt"),
           "v_add_f32 v200, v200, v204","v_add_f32 v201, v201, v205","v_add_f32 v202, v202, v206",
           "v_cvt_pk_bf16_f32 v200, v200, v201","v_cvt_pk_bf16_f32 v202, v202, v202",
           f"buffer_store_short v200, v197, {sr(OUT,4)}, 0 offen",f"buffer_store_short_d16_hi v200, v197, {sr(OUT,4)}, 0 offen offset:2",
           f"buffer_store_short v202, v197, {sr(OUT,4)}, 0 offen offset:4"]
    def unp(b):
        L=[]
        for x in range(8):
            L+=[f"v_accvgpr_read_b32 v{HF+16*b+2*x+1}, a{aHL+8*b+x}",f"v_lshlrev_b32 v{HF+16*b+2*x}, 16, v{HF+16*b+2*x+1}",
                f"v_and_b32 v{HF+16*b+2*x+1}, s{sT}, v{HF+16*b+2*x+1}"]
        return L
    def silu(b):
        D=16*b; c=sr(sT+2,2)
        e1=[f"v_exp_f32 v{TT+i}, v{D+i}" for i in range(16)]
        p1=[f"v_pk_fma_f32 {vr(TT+2*j,2)}, {vr(TT+2*j,2)}, {c}, {c}" for j in range(8)]
        r1=[f"v_rcp_f32 v{TT+i}, v{TT+i}" for i in range(16)]
        p2=[f"v_pk_fma_f32 {vr(TT+2*j,2)}, {vr(D+2*j,2)}, {vr(TT+2*j,2)}, {vr(HF+D+2*j,2)}" for j in range(8)]
        cv=[f"v_cvt_pk_bf16_f32 v{OS+8*(b&1)+j}, v{TT+2*j}, v{TT+2*j+1}" for j in range(8)]
        st=[f"buffer_store_dwordx4 {vr(OS+8*(b&1)+4*x,4)}, v199, {sr(OUT,4)}, 0 offen offset:{64*b+32*x}" for x in range(2)]
        return e1+p1+r1+p2+cv+st
    side+=unp(0)+[("at",26)]+silu(0)+unp(1)+[("at",34)]+silu(1)+unp(2)+[("at",50)]+silu(2)+unp(3)
    cur=[0]
    def doside(n,upto=None):
        g=0
        while side and g<n:
            l=side[0]
            if isinstance(l,tuple):
                if l[0]=="at":
                    if cur[0]<l[1]: return
                elif l[0]=="gap":
                    if upto is None and n<10**6:
                        side[0]=("at",cur[0]+l[1]); return
                elif l[0]=="mark":
                    side.pop(0); marks.add(l[1])
                    if l[1]==upto: return
                    continue
                elif l[0]=="ds": dsi(l[1],l[2]); g+=4
                elif l[0]=="wait": dsw(l[1]); g+=4
            else: a(l); g+=cost(l)
            side.pop(0)
    marks=set()
    for i,(s,b,g) in enumerate(eord):
        cur[0]=i
        if g==1 and "m" not in marks:
            cur[0]=10**6; doside(10**6,"m"); cur[0]=i
        dsw(("w",i))
        if g==1 and b==0: dsw(("m",s))
        a(mf(16*b, ar(4*(i&31),4), ar(aHL+4*s,4) if g==0 else vr(MFR+4*s,4), "0" if (s==0 and g==0) else None))
        if i+4<64: rdw(i+4)
        doside(24)
    cur[0]=10**6; doside(10**6)
    a("s_nop 7\ns_nop 3")
    for l in silu(3): a(l)
    dump("end")
    if ts:
        TS()
        a(f"s_mov_b32 s{WS+2}, 0x8000000\ns_lshl_b32 s{sT}, s2, 2\ns_add_u32 s{sT}, s{sT}, s{sW}\ns_lshl_b32 s{sT}, s{sT}, 6\ns_add_u32 s{sT}, s{sT}, 0x300000\nv_mov_b32 v1, 0")
        for i in range(tsn[0]): a(f"v_mov_b32 v2, s{sTS+i}\nbuffer_store_dword v2, v1, {sr(WS,4)}, s{sT} offen offset:{4*i}")
        a(f"v_mov_b32 v2, s{sK}\nbuffer_store_dword v2, v1, {sr(WS,4)}, s{sT} offen offset:60")
    a("s_endpgm\nK2_MORE:")
    q=[]; side=merge(); cur[0]=10**6; doside(10**6)
    a(f"""s_waitcnt lgkmcnt(0)
s_barrier
v_cmp_gt_u32 vcc, 204, v{vT}
v_lshlrev_b32 v1, 2, v{vT}
v_add_u32 v1, {MT+98*272}, v1
v_mov_b32 v2, 0
s_mov_b64 exec, vcc
ds_write_b32 v1, v2
s_mov_b64 exec, -1
s_branch K2_ROUND""")
    a("K2_END:")
    check(a.L,"k2")
    return kernel("k2_kernel", a, 512, acc=256)
if __name__=="__main__":
    t=k2(); print(len(t.split("\n")))
    for nm,s in (("A0",slotA(0)),("A1",slotA(1)),("B0",slotB(0)),("B1",slotB(1))):
        print(nm,len(s),sum(cost(l) for l in s))
```

```python
from asmlib import *
N=25000; E=400000; NB=98; C=1024; NCH=391
WS_W=0; WS_REC=0x22000; WS_OFF=0x1A9000+0; WS_END=WS_OFF+NCH*1024
NWF=133; NWG_W=34
G1=NCH+NWG_W
LOG2E=0xbfb8aa3b
def k1(rt=False):
    a=Asm()
    def RT0():
        if rt: a("s_memrealtime s[40:41]")
    def RT1():
        if rt: a("""s_waitcnt vmcnt(0)
s_memrealtime s[42:43]
s_load_dwordx2 s[44:45], s[0:1], 80
s_lshl_b32 s46, s2, 3
s_add_u32 s46, s46, 0x600000
s_waitcnt lgkmcnt(0)
v_mov_b32 v2, s40
v_mov_b32 v3, s42
v_mov_b32 v1, s46
global_store_dwordx2 v1, v[2:3], s[44:45]""")
    RT0()
    a(f"""
s_cmp_ge_u32 s2, {G1}
s_cbranch_scc1 K1_END
s_cmp_lt_u32 s2, {NWG_W}
s_cbranch_scc1 K1_W
s_load_dwordx4 s[4:7], s[0:1], 24
s_load_dwordx2 s[8:9], s[0:1], 80
s_sub_u32 s3, s2, {NWG_W}
v_lshlrev_b32 v1, 4, v0
s_lshl_b32 s10, s3, 12
v_add_u32 v2, s10, v1
v_lshlrev_b32 v3, 2, v0
v_mov_b32 v4, 0
ds_write_b32 v3, v4
s_mov_b32 s14, {E*4}
s_mov_b32 s15, 0x20000
s_mov_b32 s18, {E*4}
s_mov_b32 s19, 0x20000
s_mov_b32 s22, {WS_END}
s_mov_b32 s23, 0x20000
s_movk_i32 s24, 21400
s_movk_i32 s25, -98
v_mov_b32 v5, 1
v_lshlrev_b32 v6, 24, v0
s_waitcnt lgkmcnt(0)
s_mov_b32 s12, s6
s_mov_b32 s13, s7
s_mov_b32 s16, s4
s_mov_b32 s17, s5
buffer_load_dwordx4 v[8:11], v2, s[12:15], 0 offen
buffer_load_dwordx4 v[12:15], v2, s[16:19], 0 offen
s_mov_b32 s20, s8
s_mov_b32 s21, s9
v_cmp_gt_u32 vcc, s14, v2
s_mov_b32 s26, {1<<22}
s_mov_b32 s27, {2<<22}
s_mov_b32 s28, {3<<22}
v_and_b32 v7, 63, v0
v_lshlrev_b32 v7, 4, v7
s_barrier
s_and_saveexec_b64 s[30:31], vcc
s_waitcnt vmcnt(1)
""")
    for i in range(4): a(f"v_mul_u32_u24 v{16+i}, s24, v{8+i}")
    for i in range(4): a(f"v_lshrrev_b32 v{16+i}, 21, v{16+i}")
    for i in range(4): a(f"v_lshlrev_b32 v{20+i}, 2, v{16+i}\nds_add_rtn_u32 v{24+i}, v{20+i}, v5")
    for i in range(4): a(f"v_mad_i32_i24 v{8+i}, v{16+i}, s25, v{8+i}")
    a("s_waitcnt vmcnt(0)")
    for i in range(4): a(f"v_lshl_or_b32 v{8+i}, v{8+i}, 15, v{12+i}")
    a("v_or_b32 v8, v8, v6")
    for i in range(1,4): a(f"v_or3_b32 v{8+i}, v{8+i}, v6, s{25+i}")
    a("""
s_mov_b64 exec, s[30:31]
s_waitcnt lgkmcnt(0)
s_barrier
ds_read_b128 v[12:15], v7
s_waitcnt lgkmcnt(0)
v_add_u32 v16, v12, v13
v_add3_u32 v16, v16, v14, v15
v_mov_b32 v17, v16
s_nop 1
v_add_u32_dpp v17, v17, v17 row_shr:1 row_mask:0xf bank_mask:0xf bound_ctrl:0
s_nop 1
v_add_u32_dpp v17, v17, v17 row_shr:2 row_mask:0xf bank_mask:0xf bound_ctrl:0
s_nop 1
v_add_u32_dpp v17, v17, v17 row_shr:4 row_mask:0xf bank_mask:0xf bound_ctrl:0
s_nop 1
v_add_u32_dpp v17, v17, v17 row_shr:8 row_mask:0xf bank_mask:0xf bound_ctrl:0
s_nop 1
v_add_u32_dpp v17, v17, v17 row_bcast:15 row_mask:0xa bank_mask:0xf
s_nop 1
v_add_u32_dpp v17, v17, v17 row_bcast:31 row_mask:0xc bank_mask:0xf
v_sub_u32 v28, v17, v16
v_add_u32 v29, v28, v12
v_add_u32 v30, v29, v13
v_add_u32 v31, v30, v14
ds_write_b128 v7, v[28:31] offset:1024
""")
    for i in range(4): a(f"ds_read_b32 v{16+i}, v{20+i} offset:1024")
    for i in range(4): a(f"v_lshl_or_b32 v{12+i}, v{12+i}, 16, v{28+i}")
    a(f"""
s_lshl_b32 s11, s3, 10
s_add_u32 s11, s11, {WS_OFF}
v_add_u32 v7, s11, v7
v_cmp_gt_u32 s[32:33], 64, v0
s_mov_b64 exec, s[32:33]
buffer_store_dwordx4 v[12:15], v7, s[20:23], 0 offen
s_mov_b64 exec, vcc
s_waitcnt lgkmcnt(0)
""")
    for i in range(4): a(f"v_add_lshl_u32 v{16+i}, v{16+i}, v{24+i}, 2\nds_write_b32 v{16+i}, v{8+i} offset:2048")
    a(f"""
s_mov_b64 exec, s[30:31]
s_waitcnt lgkmcnt(0)
s_barrier
ds_read_b128 v[12:15], v1 offset:2048
v_add_u32 v2, {WS_REC}, v2
s_waitcnt lgkmcnt(0)
buffer_store_dwordx4 v[12:15], v2, s[20:23], 0 offen
""")
    RT1()
    a(f"""
s_endpgm
K1_W:
s_load_dwordx2 s[4:5], s[0:1], 40
s_load_dwordx2 s[6:7], s[0:1], 56
s_load_dwordx2 s[8:9], s[0:1], 80
v_lshrrev_b32 v1, 6, v0
v_and_b32 v2, 31, v0
v_bfe_u32 v3, v0, 5, 1
v_readfirstlane_b32 s3, v1
s_lshl_b32 s10, s2, 2
s_add_u32 s10, s10, s3
s_cmp_ge_u32 s10, {NWF}
s_cbranch_scc1 K1_END
; s10=f  s11=group(f>>5) s24=s s25=b
s_lshr_b32 s11, s10, 5
s_bfe_u32 s24, s10, 0x30002
s_and_b32 s25, s10, 3
v_and_b32 v4, 0x13, v2
v_and_b32 v5, 4, v2
v_lshl_or_b32 v4, v5, 1, v4
v_and_b32 v5, 8, v2
v_lshrrev_b32 v5, 1, v5
v_or_b32 v4, v4, v5
s_lshl_b32 s26, s24, 4
s_movk_i32 s27, 2048
s_movk_i32 s28, 512
s_movk_i32 s29, 256
s_mov_b32 s30, {LOG2E}
s_mov_b32 s14, {273*256}
s_mov_b32 s15, 0x20000
s_mov_b32 s18, {WS_W+NWF*1024}
s_mov_b32 s19, 0x20000
s_waitcnt lgkmcnt(0)
s_mov_b32 s12, s4
s_mov_b32 s13, s5
s_mov_b32 s16, s8
s_mov_b32 s17, s9
s_cmp_eq_u32 s11, 1
s_cbranch_scc1 K1_WGO
s_cmp_eq_u32 s11, 0
s_cbranch_scc0 K1_W2
s_add_u32 s26, s26, 128
s_branch K1_WGO
K1_W2:
s_cmp_eq_u32 s11, 4
s_cbranch_scc0 K1_W3
s_movk_i32 s26, 257
s_cmp_eq_u32 s10, 132
s_cbranch_scc0 K1_WGO
s_movk_i32 s26, 256
s_mov_b32 s27, 0
s_mov_b32 s28, 4
s_mov_b32 s29, 2
v_and_b32 v2, 15, v0
v_lshlrev_b32 v2, 3, v2
s_branch K1_WGO
K1_W3:
s_mov_b32 s12, s6
s_mov_b32 s13, s7
s_mov_b32 s14, 65536
v_mov_b32 v2, v4
s_cmp_eq_u32 s11, 2
s_cbranch_scc1 K1_WGO
s_mov_b32 s30, 1.0
s_lshr_b32 s26, s24, 2
s_lshl_b32 s26, s26, 6
s_and_b32 s31, s24, 3
s_lshl_b32 s31, s31, 3
s_add_u32 s26, s26, s31
s_add_u32 s26, s26, 128
s_movk_i32 s27, 1024
s_movk_i32 s28, 256
s_movk_i32 s29, 8192
K1_WGO:
s_lshl_b32 s26, s26, 8
s_lshl_b32 s25, s25, 6
s_add_u32 s26, s26, s25
v_mul_u32_u24 v3, s27, v3
v_lshl_add_u32 v3, v2, 1, v3
""")
    for i in range(4):
        a(f"""buffer_load_ushort v{8+2*i}, v3, s[12:15], s26 offen
s_add_u32 s31, s26, s29
buffer_load_ushort v{9+2*i}, v3, s[12:15], s31 offen
s_add_u32 s26, s26, s28""")
    a(f"""
s_lshl_b32 s10, s10, 10
s_add_u32 s10, s10, {WS_W}
v_and_b32 v1, 63, v0
v_lshlrev_b32 v1, 4, v1
v_add_u32 v1, s10, v1
s_waitcnt vmcnt(0)
""")
    for i in range(8): a(f"v_lshlrev_b32 v{8+i}, 16, v{8+i}")
    for i in range(8): a(f"v_mul_f32 v{8+i}, s30, v{8+i}")
    for i in range(4): a(f"v_cvt_pk_bf16_f32 v{16+i}, v{8+2*i}, v{9+2*i}")
    a("""
buffer_store_dwordx4 v[16:19], v1, s[16:19], 0 offen
""")
    RT1()
    a("K1_END:")
    check(a.L,"k1")
    return kernel("k1_kernel", a, 32)
K1_LDS=2048+4096
if __name__=="__main__":
    print(len(k1()))
```

```python
from asmlib import *
import k1 as K1
N=25000; E=400000; NB=98; CAP=1792
WS_W,WS_REC,WS_OFF,WS_END=K1.WS_W,K1.WS_REC,K1.WS_OFF,K1.WS_END
PD=0; REC=1568; CNT=REC+CAP*16; BASE=CNT+512; SC=BASE+576; TRASH=SC+32
SRC=REC+(CAP+96)*16; TB=SRC+CAP*2; WD=TB+128; AT=WD+256; ZR=AT+98*264; SB=ZR+256; MT=SB+8192; FX=MT+101*272; LEND=FX+16
STG=98304; LDS=163840; ZF0=LEND-9*4096
assert LEND<=STG and TRASH+272<=SRC and ZF0%16==0 and MT%16==0 and ZF0<=ZR and REC==98*16
H=4; EA=8; POS=12; WS=16; OUT=20; WX=24
sN0=28; sNN=29; sW=30; sR0=31; sNT=32; sM=33; sCap=34; sNP=35; sK=36; sk=37; sEv=38; sTF=39; sTW=40
sNb=41; sNbF=42; sKm1=43; sKh=44; sKe=45; sM0=46; sCEA=50; sC256=51; sNeg10=52; sNeg01=53; sNRH=54; sNRE=55
sT=56
sMask=60
sFM=60; sFP=62; sXM=64; sOne10=65; sOne01=66
sInit=74; sB=75; sU=76
sTS=84
NRH=N*256+3072; NRE=E*32
DX=0; DY=32; D2=64; T_=128; P_=160; FT=176
aAh=192; cDma=200; vSrc=208; vRec=212; vPd=216; vEid=219; vPs=220; vDA=222; vWx=224
aRec=228; aSrc=229; aS=230; cSc=231; aSc=232; vOH=234; mulL=235; vX=236; vInc=237; vH16=238; aPB=239; aPS=240
vS16=241; vN8=242; cAW0=243; cAW1=244; cMT=245; cPT=246; vFL=247; vB=248; vT=254; vEA=255
aW2=0; aW3=128; aAW=144; aH=160; aHL=192; aE=224; aOH=232; aSf=236; aZ=244; aSel=248
MF="v_mfma_f32_32x32x16_bf16"
def mf(d,A,B,c=None,dk="v"):
    return f"{MF} {vr(d,16,dk)}, {A}, {B}, {vr(d,16,dk) if c is None else c}"
def scan(a,regs,op="add"):
    ins={"add":"v_add_u32_dpp","max":"v_max_u32_dpp"}[op]
    steps=["row_shr:1 row_mask:0xf bank_mask:0xf bound_ctrl:0","row_shr:2 row_mask:0xf bank_mask:0xf bound_ctrl:0",
           "row_shr:4 row_mask:0xf bank_mask:0xf bound_ctrl:0","row_shr:8 row_mask:0xf bank_mask:0xf bound_ctrl:0",
           "row_bcast:15 row_mask:0xa bank_mask:0xf","row_bcast:31 row_mask:0xc bank_mask:0xf"]
    for s in steps:
        if len(regs)<3: a(f"s_nop {2-len(regs)}")
        for r in regs: a(f"{ins} v{r}, v{r}, v{r} {s}")

def cost(l):
    op=l.split()[0]
    if op.startswith(TRANS): return 8
    if op.startswith("v_mfma"): return 8
    return 4
def sched(ph1,mid,ph2,end,mfs,n1):
    out=[]
    def phase(ops,ms):
        ops=list(ops)
        tot=sum(cost(o) for o in ops)+sum(sum(cost(x) for x in m[1])+sum(cost(x) for x in m[2]) for m in ms)-sum(cost(x) for x in ms[0][2])
        n=len(ms); done=0
        for i,(m,post,pre) in enumerate(ms):
            out.extend(pre); out.append(m); out.extend(post)
            g=sum(cost(x) for x in post)
            if i+1<n: g+=sum(cost(x) for x in ms[i+1][2])
            tgt=(tot-done)/(n-i)
            while ops and (i+1==n or g<24 or g+cost(ops[0])/2<=tgt):
                o=ops.pop(0); out.append(o); g+=cost(o)
            done+=g
        assert not ops
    phase(ph1,mfs[:n1]); out.extend(mid); phase(ph2,mfs[n1:]); out.extend(end)
    return out
def spine(D):
    cvt=[f"v_cvt_pk_bf16_f32 v{P_+j}, v{T_+2*j}, v{T_+2*j+1}" for j in range(16)]
    ex=[f"v_exp_f32 v{T_+i}, v{D+i}" for i in range(32)]
    ad=[f"v_pk_add_f32 {vr(T_+2*j,2)}, {vr(T_+2*j,2)}, 1.0 op_sel_hi:[1,0]" for j in range(16)]
    rc=[f"v_rcp_f32 v{T_+i}, v{T_+i}" for i in range(32)]
    mu=[f"v_pk_mul_f32 {vr(T_+2*j,2)}, {vr(D+2*j,2)}, {vr(T_+2*j,2)}" for j in range(16)]
    return cvt,ex,ad,rc,mu
def mainmf(D,b0,epar):
    W=lambda s,i: mf(D+16*i, ar(aH+4*s,4), ar(aW2+4*(4*s+b0+i),4), "0" if s==0 else None)
    Ee=lambda i: mf(D+16*i, ar(aE+4*epar,4), ar(aW3+4*(b0+i),4))
    O=lambda i: mf(D+16*i, ar(aOH,4), ar(aAW+4*(b0+i),4))
    return W,Ee,O
def seg(b0,s,i): return mf(D2+16*(b0+i), ar(aSf+4*s,4), vr(P_+8*i+4*s,4))
def phaseB(ps,pd,s16,addr,off,tb=vB):
    return [f"v_lshlrev_b32 v{tb}, 4, v{s16}",
      f"v_alignbit_b32 v{tb+1}, v{ps+1}, v{ps}, v{tb}",
      f"v_lshrrev_b32 v{tb+2}, v{tb}, v{ps+1}",
      f"v_dot2_f32_bf16 v{tb+3}, v{tb+1}, s{sNeg10}, v{pd}",
      f"v_dot2_f32_bf16 v{tb+4}, v{tb+1}, s{sNeg01}, v{pd+1}",
      f"v_dot2_f32_bf16 v{tb+5}, v{tb+2}, s{sNeg10}, v{pd+2}",
      f"v_mul_f32 v{tb}, v{tb+3}, v{tb+3}",
      f"v_cvt_pk_bf16_f32 v{tb+1}, v{tb+3}, v{tb+4}",
      f"v_fmac_f32 v{tb}, v{tb+4}, v{tb+4}",
      f"v_fmac_f32 v{tb}, v{tb+5}, v{tb+5}",
      f"v_cvt_pk_bf16_f32 v{tb+2}, v{tb+5}, v{tb}",
      f"ds_write_b32 v{addr}, v{tb+1} offset:{off}",
      f"ds_write_b16 v{addr}, v{tb+2} offset:{off+4}",
      f"ds_write_b16_d16_hi v{addr}, v{tb+2} offset:{off+8}"]
def dma(i,src,da):
    return (f"v_mad_u32_u16 v{da}, v{src+(i>>1)}, s{sC256}, v{cDma+i} op_sel:[{i&1},0,0,0]",
            f"buffer_load_dwordx4 v{da}, {sr(H,4)}, 0 offen offset:{1024*(i&3)} lds")
def slotA(p):
    cvt,ex,ad,rc,mu=spine(DX)
    W,Ee,O=mainmf(DY,2,p)
    buf=8192*(1-p)
    rd=lambda s: f"ds_read_b128 {ar(aH+4*s,4)}, v{aAh+s} offset:{buf}"
    tr=lambda j: f"ds_read_b64_tr_b16 {ar(aSf+2*j,2)}, v{aS} offset:{512*j}"
    M=[W(0,0),W(0,1),W(1,0),W(1,1),W(2,0),W(2,1),seg(2,0,0),seg(2,0,1),W(3,0),W(3,1),seg(2,1,0),seg(2,1,1),
       W(4,0),W(4,1),W(5,0),W(5,1),W(6,0),W(6,1),W(7,0),W(7,1),Ee(0),Ee(1),O(0),O(1)]
    post=[[] for _ in M]; pre=[[] for _ in M]
    post[0]+=[f"ds_read_b128 {vr(vRec,4)}, v{aRec} offset:{512*(1+p)}"]
    post[1]+=["s_waitcnt vmcnt(9)",rd(0)]
    post[2]+=[f"ds_read_b32 v{vEid}, v{aRec} offset:{512*(2+p)+12}"]
    post[3]+=[rd(1)]
    post[4]+=[f"ds_read_b128 {vr(vSrc,4)}, v{aSrc} offset:{192+64*p}"]
    post[5]+=[rd(2)]
    post[7]+=[tr(0),tr(1)]
    post[9]+=[rd(3)]
    post[11]+=[tr(2),tr(3)]
    post[13]+=[rd(4)]; post[15]+=[rd(5)]; post[17]+=[rd(6)]; post[19]+=[rd(7)]
    if p==0:
        B=phaseB(vPs,vPd,vS16,aPB,1024)
        post[6]+=B[0:3]; post[8]+=B[3:6]; post[10]+=B[6:8]; post[12]+=B[8:11]
        post[14]+=B[11:12]; post[16]+=B[12:14]
        post[18]+=[f"ds_read_u16 v{vS16}, v{aPS} offset:256"]
        post[20]+=[f"ds_read_u16 v{vN8}, v{aPB} offset:{2048+10}"]
    else:
        post[6]+=[f"v_mul_u32_u24 v{vB}, 6, v{vS16}",f"v_and_b32 v{vB}, -4, v{vB}",f"v_lshlrev_b32 v{vB+1}, 1, v{vN8}"]
        post[8]+=[f"buffer_load_dwordx2 {vr(vPs,2)}, v{vB}, {sr(POS,4)}, 0 offen"]
        post[10]+=[f"ds_read_b96 {vr(vPd,3)}, v{vB+1} offset:{PD}"]
        post[12]+=[f"v_add_u32 v{aRec}, 1024, v{aRec}",f"v_add_u32 v{aSrc}, 128, v{aSrc}"]
        post[14]+=[f"v_add_u32 v{aPB}, 1024, v{aPB}",f"v_add_u32 v{aPS}, 128, v{aPS}"]
    post[21]+=[f"s_add_u32 s{sk}, s{sk}, 1"]
    return sched(cvt+ex,ad,rc,mu,list(zip(M,post,pre)),13)
def slotB(p):
    cvt,ex,ad,rc,mu=spine(DY)
    W,Ee,O=mainmf(DX,0,1-p)
    M=[W(0,0),W(0,1),W(1,0),W(1,1),W(2,0),W(2,1),seg(0,0,0),seg(0,0,1),W(3,0),W(3,1),seg(0,1,0),seg(0,1,1),
       W(4,0),W(4,1),W(5,0),W(5,1),W(6,0),W(6,1),W(7,0),W(7,1),Ee(0),Ee(1),O(0),O(1)]
    post=[[] for _ in M]; pre=[[] for _ in M]
    post[0]+=[f"ds_write_b64 v{aSc+p}, {ar(aZ,2)}",
              f"v_dot2_u32_u16 v{vEA}, v{vEid}, s{sCEA}, v{vH16}",
              f"v_mad_u32_u16 v{vOH}, v{vRec+2}, v{mulL}, v{vX} op_sel:[1,0,0,0]"]
    post[1]+=[f"ds_read_b128 {ar(aOH,4)}, v{vOH}",
              f"v_mad_u32_u16 v{aSc+1-p}, v{vRec+2}, 1, v{cSc} op_sel:[1,0,0,0]",
              f"s_cmp_lt_i32 s{sk}, s{sKe}",f"s_cselect_b32 s{EA+2}, s{sNRE}, 0"]
    post[2]+=[f"ds_write_b64 v{aSc+1-p}, {vr(vRec,2)}",
              f"s_cmp_lt_i32 s{sk}, s{sKh}",f"s_cselect_b32 s{H+2}, s{sNRH}, 0"]
    d=[dma(i,vSrc,vDA+(i&1)) for i in range(8)]
    post[3]+=[f"buffer_load_dwordx4 {ar(aE+4*p,4)}, v{vEA}, {sr(EA,4)}, 0 offen",
              f"s_mov_b32 m0, s{sM0+2*(1-p)}",d[0][0]]
    for i in range(8):
        post[4+i]+=[d[i][1]]
        if i==3: post[4+i]+=[f"s_mov_b32 m0, s{sM0+2*(1-p)+1}"]
        if i<7: post[4+i]+=[d[i+1][0]]
    post[12]+=[f"v_add_u32 v{vX}, v{vInc}, v{vX}"]
    pre[20]+=[f"s_waitcnt vmcnt({17+p}) lgkmcnt(0)"]
    return sched(cvt+ex,ad,rc,mu,list(zip(M,post,pre)),14)

def k2(dbg=None,ts=False,opt=()):
    a=Asm()
    tsn=[0]
    def TS():
        if ts:
            a(f"s_memtime {sr(sU+6,2)}\ns_waitcnt lgkmcnt(0)\ns_mov_b32 s{sTS+tsn[0]}, s{sU+6}"); tsn[0]+=1
    def dump(tag):
        if dbg!=tag: return
        a(f"""s_waitcnt vmcnt(0) lgkmcnt(0)
s_barrier
s_mul_i32 s{sT}, s2, {LDS}
s_add_u32 s{sT}, s{sT}, 0x400000
s_mov_b32 s{WS+2}, 0x8000000
v_lshlrev_b32 v1, 4, v{vT}
s_mov_b32 s{sT+1}, 0
DUMPL:
ds_read_b128 v[4:7], v1
s_waitcnt lgkmcnt(0)
buffer_store_dwordx4 v[4:7], v1, {sr(WS,4)}, s{sT} offen
v_add_u32 v1, 4096, v1
s_waitcnt vmcnt(0)
s_add_u32 s{sT+1}, s{sT+1}, 1
s_cmp_lt_u32 s{sT+1}, 40
s_cbranch_scc1 DUMPL
s_endpgm""")
    def whdma():
        a(f"v_and_b32 v{vB}, 63, v{vT}\nv_lshlrev_b32 v{vB}, 4, v{vB}\ns_lshl_b32 s{sT}, s{sW}, 14\ns_add_u32 s{sT}, s{sT}, {WS_W+65536}")
        for q in range(4):
            a(f"s_mov_b32 m0, s{sM0+q}")
            if q: a(f"s_add_u32 s{sT}, s{sT}, 4096")
            else: a("s_nop 0")
            for i in range(4): a(f"buffer_load_dwordx4 v{vB}, {sr(WS,4)}, s{sT} offen offset:{1024*i} lds")
    if "rt" in opt: a("s_memrealtime s[100:101]")
    a(f"""
s_cmp_ge_u32 s2, 256
s_cbranch_scc1 K2_END
s_load_dwordx2 {sr(WS,2)}, s[0:1], 80
s_load_dwordx2 {sr(H,2)}, s[0:1], 0
s_load_dwordx2 {sr(POS,2)}, s[0:1], 8
s_load_dwordx2 {sr(EA,2)}, s[0:1], 16
s_load_dwordx2 {sr(WX,2)}, s[0:1], 48
s_load_dwordx2 {sr(OUT,2)}, s[0:1], 64
v_mov_b32 v{vT}, v0
v_lshrrev_b32 v1, 6, v0
s_and_b32 s{sT}, s2, 7
s_lshl_b32 s{sT}, s{sT}, 5
s_lshr_b32 s{sT+1}, s2, 3
s_add_u32 s{sB}, s{sT}, s{sT+1}
v_readfirstlane_b32 s{sW}, v1
s_mul_i32 s{sN0}, s{sB}, {NB}
s_sub_u32 s{sNN}, {N}, s{sN0}
s_min_u32 s{sNN}, s{sNN}, {NB}
s_mov_b32 s{WS+2}, {WS_END}
s_mov_b32 s{WS+3}, 0x20000
s_mov_b32 s{sNRH}, {NRH}
s_mov_b32 s{H+3}, 0x20000
s_mov_b32 s{sR0}, 0
s_movk_i32 s{sCap}, {CAP}
s_mov_b32 s{sInit}, 0
s_lshl_b32 s{sM0}, s{sW}, 14
s_add_u32 s{sM0}, s{sM0}, {STG}
s_add_u32 s{sM0+1}, s{sM0}, 4096
s_add_u32 s{sM0+2}, s{sM0}, 8192
s_add_u32 s{sM0+3}, s{sM0}, 12288
s_waitcnt lgkmcnt(0)
s_sub_u32 s{H}, s{H}, 3072
s_subb_u32 s{H+1}, s{H+1}, 0
""")
    TS()
    a(f"""
K2_ROUND:
s_lshl_b32 s{sT}, s{sB}, 2
s_add_u32 s{sT}, s{sT}, {WS_OFF}
v_lshl_add_u32 v2, v{vT}, 11, s{sT}
v_add_u32 v3, 1024, v2
buffer_load_dword v2, v2, {sr(WS,4)}, 0 offen
buffer_load_dword v3, v3, {sr(WS,4)}, 0 offen
v_and_b32 v4, 63, v{vT}
v_lshlrev_b32 v1, 4, v4
s_lshl_b32 s{sT}, s{sW}, 13
s_mov_b32 s{H+2}, s{sNRH}
""")
    for q in range(4):
        a(f"s_mov_b32 m0, s{sM0+q}")
        a(f"s_add_u32 s{sT+1}, s{sT}, {WS_W+(q&1)*4096+(q>>1)*32768}")
        for i in range(4): a(f"buffer_load_dwordx4 v1, {sr(WS,4)}, s{sT+1} offen offset:{1024*i} lds")
    a(f"""
v_and_b32 v5, 31, v4
v_lshrrev_b32 v6, 5, v4
v_lshl_add_u32 v7, s{sW}, 5, v5
v_lshlrev_b32 v{vH16}, 4, v6
v_add_u32 v8, s{sN0}, v7
v_lshl_add_u32 v8, v8, 8, v{vH16}
v_add_u32 v8, 3072, v8
""")
    for s in range(8): a(f"buffer_load_dwordx4 {ar(aHL+4*s,4)}, v8, {sr(H,4)}, 0 offen offset:{32*s}")
    a(f"s_mov_b32 s{sT}, {WS_W+128*1024}")
    for b in range(4): a(f"buffer_load_dwordx4 {ar(aW3+4*b,4)}, v1, {sr(WS,4)}, s{sT} offen offset:{1024*b}")
    a(f"""
s_mov_b32 s{POS+2}, {N*6}
s_mov_b32 s{POS+3}, 0x20000
s_movk_i32 s{WX+2}, 256
s_mov_b32 s{WX+3}, 0x20000
v_add_u32 v9, s{sN0}, v{vT}
v_mul_u32_u24 v9, 6, v9
v_mov_b32 v12, 0
v_mov_b32 v13, 0
v_mov_b32 v14, 0
v_mov_b32 v15, 0
buffer_load_short_d16_hi v12, v9, {sr(POS,4)}, 0 offen
buffer_load_short_d16_hi v13, v9, {sr(POS,4)}, 0 offen offset:2
buffer_load_short_d16_hi v14, v9, {sr(POS,4)}, 0 offen offset:4
v_lshlrev_b32 v10, 1, v5
""")
    for b in range(4): a(f"v_mov_b32 v{vWx+b}, 0")
    for b in range(4): a(f"buffer_load_short_d16_hi v{vWx+b}, v10, {sr(WX,4)}, 0 offen offset:{64*b}")
    a(f"""
s_mov_b32 s{sT}, {WS_W+132*1024}
buffer_load_dwordx4 v[16:19], v1, {sr(WS,4)}, s{sT} offen
""")
    TS()
    a(f"""
v_mov_b32 v20, 0
v_mov_b32 v21, 0
v_mov_b32 v22, 0
v_mov_b32 v23, 0
v_lshlrev_b32 v11, 4, v{vT}
ds_write_b128 v11, v[20:23] offset:{REC}
ds_write_b128 v11, v[20:23] offset:{REC+4096}
v_lshlrev_b32 v24, 3, v4
ds_write_b64 v24, v[20:21] offset:{CNT}
s_cmp_lg_u32 s{sInit}, 0
s_cbranch_scc1 K2_NOZ
s_mov_b32 s{sInit}, 1
v_add_u32 v25, {ZF0}, v11
""")
    for i in range(9): a(f"ds_write_b128 v25, v[20:23] offset:{4096*i}")
    a(f"""
K2_NOZ:
s_mov_b32 s{EA+3}, 0x20000
s_mov_b32 s{OUT+2}, {N*262}
s_mov_b32 s{OUT+3}, 0x20000
s_mov_b32 s{sCEA}, {32|(32768<<16)}
s_movk_i32 s{sC256}, 256
s_mov_b32 s{sNeg10}, 0xBF80
s_mov_b32 s{sNeg01}, 0xBF800000
s_mov_b32 s{sNRE}, {NRE}
v_lshrrev_b32 v26, 3, v5
v_and_b32 v27, 3, v5
v_cmp_eq_u32 vcc, v26, v27
v_lshlrev_b32 v26, 2, v5
v_and_b32 v27, 16, v26
v_mov_b32 v28, 0x3F80
v_lshlrev_b32 v28, v27, v28
v_cndmask_b32 v28, 0, v28, vcc
ds_write_b32 v26, v28 offset:{TB}
v_and_b32 v26, 7, v5
v_lshlrev_b32 v26, 2, v26
v_lshrrev_b32 v27, 3, v5
v_add_lshl_u32 v26, v26, v27, 8
v_and_b32 v27, 15, v5
v_xor_b32 v27, v6, v27
v_lshl_or_b32 v26, v27, 4, v26
v_add_u32 v{aAh}, s{sM0}, v26
""")
    for s in range(1,8): a(f"v_xor_b32 v{aAh+s}, {32*s}, v{aAh}")
    a(f"""
v_and_b32 v26, 15, v4
v_bfe_u32 v27, v4, 4, 1
v_lshlrev_b32 v28, 3, v27
v_xor_b32 v26, v26, v28
v_lshlrev_b32 v26, 4, v26
""")
    for i in range(8): a(f"v_xor_b32 v{cDma+i}, {16*i|(3072-1024*(i&3))}, v26")
    a(f"""
v_bfe_u32 v28, v4, 2, 2
v_and_b32 v29, 3, v4
v_lshlrev_b32 v29, 3, v29
v_lshl_or_b32 v29, v27, 5, v29
v_lshl_add_u32 v30, v6, 2, v28
v_lshl_add_u32 v30, v30, 6, v29
s_lshl_b32 s{sT}, s{sW}, 11
s_add_u32 s{sT}, s{sT}, {SB}
v_add_u32 v{aS}, s{sT}, v30
v_lshl_add_u32 v{cSc}, v5, 6, s{sT}
v_mov_b32 v{aSc+1}, v{cSc}
v_mov_b32 v{aSc}, v{cSc}
v_cmp_eq_u32 vcc, 0, v6
v_cmp_eq_u32 {sr(sU,2)}, 0, v28
v_lshlrev_b32 v{vInc}, 9, v6
v_cndmask_b32 v{mulL}, 0, 2, vcc
v_mul_u32_u24 v30, 264, v28
v_add3_u32 v30, v30, v29, s{sC256}
v_add_u32 v30, {AT-256}, v30
v_mov_b32 v31, {ZR}
v_cndmask_b32 v{cAW0}, v31, v30, vcc
v_add_u32 v30, {4*264}, v30
v_add_u32 v29, {WD}, v29
v_cndmask_b32 v31, v31, v29, {sr(sU,2)}
v_cndmask_b32 v{cAW1}, v31, v30, vcc
v_lshrrev_b32 v30, 2, v5
v_mul_u32_u24 v30, 256, v30
v_lshl_add_u32 v30, v5, 2, v30
v_add_u32 v{cPT}, {MT+256}, v30
v_lshlrev_b32 v30, 2, v5
v_mul_u32_u24 v31, 272, v6
v_add_u32 v31, {MT}, v31
v_add_u32 v{cMT}, v31, v30
v_lshlrev_b32 v30, 2, v6
v_sub_u32 v30, v5, v30
v_subrev_u32 v31, 16, v30
""")
    for f in range(2):
        e=30+f
        a(f"""v_and_b32 v34, -12, v{e}
v_cmp_eq_u32 vcc, 0, v34
v_and_b32 v34, 3, v{e}
v_bfe_u32 v35, v{e}, 3, 1
v_lshl_or_b32 v34, v35, 2, v34
v_lshlrev_b32 v34, 4, v34
v_add_u32 v34, {TB}, v34
v_mov_b32 v35, {ZR}
v_cndmask_b32 v{32+f}, v35, v34, vcc""")
    a(f"""
v_mul_u32_u24 v34, 264, v7
v_lshl_add_u32 v34, v6, 3, v34
v_add_u32 v34, {AT}, v34
v_cmp_gt_u32 vcc, {NB}, v7
v_mov_b32 v35, {TRASH}
s_lshl_b32 s{sT}, s{sW}, 2
v_cndmask_b32 v34, v35, v34, vcc
v_mov_b32 v35, s{sT}
""")
    TS()
    a(f"""
s_waitcnt vmcnt(36)
""")
    TS()
    a(f"""
v_lshrrev_b32 v36, 16, v2
v_lshrrev_b32 v37, 16, v3
v_add_u32 v38, v36, v37
v_mov_b32 v39, v38
""")
    scan(a,[39])
    a(f"""
s_mov_b32 exec_lo, 0
s_brev_b32 exec_hi, 1
ds_write_b32 v35, v39 offset:{SC}
s_mov_b64 exec, -1
v_mov_b32 v40, 0
s_waitcnt lgkmcnt(0)
s_barrier
ds_read_b128 v[44:47], v40 offset:{SC}
ds_read_b128 {ar(aSel,4)}, v32
ds_read_b128 {ar(aSel+4,4)}, v33
ds_read_b128 {ar(aZ,4)}, v40 offset:{ZR}
ds_read_b128 {ar(aSf,4)}, v40 offset:{ZR}
ds_read_b128 {ar(aSf+4,4)}, v40 offset:{ZR}
v_sub_u32 v39, v39, v38
v_and_b32 v2, 0xffff, v2
v_and_b32 v3, 0xffff, v3
v_lshl_add_u32 v2, v{vT}, 11, v2
v_lshl_add_u32 v3, v{vT}, 11, v3
v_add_u32 v3, 1024, v3
s_waitcnt lgkmcnt(5)
v_readfirstlane_b32 s{sU}, v44
v_readfirstlane_b32 s{sU+1}, v45
v_readfirstlane_b32 s{sU+2}, v46
v_readfirstlane_b32 s{sU+3}, v47
s_add_u32 s{sU+1}, s{sU+1}, s{sU}
s_add_u32 s{sU+2}, s{sU+2}, s{sU+1}
s_add_u32 s{sNT}, s{sU+3}, s{sU+2}
s_cmp_eq_u32 s{sW}, 1
s_cselect_b32 s{sT}, s{sU}, 0
s_cmp_eq_u32 s{sW}, 2
s_cselect_b32 s{sT}, s{sU+1}, s{sT}
s_cmp_eq_u32 s{sW}, 3
s_cselect_b32 s{sT}, s{sU+2}, s{sT}
s_sub_u32 s{sT}, s{sT}, s{sR0}
s_sub_u32 s{sM}, s{sNT}, s{sR0}
s_min_u32 s{sM}, s{sM}, s{sCap}
v_add_u32 v39, s{sT}, v39
v_add_u32 v40, v39, v36
v_add_u32 v41, v40, v37
v_sub_u32 v2, v2, v39
v_sub_u32 v3, v3, v40
v_min_i32 v41, s{sM}, v41
v_min_i32 v42, s{sM}, v40
v_max_i32 v39, 0, v39
v_max_i32 v40, 0, v40
v_lshlrev_b32 v39, 2, v39
v_lshlrev_b32 v40, 2, v40
v_lshlrev_b32 v41, 2, v41
v_lshlrev_b32 v42, 2, v42
v_cmp_lt_i32 {sr(sU,2)}, v39, v42
v_cmp_lt_i32 {sr(sU+2,2)}, v40, v41
K2_MK:
s_mov_b64 exec, {sr(sU,2)}
ds_write_b32 v39, v2 offset:{REC}
s_mov_b64 exec, {sr(sU+2,2)}
ds_write_b32 v40, v3 offset:{REC}
s_mov_b64 exec, -1
v_or_b32 v39, 0xff, v39
v_or_b32 v40, 0xff, v40
v_add_u32 v39, 1, v39
v_add_u32 v40, 1, v40
v_cmp_lt_i32 {sr(sU,2)}, v39, v42
v_cmp_lt_i32 {sr(sU+2,2)}, v40, v41
s_or_b64 vcc, {sr(sU,2)}, {sr(sU+2,2)}
s_cbranch_scc1 K2_MK
v_lshlrev_b32 v39, 2, v{vT}
s_waitcnt lgkmcnt(0)
s_barrier
""")
    TS()
    IDX=40; RC=48
    for j in range(7): a(f"ds_read_b32 v{IDX+j}, v39 offset:{REC+1024*j}")
    for j in range(7):
        a(f"s_sub_i32 s{sT}, s{sM}, {256*j}\nv_cmp_gt_i32 {sr(sMask+2*j,2)}, s{sT}, v{vT}")
    a(f"s_mov_b32 s{sT}, {WS_REC}\ns_waitcnt lgkmcnt(0)")
    scan(a,[IDX+j for j in range(7)],"max")
    for j in range(7):
        if j: a(f"v_add_u32 v39, {256*j}, v{vT}\nv_add_lshl_u32 v{IDX+j}, v{IDX+j}, v39, 2")
        else: a(f"v_add_lshl_u32 v{IDX}, v{IDX}, v{vT}, 2")
        a(f"buffer_load_dword v{RC+j}, v{IDX+j}, {sr(WS,4)}, s{sT} offen")
    TS()
    a(f"""
v_cmp_gt_u32 vcc, {NB}, v{vT}
v_cmp_gt_u32 {sr(sU,2)}, 16, v{vT}
s_mov_b32 s{sT}, 0xbf317218
v_add_u32 v35, {STG}, v1
s_waitcnt vmcnt(7)
s_mov_b64 exec, vcc
ds_write_b128 v11, v[12:15] offset:{PD}
s_mov_b64 exec, {sr(sU,2)}
ds_write_b128 v11, v[16:19] offset:{WD}
s_mov_b64 exec, -1
""")
    for b in range(4): a(f"v_mul_f32 v{vWx+b}, s{sT}, v{vWx+b}")
    a("s_waitcnt lgkmcnt(0)\ns_barrier")
    TS()
    order=[(s,b) for bp in (0,2) for s in range(8) for b in (bp,bp+1)]
    woff=lambda f,x: (f>>3)*16384+(f&7)*1024+x
    q=[]
    def dsi(l,tag): a(l); q.append(tag)
    def dsw(tag):
        n=len(q)-1-q.index(tag); a(f"s_waitcnt lgkmcnt({min(n,15)})")
    rd1=lambda i: dsi(f"ds_read_b128 {vr(128+4*(i&15),4)}, v35 offset:{woff(4*order[i][0]+order[i][1],8192)}",("w1",i))
    for i in range(4): rd1(i)
    wr=[]
    def atw(b):
        L=[]
        for qq in range(4):
            t=56+2*(qq&1)
            L+=[f"v_cvt_pk_bf16_f32 v{t}, v{64+16*b+4*qq}, v{65+16*b+4*qq}",f"v_cvt_pk_bf16_f32 v{t+1}, v{66+16*b+4*qq}, v{67+16*b+4*qq}",
                f"ds_write_b64 v34, {vr(t,2)} offset:{64*b+16*qq}"]
        return L
    pend=atw(0)+atw(1)
    for i,(s,b) in enumerate(order):
        dsw(("w1",i))
        a(mf(64+16*b, vr(128+4*(i&15),4), ar(aHL+4*s,4), "0" if s==0 else None))
        if i+4<32: rd1(i+4)
        dsi(f"ds_read_b128 {ar(aW2+4*i,4)}, v35 offset:{woff(i,0)}",("w2",i))
        if i>=20:
            for _ in range(3):
                if pend:
                    l=pend.pop(0)
                    if l.startswith("ds_"): dsi(l,("w",l))
                    else: a(l)
    assert not pend
    ND=12; RK=20; WP=128
    a("v_mov_b32 v27, 1\ns_waitcnt vmcnt(0)")
    for j in range(7): a(f"v_lshrrev_b32 v{ND+j}, 13, v{RC+j}\nv_and_b32 v{ND+j}, 0x1fc, v{ND+j}")
    for j in range(7): a(f"s_mov_b64 exec, {sr(sMask+2*j,2)}\nds_add_rtn_u32 v{RK+j}, v{ND+j}, v27 offset:{CNT}")
    a("s_mov_b64 exec, -1")
    for l in atw(2)+atw(3): a(l)
    for j in range(7):
        a(f"""v_lshlrev_b32 v{WP+2*j}, 17, v{ND+j}
v_lshlrev_b32 v{WP+2*j+1}, 4, v{IDX+j}
v_lshrrev_b32_sdwa v{WP+2*j+1}, 22, v{RC+j} dst_sel:WORD_0 dst_unused:UNUSED_PRESERVE src0_sel:DWORD src1_sel:DWORD
v_and_b32 v{144+j}, 0x7fff, v{RC+j}""")
    a(f"""
v_lshlrev_b32 v28, 3, v4
v_mov_b32 v30, 0
v_mov_b32 v31, 1.0
s_waitcnt lgkmcnt(0)
s_barrier
""")
    TS()
    a(f"""
ds_read_b64 v[36:37], v28 offset:{CNT}
v_add_u32 v29, {BASE}, v28
s_waitcnt lgkmcnt(0)
v_add_u32 v38, v36, v37
v_mov_b32 v39, v38
""")
    scan(a,[39])
    a(f"""
v_sub_u32 v56, v39, v38
v_add_u32 v56, {NB}, v56
v_add_u32 v57, v56, v36
ds_write_b64 v28, v[56:57] offset:{BASE}
v_readlane_b32 s{sNP}, v39, 63
ds_read2_b32 v[58:59], v29 offset0:7 offset1:8
""")
    for j in range(7): a(f"ds_read_b32 v{IDX+j}, v{ND+j} offset:{BASE}")
    a(f"""
s_cmp_eq_u32 s{sNP}, 0
s_cbranch_scc1 K2_K0
s_add_u32 s{sT}, s{sNP}, {NB}
s_waitcnt lgkmcnt(7)
v_sub_u32 v60, v58, v56
v_sub_u32 v61, v59, v57
v_cmp_gt_u32 {sr(sU,2)}, 31, v60
v_cmp_gt_u32 {sr(sU+2,2)}, s{sT}, v58
v_cmp_gt_u32 {sr(sU+4,2)}, 31, v61
v_cmp_gt_u32 vcc, s{sT}, v59
s_and_b64 {sr(sU,2)}, {sr(sU,2)}, {sr(sU+2,2)}
s_and_b64 vcc, vcc, {sr(sU+4,2)}
s_or_b64 vcc, vcc, {sr(sU,2)}
s_and_b32 vcc_hi, vcc_hi, 0x1ffff
s_cmp_lg_u64 vcc, 0
s_cbranch_scc1 K2_PAD
K2_PADRET:
v_cmp_lt_u32 vcc, 0, v38
s_add_u32 s{sU+4}, s{sNP}, 31
s_lshr_b32 s{sU+4}, s{sU+4}, 5
s_flbit_i32_b64 s{sT}, vcc
s_sub_u32 s{sT}, 63, s{sT}
v_readlane_b32 s{sT+1}, v37, s{sT}
s_lshl_b32 s{sT+2}, s{sU+4}, 5
s_sub_u32 s{sT+2}, s{sT+2}, s{sNP}
s_cmp_lg_u32 s{sT+1}, 0
s_addc_u32 s{sT}, s{sT}, s{sT}
v_cmp_gt_u32 vcc, s{sT+2}, v4
s_lshl_b32 s{sT+1}, s{sT}, 19
s_add_u32 s{sT}, s{sT}, s{sN0}
s_add_u32 s{sT+2}, s{sNP}, {NB}
v_mov_b32 v60, 0
v_mov_b32 v61, 0
v_mov_b32 v62, s{sT+1}
v_mov_b32 v63, 0
v_mov_b32 v58, s{sT}
v_add_lshl_u32 v56, v4, s{sT+2}, 4
v_add_lshl_u32 v57, v4, s{sT+2}, 1
s_mov_b64 exec, vcc
ds_write_b128 v56, v[60:63]
ds_write_b16 v57, v58 offset:{SRC-2*NB}
s_mov_b64 exec, -1
s_waitcnt lgkmcnt(2)
""")
    for j in range(7):
        a(f"v_add_lshl_u32 v{ND+j}, v{IDX+j}, v{RK+j}, 4\nv_add_lshl_u32 v{IDX+j}, v{IDX+j}, v{RK+j}, 1")
    for j in range(7):
        a(f"""s_mov_b64 exec, {sr(sMask+2*j,2)}
ds_write2_b64 v{ND+j}, v[30:31], {vr(WP+2*j,2)} offset0:0 offset1:1
ds_write_b16 v{IDX+j}, v{144+j} offset:{SRC-2*NB}""")
    a(f"""
s_mov_b64 exec, -1
s_lshr_b32 s{sT}, s{sU+4}, 2
s_and_b32 s{sT+1}, s{sU+4}, 3
s_mul_i32 s{sT+2}, s{sT}, s{sW}
s_min_u32 s{sT+3}, s{sW}, s{sT+1}
s_add_u32 s{sT+2}, s{sT+2}, s{sT+3}
s_cmp_lt_u32 s{sW}, s{sT+1}
s_addc_u32 s{sK}, s{sT}, 0
s_lshl_b32 s{sT}, s{sT+2}, 9
s_add_u32 s{sT}, s{sT}, {REC}
s_lshl_b32 s{sT+1}, s{sT+2}, 6
s_add_u32 s{sT+1}, s{sT+1}, {SRC}
v_lshl_add_u32 v{aRec}, v5, 4, s{sT}
v_lshl_add_u32 v{aPB}, v4, 4, s{sT}
v_lshl_add_u32 v{aPS}, v4, 1, s{sT+1}
v_and_b32 v2, 48, v4
v_add_u32 v{aSrc}, s{sT+1}, v2
v_mul_u32_u24 v2, 496, v6
v_lshl_add_u32 v2, v5, 9, v2
v_add_u32 v2, s{sT}, v2
v_cmp_eq_u32 vcc, 0, v6
v_mov_b32 v3, {TB}
s_sub_u32 s{sKm1}, s{sK}, 1
v_cndmask_b32 v{vX}, v{aRec}, v3, vcc
s_sub_u32 s{sKe}, s{sK}, 2
s_sub_u32 s{sKh}, s{sK}, 3
s_cmp_eq_u32 s{sK}, 0
s_waitcnt lgkmcnt(0)
s_barrier
s_cbranch_scc1 K2_K0
""")
    TS()
    dump("sort")
    a(f"""
ds_read_u16 v8, v{aPS}
ds_read_b128 v[12:15], v{aSrc}
ds_read_b32 v9, v{aRec} offset:12
ds_read_b128 v[16:19], v{aSrc} offset:64
ds_read_u16 v{vS16}, v{aPS} offset:128
ds_read_u16 v10, v{aPB} offset:10
ds_read_u16 v{vN8}, v{aPB} offset:{1024+10}
ds_read_u16 v{vFL}, v2 offset:10
ds_read_b128 {vr(vSrc,4)}, v{aSrc} offset:128
ds_read_b32 v{vEid}, v{aRec} offset:{512+12}
s_mov_b32 s{EA+2}, s{sNRE}
s_mov_b32 m0, s{sM0}
s_waitcnt lgkmcnt(9)
v_mul_u32_u24 v20, 6, v8
v_and_b32 v20, -4, v20
buffer_load_dwordx2 v[22:23], v20, {sr(POS,4)}, 0 offen
s_waitcnt lgkmcnt(7)
v_dot2_u32_u16 v{vEA}, v9, s{sCEA}, v{vH16}
""")
    for i in range(8):
        d=dma(i,12,vDA+(i&1))
        if i==4: a(f"s_mov_b32 m0, s{sM0+1}")
        a(d[0]); a(d[1])
    a(f"""buffer_load_dwordx4 {ar(aE,4)}, v{vEA}, {sr(EA,4)}, 0 offen
s_cmp_gt_u32 s{sK}, 1
s_cselect_b32 s{H+2}, s{sNRH}, 0
s_mov_b32 m0, s{sM0+2}
s_waitcnt lgkmcnt(3)""")
    for i in range(8):
        d=dma(i,16,vDA+(i&1))
        if i==4: a(f"s_mov_b32 m0, s{sM0+3}")
        a(d[0]); a(d[1])
    a(f"""
v_mul_u32_u24 v20, 6, v{vS16}
v_and_b32 v20, -4, v20
buffer_load_dwordx2 {vr(vPs,2)}, v20, {sr(POS,4)}, 0 offen
v_lshlrev_b32 v10, 1, v10
v_lshlrev_b32 v11, 1, v{vN8}
ds_read_b96 v[24:26], v10 offset:{PD}
ds_read_b96 {vr(vPd,3)}, v11 offset:{PD}
v_cmp_gt_u32 vcc, s{sK}, v5
v_mov_b32 v3, 0xffff
s_mov_b32 s{sk}, -1
s_mov_b32 s{sTF}, -2
s_mov_b32 s{sNb}, 0
""")
    Z=ar(aZ,4)
    for d in (D2,D2+16,D2+32,D2+48,T_,T_+16,DY,DY+16): a(mf(d,Z,Z,"0"))
    a(f"""s_cmp_lg_u32 s{sW}, 0
s_cselect_b32 s{sFM}, -1, 0
s_mov_b32 s{sFM+1}, 0
s_cselect_b32 s{sFP}, 15, 0
s_cselect_b32 s{sFP+1}, 15, 0
s_add_u32 s{sXM}, s{sW}, 97
s_mul_i32 s{sXM}, s{sXM}, 272
s_movk_i32 s{sOne10}, 0x3F80
s_mov_b32 s{sOne01}, 1.0
s_lshl_b32 s{sT}, s{sW}, 2
s_add_u32 s{sT}, s{sT}, {FX}
v_mov_b32 v2, s{sT}
s_waitcnt vmcnt(18) lgkmcnt(0)
v_cndmask_b32 v{vFL}, v3, v{vFL}, vcc
s_mov_b64 exec, 1
ds_write_b32 v2, v{vFL}
s_mov_b64 exec, -1""")
    B=phaseB(22,24,8,aPB,0,tb=vB)
    for l in B[:6]: a(l)
    a("s_nop 1")
    for l in B[6:]: a(l)
    a(f"ds_read_b128 {vr(vRec,4)}, v{aRec}\ns_waitcnt vmcnt(10)")
    for s in range(8): a(f"ds_read_b128 {ar(aH+4*s,4)}, v{aAh+s}")
    TS()
    if "nomem" in opt: a(f"s_mov_b32 s{sNRH}, 0\ns_mov_b32 s{sNRE}, 0")
    if "noea" in opt: a(f"s_mov_b32 s{sNRE}, 0")
    if "noh" in opt: a(f"s_mov_b32 s{sNRH}, 0")
    a("s_waitcnt lgkmcnt(0)\ns_branch K2_NEWWIN")
    A0,A1,B0,B1=slotA(0),slotA(1),slotB(0),slotB(1)
    bnd=f"s_cmp_ge_i32 s{sk}, s{sEv}\ns_waitcnt lgkmcnt(0)\ns_cbranch_scc1 K2_H"
    def TL(i):
        if "tl" in opt: a(f"s_memtime s[96:97]\ns_add_u32 s98, s{sk}, 2\ns_lshl_b64 exec, 1, s98\ns_waitcnt lgkmcnt(0)\nv_mov_b32 v{vWx+i}, s96\ns_mov_b64 exec, -1\ns_nop 3")
    a("K2_LOOP:"); TL(0); a.extend(A0); TL(1); a(bnd); a("K2_B0:"); TL(2); a.extend(B0)
    TL(0); a.extend(A1); TL(1); a(bnd); a("K2_B1:"); TL(2); a.extend(B1); a("s_branch K2_LOOP")
    check(B1+A0,"wrap")
    a(f"""
K2_H:
s_cmp_lg_u32 s{sk}, s{sTF}
s_cbranch_scc1 K2_NOFL
s_add_u32 s{sT+2}, s{sk}, 31
s_mul_i32 s{sT}, s{sNbF}, 34
v_readlane_b32 s{sT+2}, v{vFL}, s{sT+2}
v_add_u32 v{vOH}, s{sT}, v{cMT}
v_add_u32 v{vEA}, s{sT}, v{cPT}
v_add_u32 v8, s{sXM}, v{cMT}
v_add_u32 v9, s{sXM}, v{cPT}
v_cndmask_b32 v8, v{vOH}, v8, {sr(sFM,2)}
v_cndmask_b32 v{vEA}, v{vEA}, v9, {sr(sFP,2)}
""")
    mad=lambda q,pb: f"v8 offset:{128*pb}" if q==0 else f"v{vOH} offset:{544*q+128*pb}"
    pk=[]
    for b in range(4):
        wxp=vr(vWx+(b&2),2); o=b&1
        for j in range(8):
            if b==0: pk.append(f"v_pk_mul_f32 {vr(FT+2*j,2)}, {vr(D2+2*j,2)}, {wxp} op_sel:[0,{o}] op_sel_hi:[1,{o}]")
            else: pk.append(f"v_pk_fma_f32 {vr(FT+2*j,2)}, {vr(D2+16*b+2*j,2)}, {wxp}, {vr(FT+2*j,2)} op_sel:[0,{o},0] op_sel_hi:[1,{o},1]")
    rd=[f"ds_read_b32 v{2*q+pb}, {mad(q,pb)}" for q in range(4) for pb in range(2)]+[f"ds_read_b32 v10, v{vEA}"]
    for i,l in enumerate(pk):
        a(l)
        if i<9: a(rd[i])
    a(f"""s_sub_u32 s{sT+2}, s{sT+2}, s{sNbF}
s_mul_i32 s{sT+3}, s{sT+2}, 34
s_lshl_b32 s{sT+2}, s{sT+2}, 1
s_add_u32 s{sT+3}, s{sT+3}, {MT+256+12}
s_mov_b64 {sr(sFM,2)}, 0
s_mov_b64 {sr(sFP,2)}, 0""")
    for j in range(8): a(f"v_cvt_pk_bf16_f32 v{P_+j}, v{FT+2*j}, v{FT+2*j+1}")
    lo=lambda q,pb: D2+32*pb+4*q+3
    dots=[]; cv=[]
    for pb in range(2):
        for q in range(4):
            dots+=[f"v_dot2_f32_bf16 v{lo(q,pb)}, v{2*q+pb}, s{sOne10}, v{lo(q,pb)}",f"v_dot2_f32_bf16 v{lo(q,pb)+16}, v{2*q+pb}, s{sOne01}, v{lo(q,pb)+16}"]
            cv.append(f"v_cvt_pk_bf16_f32 v{P_+8+4*pb+q}, v{lo(q,pb)}, v{lo(q,pb)+16}")
    a("s_waitcnt lgkmcnt(0)")
    a(dots[0]); a(dots[1])
    a(mf(FT,vr(P_,4),ar(aSel,4),"0"))
    for l in dots[2:8]: a(l)
    a(mf(FT,vr(P_+4,4),ar(aSel+4,4)))
    for l in dots[8:11]+cv[:4]: a(l)
    a(mf(D2,Z,Z,"0"))
    for l in dots[11:16]: a(l)
    a("s_nop 0")
    a(mf(D2+16,Z,Z,"0"))
    for l in cv[4:8]: a(l)
    ad=[f"v_add_f32 v{FT+i}, v{FT+i}, v{FT+i+w}" for w in (8,4,2,1) for i in range(w)]
    for l in ad[:2]: a(l)
    a(mf(D2+32,Z,Z,"0"))
    for l in ad[2:8]: a(l)
    a(mf(D2+48,Z,Z,"0"))
    for l in ad[8:]: a(l)
    a(f"v_mov_b32 v11, v{FT}")
    for q in range(4):
        a(f"v_cmpx_ge_i32 vcc, s{sT+2}, v{vH16}")
        if q<3: a(f"s_sub_i32 s{sT+2}, s{sT+2}, 32")
        for pb in range(2):
            m=mad(q,pb).split(); a(f"ds_write_b32 {m[0]}, v{P_+8+4*pb+q} {m[1]}")
    a(f"""
s_mov_b64 exec, -1
s_nop 0
v_permlane32_swap_b32 v11, v{FT}
v_add_f32 v10, v10, v11
v_add_f32 v10, v10, v{FT}
v_cmpx_ge_u32 vcc, s{sT+3}, v{cPT}
ds_write_b32 v{vEA}, v10
s_mov_b64 exec, -1
s_cmp_eq_u32 s{sk}, s{sK}
s_cbranch_scc1 K2_REND
K2_NOFL:
s_cmp_eq_u32 s{sk}, s{sKm1}
s_cbranch_scc1 K2_TAIL
s_mov_b32 s{sEv}, s{sTW}
s_cmp_lg_u32 s{sk}, s{sTW}
s_cbranch_scc1 K2_RET
s_add_u32 s{sTF}, s{sk}, 1
s_mov_b32 s{sNbF}, s{sNb}
K2_NEWWIN:
s_add_u32 s{sT}, s{sk}, 1
v_readlane_b32 s{sT}, v{vFL}, s{sT}
s_add_u32 s{sT+1}, s{sT}, 56
s_mul_i32 s{sT+2}, s{sT}, 33
v_cmp_lt_u32 vcc, s{sT+1}, v{vFL}
s_lshr_b32 s{sT+2}, s{sT+2}, 1
v_mad_u32_u24 v{vOH}, v{mulL}, s{sT+2}, v{cAW0}
v_mad_u32_u24 v{vEA}, v{mulL}, s{sT+2}, v{cAW1}
s_sub_i32 s{sT+3}, s{sNb}, s{sT}
s_mov_b32 s{sNb}, s{sT}
""")
    for b in range(4):
        a(f"ds_read_b64_tr_b16 {ar(aAW+4*b,2)}, v{vOH} offset:{64*b}\nds_read_b64_tr_b16 {ar(aAW+4*b+2,2)}, v{vEA} offset:{64*b}")
    a(f"""
v_mad_i32_i24 v{vX}, v{mulL}, s{sT+3}, v{vX}
v_add_u32 v{cSc}, s{sT+3}, v{cSc}
s_ff1_i32_b32 s{sTW}, vcc_hi
s_sub_u32 s{sTW}, s{sTW}, 1
s_cmp_gt_i32 s{sTF}, s{sk}
s_cselect_b32 s{sEv}, s{sTF}, s{sTW}
K2_RET:
s_bitcmp1_b32 s{sk}, 0
s_cbranch_scc1 K2_B1
s_branch K2_B0
K2_TAIL:
""")
    whdma()
    cvt,ex,ad,rc,mu=spine(DY)
    for l in cvt: a(l)
    sg=[seg(0,0,0),seg(0,0,1),seg(0,1,0),seg(0,1,1)]
    for i,l in enumerate(ex):
        if i%4==1 and sg: a(sg.pop(0))
        a(l)
    for l in ad+rc+mu+cvt: a(l)
    a(f"s_mov_b32 s{sk}, s{sK}\ns_mov_b32 s{sTF}, s{sK}")
    for l in [seg(2,0,0),seg(2,0,1),seg(2,1,0),seg(2,1,1)]: a(l)
    a(f"""
ds_write_b64 v{aSc}, {ar(aZ,2)}
ds_write_b64 v{aSc+1}, {ar(aZ,2)}
s_mov_b32 s{sNbF}, s{sNb}
s_nop 7
s_branch K2_H
K2_PAD:
s_waitcnt lgkmcnt(0)
s_barrier
v_cmp_gt_u32 vcc, 49, v4
v_add_u32 v60, 3, v36
v_add_u32 v61, 3, v37
v_and_b32 v60, -4, v60
v_and_b32 v61, -4, v61
v_max_u32 v60, 4, v60
v_max_u32 v61, 4, v61
v_cndmask_b32 v60, 0, v60, vcc
v_cndmask_b32 v61, 0, v61, vcc
v_add_u32 v38, v60, v61
v_mov_b32 v39, v38
""")
    scan(a,[39])
    a(f"""
v_sub_u32 v56, v39, v38
v_add_u32 v56, {NB}, v56
v_add_u32 v57, v56, v60
v_readlane_b32 s{sNP}, v39, 63
ds_write_b64 v28, v[56:57] offset:{BASE}
s_cmp_le_u32 s{sNP}, {CAP}
s_cbranch_scc1 K2_PAD2
s_movk_i32 s{sCap}, {CAP-4*NB}
s_waitcnt lgkmcnt(0)
s_barrier
s_branch K2_ROUND
K2_PAD2:
""")
    for j in range(7): a(f"ds_read_b32 v{IDX+j}, v{ND+j} offset:{BASE}")
    a(f"""
v_mov_b32 v152, 0
v_mov_b32 v153, 0
v_mov_b32 v155, 0
""")
    for u in range(2):
        a(f"""v_add_u32 v36, s{sW}, v{36+u}
v_cmp_lt_u32 vcc, v36, v{60+u}
v_lshl_or_b32 v58, v4, 1, {u}
v_lshlrev_b32 v154, 19, v58
v_add_u32 v58, s{sN0}, v58
v_add_lshl_u32 v59, v36, v{56+u}, 4
v_add_lshl_u32 v36, v36, v{56+u}, 1
s_mov_b64 exec, vcc
ds_write_b128 v59, v[152:155]
ds_write_b16 v36, v58 offset:{SRC-2*NB}
s_mov_b64 exec, -1""")
    a(f"""
v_mov_b32 v37, v61
s_waitcnt lgkmcnt(0)
s_branch K2_PADRET
K2_K0:
""")
    whdma()
    a(f"""
K2_REND:
s_add_u32 s{sR0}, s{sR0}, s{sM}
s_movk_i32 s{sCap}, {CAP}
s_cmp_lt_u32 s{sR0}, s{sNT}
s_waitcnt vmcnt(0) lgkmcnt(0)
s_barrier
s_cbranch_scc1 K2_MORE
""")
    TS()
    if "tl" in opt:
        a(f"s_mov_b32 s{WS+2}, 0x8000000\ns_lshl_b32 s{sT}, s2, 2\ns_add_u32 s{sT}, s{sT}, s{sW}\ns_lshl_b32 s{sT}, s{sT}, 10\ns_add_u32 s{sT}, s{sT}, 0x500000\nv_and_b32 v1, 63, v{vT}\nv_lshlrev_b32 v1, 2, v1")
        for i in range(3): a(f"buffer_store_dword v{vWx+i}, v1, {sr(WS,4)}, s{sT} offen offset:{256*i}")
        a("s_waitcnt vmcnt(0)")
    MFR=64; HF=128; TT=96; OS=112
    def merge():
        L=[f"v_mov_b32 v208, {FX}",("ds",f"ds_read_b128 v[208:211], v208","fx"),
           f"v_and_b32 v212, 63, v{vT}",f"v_lshlrev_b32 v212, 2, v212",f"v_add_u32 v213, {MT+98*272}, v212",
           f"v_cmp_gt_u32 {sr(sFM,2)}, 16, v212",f"v_add_u32 v214, {TRASH-256}, v212",
           f"s_movk_i32 s{sOne10}, 0x3F80",f"s_mov_b32 s{sOne01}, 1.0",f"s_mov_b32 s{sXM}, 0xffff0000"]
        for w in range(3): L+=[("ds",f"ds_read_b32 v{216+2*w}, v213 offset:{272*w}",("x",w)),("ds",f"ds_read_b32 v{217+2*w}, v213 offset:{272*w+256}",("xp",w))]
        L+=[("wait","fx")]
        for w in range(3): L+=[f"v_readfirstlane_b32 s{sU+w}, v{209+w}"]
        for w in range(3):
            L+=[f"s_lshr_b32 s{sU+3}, s{sU+w}, 8",f"s_mul_i32 s{sU+w}, s{sU+w}, 34",f"s_add_u32 s{sU+w}, s{sU+w}, {MT}",f"s_cmp_eq_u32 s{sU+3}, s{sW}",
                f"s_cselect_b32 s{sU+w}, s{sU+w}, {TRASH}",f"v_add_u32 v{209+w}, s{sU+w}, v212"]
        for w in range(3):
            L+=[("ds",f"ds_read_b32 v222, v{209+w}",("mm",w)),("ds",f"ds_read_b32 v223, v{209+w} offset:256",("mp",w)),
                f"v_cndmask_b32 v215, v214, v{209+w}, {sr(sFM,2)}",("gap",2),("wait",("mp",w)),
                f"v_lshlrev_b32 v224, 16, v222",f"v_and_b32 v225, s{sXM}, v222",
                f"v_dot2_f32_bf16 v224, v{216+2*w}, s{sOne10}, v224",f"v_dot2_f32_bf16 v225, v{216+2*w}, s{sOne01}, v225",
                f"v_add_f32 v223, v223, v{217+2*w}",("ds",f"ds_write_b32 v215, v223 offset:256",("wp",w)),"s_nop 0",
                f"v_cvt_pk_bf16_f32 v224, v224, v225",("ds",f"ds_write_b32 v{209+w}, v224",("wm",w))]
        return L
    a(f"""
v_and_b32 v192, 63, v{vT}
v_and_b32 v193, 31, v192
v_lshl_add_u32 v193, s{sW}, 5, v193
v_mul_u32_u24 v194, 272, v193
v_add_u32 v194, v{vH16}, v194
v_add_u32 v194, {MT}, v194
v_lshlrev_b32 v195, 4, v192
v_add_u32 v195, {STG}, v195
""")
    q=[]
    eord=[]
    for b,g in ((0,0),(1,0),(0,1),(1,1),(2,0),(2,1),(3,0),(3,1)): eord+=[(s,b,g) for s in range(8)]
    fo=lambda i: (lambda s,b,g: (32*g+4*s+b))(*eord[i])
    rdw=lambda i: dsi(f"ds_read_b128 {ar(4*(i&31),4)}, v195 offset:{(fo(i)>>4)*16384+(fo(i)&15)*1024}",("w",i))
    for i in range(4): rdw(i)
    side=merge()
    side+=[("ds",f"ds_read_b128 {vr(MFR+4*s,4)}, v194 offset:{32*s}",("m",s)) for s in range(8)]+[("mark","m")]
    side+=[f"v_lshlrev_b32 v196, 4, v193",("ds",f"ds_read_b96 v[200:202], v196 offset:{PD}","pd"),f"v_sub_u32 v203, v194, v{vH16}",("ds",f"ds_read_b96 v[204:206], v203 offset:256","pt"),
           f"v_add_u32 v199, s{sN0}, v193",f"v_mul_u32_u24 v197, 6, v199",f"v_add_u32 v197, {N*256}, v197",
           f"v_cmp_gt_u32 vcc, s{sNN}, v193",f"v_bfrev_b32 v198, 2",f"s_mov_b32 s{sT}, 0xffff0000",f"v_lshl_add_u32 v199, v199, 8, v{vH16}",
           f"v_lshl_add_u32 v197, v{vH16}, 26, v197",f"v_cndmask_b32 v199, v198, v199, vcc",f"v_cndmask_b32 v197, v198, v197, vcc",
           f"s_mov_b32 s{sT+2}, {K1.LOG2E}",f"s_mov_b32 s{sT+3}, {K1.LOG2E}",
           ("wait","pt"),
           "v_add_f32 v200, v200, v204","v_add_f32 v201, v201, v205","v_add_f32 v202, v202, v206",
           "v_cvt_pk_bf16_f32 v200, v200, v201","v_cvt_pk_bf16_f32 v202, v202, v202",
           f"buffer_store_short v200, v197, {sr(OUT,4)}, 0 offen",f"buffer_store_short_d16_hi v200, v197, {sr(OUT,4)}, 0 offen offset:2",
           f"buffer_store_short v202, v197, {sr(OUT,4)}, 0 offen offset:4"]
    def unp(b):
        L=[]
        for x in range(8):
            L+=[f"v_accvgpr_read_b32 v{HF+16*b+2*x+1}, a{aHL+8*b+x}",f"v_lshlrev_b32 v{HF+16*b+2*x}, 16, v{HF+16*b+2*x+1}",
                f"v_and_b32 v{HF+16*b+2*x+1}, s{sT}, v{HF+16*b+2*x+1}"]
        return L
    def silu(b):
        D=16*b; c=sr(sT+2,2)
        e1=[f"v_exp_f32 v{TT+i}, v{D+i}" for i in range(16)]
        p1=[f"v_pk_fma_f32 {vr(TT+2*j,2)}, {vr(TT+2*j,2)}, {c}, {c}" for j in range(8)]
        r1=[f"v_rcp_f32 v{TT+i}, v{TT+i}" for i in range(16)]
        p2=[f"v_pk_fma_f32 {vr(TT+2*j,2)}, {vr(D+2*j,2)}, {vr(TT+2*j,2)}, {vr(HF+D+2*j,2)}" for j in range(8)]
        cv=[f"v_cvt_pk_bf16_f32 v{OS+8*(b&1)+j}, v{TT+2*j}, v{TT+2*j+1}" for j in range(8)]
        st=[f"buffer_store_dwordx4 {vr(OS+8*(b&1)+4*x,4)}, v199, {sr(OUT,4)}, 0 offen offset:{64*b+32*x}" for x in range(2)]
        return e1+p1+r1+p2+cv+st
    side+=unp(0)+[("at",26)]+silu(0)+unp(1)+[("at",34)]+silu(1)+unp(2)+[("at",50)]+silu(2)+unp(3)
    cur=[0]
    def doside(n,upto=None):
        g=0
        while side and g<n:
            l=side[0]
            if isinstance(l,tuple):
                if l[0]=="at":
                    if cur[0]<l[1]: return
                elif l[0]=="gap":
                    if upto is None and n<10**6:
                        side[0]=("at",cur[0]+l[1]); return
                elif l[0]=="mark":
                    side.pop(0); marks.add(l[1])
                    if l[1]==upto: return
                    continue
                elif l[0]=="ds": dsi(l[1],l[2]); g+=4
                elif l[0]=="wait": dsw(l[1]); g+=4
            else: a(l); g+=cost(l)
            side.pop(0)
    marks=set()
    for i,(s,b,g) in enumerate(eord):
        cur[0]=i
        if g==1 and "m" not in marks:
            cur[0]=10**6; doside(10**6,"m"); cur[0]=i
        dsw(("w",i))
        if g==1 and b==0: dsw(("m",s))
        a(mf(16*b, ar(4*(i&31),4), ar(aHL+4*s,4) if g==0 else vr(MFR+4*s,4), "0" if (s==0 and g==0) else None))
        if i+4<64: rdw(i+4)
        doside(24)
    cur[0]=10**6; doside(10**6)
    a("s_nop 7\ns_nop 3")
    for l in silu(3): a(l)
    dump("end")
    if ts:
        TS()
        a(f"s_mov_b32 s{WS+2}, 0x8000000\ns_lshl_b32 s{sT}, s2, 2\ns_add_u32 s{sT}, s{sT}, s{sW}\ns_lshl_b32 s{sT}, s{sT}, 6\ns_add_u32 s{sT}, s{sT}, 0x300000\nv_mov_b32 v1, 0")
        for i in range(tsn[0]): a(f"v_mov_b32 v2, s{sTS+i}\nbuffer_store_dword v2, v1, {sr(WS,4)}, s{sT} offen offset:{4*i}")
        a(f"v_mov_b32 v2, s{sK}\nbuffer_store_dword v2, v1, {sr(WS,4)}, s{sT} offen offset:60")
    if "rt" in opt: a("""s_waitcnt vmcnt(0)
s_memrealtime s[42:43]
s_load_dwordx2 s[44:45], s[0:1], 80
s_lshl_b32 s46, s2, 3
s_add_u32 s46, s46, 0x610000
s_waitcnt lgkmcnt(0)
v_mov_b32 v2, s100
v_mov_b32 v3, s42
v_mov_b32 v1, s46
global_store_dwordx2 v1, v[2:3], s[44:45]
s_load_dwordx2 s[48:49], s[0:1], 72
s_sub_u32 s46, s46, 0x10000
v_mov_b32 v1, s46
global_load_dwordx2 v[4:5], v1, s[44:45]
global_load_dwordx2 v[6:7], v1, s[44:45] offset:1344
v_not_b32 v2, v2
v_mov_b32 v8, 0
s_waitcnt vmcnt(0) lgkmcnt(0)
v_min_u32 v4, v4, v6
v_max_u32 v5, v5, v7
v_not_b32 v4, v4
s_mov_b64 exec, 1
global_atomic_umax v8, v4, s[48:49]
global_atomic_umax v8, v5, s[48:49] offset:4
global_atomic_umax v8, v2, s[48:49] offset:8
global_atomic_umax v8, v3, s[48:49] offset:12
v_not_b32 v2, v2
v_not_b32 v3, v3
global_atomic_umax v8, v2, s[48:49] offset:16
global_atomic_umax v8, v3, s[48:49] offset:20
v_mov_b32 v2, s94
v_subrev_u32 v2, s84, v2
global_atomic_umax v8, v2, s[48:49] offset:24
v_mov_b32 v2, s93
v_subrev_u32 v2, s84, v2
global_atomic_umax v8, v2, s[48:49] offset:28
v_mov_b32 v2, s95
v_subrev_u32 v2, s84, v2
global_atomic_umax v8, v2, s[48:49] offset:32
v_mov_b32 v2, s85
v_subrev_u32 v2, s84, v2
global_atomic_umax v8, v2, s[48:49] offset:36""")
    a("s_endpgm\nK2_MORE:")
    q=[]; side=merge(); cur[0]=10**6; doside(10**6)
    a(f"""s_waitcnt lgkmcnt(0)
s_barrier
v_cmp_gt_u32 vcc, 204, v{vT}
v_lshlrev_b32 v1, 2, v{vT}
v_add_u32 v1, {MT+98*272}, v1
v_mov_b32 v2, 0
s_mov_b64 exec, vcc
ds_write_b32 v1, v2
s_mov_b64 exec, -1
s_branch K2_ROUND""")
    a("K2_END:")
    check(a.L,"k2")
    return kernel("k2_kernel", a, 512, acc=256)
if __name__=="__main__":
    t=k2(); print(len(t.split("\n")))
    for nm,s in (("A0",slotA(0)),("A1",slotA(1)),("B0",slotB(0)),("B1",slotB(1))):
        print(nm,len(s),sum(cost(l) for l in s))
```

```python
import sys
sys.path.insert(0,"gen")
import k1, k2
def full(**kw):
    hdr=f"; @launch kernel=k1_kernel grid=({k1.G1},1,1) block=(256,1,1) lds={k1.K1_LDS}\n; @launch kernel=k2_kernel grid=(256,1,1) block=(256,1,1) lds={k2.LDS}\n"
    return hdr+'.amdgcn_target "amdgcn-amd-amdhsa--gfx950"\n'+k1.k1(rt='rt' in kw.get('opt',()))+k2.k2(**kw)
if __name__=="__main__":
    out=sys.argv[1] if len(sys.argv)>1 else "gather_scatter__cheap_equivariant_egnn__graph.s"
    kw={}
    for x in sys.argv[2:]:
        if x=="ts": kw["ts"]=True
        elif x.startswith("opt="): kw["opt"]=x[4:].split(",")
    open(out,"w").write(full(**kw))
```

```python
from asmlib import *
N=25000; E=400000; NB=98; C=1568; NCH=256
WS_W=0; WS_OFF=0x22000; WS_REC=0x62000; WS_POS=WS_REC+NCH*C*8; WS_END=WS_POS+(N+128)*16; WS_B=0x400000
assert WS_END<=WS_B
F0=32; NWF=134
NG=196; G_S=200; G_W=G_S+NCH; NWG_W=(NWF-F0+3)//4
G1=G_W+NWG_W
LOG2E=0xbfb8aa3b
RTB=0x1000000
MF="v_mfma_f32_32x32x16_bf16"
def k1(rt=False,st="",opt=()):
    a=Asm()
    def RT0():
        if rt: a("s_memrealtime s[40:41]")
    def RT1():
        if rt: a(f"""s_mov_b64 exec, -1
s_waitcnt vmcnt(0)
s_memrealtime s[42:43]
s_load_dwordx2 s[44:45], s[0:1], 80
s_lshl_b32 s46, s2, 3
s_add_u32 s46, s46, {RTB}
s_waitcnt lgkmcnt(0)
v_mov_b32 v2, s40
v_mov_b32 v3, s42
v_mov_b32 v1, s46
global_store_dwordx2 v1, v[2:3], s[44:45]""")
    RT0()
    a(f"""
s_cmp_ge_u32 s2, {G_S}
s_cbranch_scc1 K1_S
s_cmp_ge_u32 s2, {NG}
s_cbranch_scc1 K1_END
""")
    HS=12; WE=16; BS=20; PS=24; PT=28
    a(f"""
s_load_dwordx4 s[4:7], s[0:1], 0
s_load_dwordx2 s[8:9], s[0:1], 40
s_load_dwordx2 s[10:11], s[0:1], 80
v_lshrrev_b32 v1, 6, v0
v_and_b32 v2, 63, v0
v_lshrrev_b32 v3, 4, v2
v_and_b32 v4, 15, v0
v_readfirstlane_b32 s3, v1
v_xor_b32 v5, v4, v3
v_lshlrev_b32 v5, 4, v5
v_lshl_or_b32 v8, v3, 8, v5
v_xor_b32 v9, 64, v8
v_xor_b32 v10, 0x80, v8
v_xor_b32 v11, 0xc0, v8
v_lshlrev_b32 v5, 2, v3
v_xor_b32 v5, v4, v5
v_lshlrev_b32 v5, 4, v5
v_lshl_or_b32 v12, v3, 8, v5
s_lshl_b32 s32, s3, 13
s_lshl_b32 s33, s2, 15
s_add_u32 s33, s33, s32
s_add_u32 s34, s33, 4096
s_add_u32 s35, s32, 32768
s_add_u32 s36, s32, {32768+4096}
s_add_u32 s37, s32, 4096
s_mov_b32 s{HS+2}, {N*256}
s_mov_b32 s{HS+3}, 0x20000
s_mov_b32 s{WE+2}, 65536
s_mov_b32 s{WE+3}, 0x20000
s_mov_b32 s{PS+2}, {N*6}
s_mov_b32 s{PS+3}, 0x20000
s_lshl_b32 s38, s2, 7
v_add_u32 v13, s38, v0
v_mul_u32_u24 v14, 6, v13
v_mov_b32 v16, 0
v_mov_b32 v17, 0
v_mov_b32 v18, 0
v_mov_b32 v19, 0
s_mov_b32 m0, s35
s_waitcnt lgkmcnt(0)
s_mov_b32 s{HS}, s4
s_mov_b32 s{HS+1}, s5
s_mov_b32 s{WE}, s8
s_mov_b32 s{WE+1}, s9
""")
    for i in range(8):
        if i==4: a("s_mov_b32 m0, s36\ns_nop 0")
        a(f"buffer_load_dwordx4 v{8+(i&3)}, {sr(HS,4)}, s{33+(i>>2)} offen offset:{1024*(i&3)} lds")
    for i in range(8):
        if i&3==0: a(f"s_mov_b32 m0, s{32 if i==0 else 37}\ns_nop 0")
        a(f"buffer_load_dwordx4 v12, {sr(WE,4)}, s{35+(i>>2)} offen offset:{1024*(i&3)} lds")
    a(f"""
s_mov_b32 s{PS}, s6
s_mov_b32 s{PS+1}, s7
s_add_u32 s{BS}, s10, {WS_B}
s_addc_u32 s{BS+1}, s11, 0
s_mov_b32 s{BS+2}, {N*256}
s_mov_b32 s{BS+3}, 0x20000
s_add_u32 s{PT}, s10, {WS_POS}
s_addc_u32 s{PT+1}, s11, 0
s_mov_b32 s{PT+2}, {N*16}
s_mov_b32 s{PT+3}, 0x20000
s_cmp_lt_u32 s3, 2
s_cbranch_scc0 K1_NP
buffer_load_short_d16_hi v16, v14, {sr(PS,4)}, 0 offen
buffer_load_short_d16_hi v17, v14, {sr(PS,4)}, 0 offen offset:2
buffer_load_short_d16_hi v18, v14, {sr(PS,4)}, 0 offen offset:4
K1_NP:
v_lshlrev_b32 v13, 4, v13
v_and_b32 v5, 31, v0
v_lshrrev_b32 v6, 5, v2
v_xor_b32 v7, v6, v4
v_lshlrev_b32 v7, 4, v7
v_lshl_or_b32 v7, v5, 8, v7
v_add_u32 v20, s35, v7
v_bfe_u32 v21, v0, 2, 2
v_lshl_or_b32 v22, v6, 3, v21
v_lshlrev_b32 v22, 8, v22
v_and_b32 v23, 1, v0
v_lshl_or_b32 v22, v23, 3, v22
v_bfe_u32 v23, v0, 1, 1
v_lshl_or_b32 v22, v23, 4, v22
v_and_b32 v23, 1, v3
v_lshl_or_b32 v22, v23, 5, v22
v_lshl_or_b32 v24, v21, 6, v22
v_xor_b32 v25, 64, v24
v_xor_b32 v26, 0x80, v24
v_xor_b32 v27, 0xc0, v24
v_lshl_add_u32 v15, v2, 4, s35
s_mov_b32 s38, {LOG2E}
s_mov_b32 s39, {LOG2E}
""")
    for s in range(1,8): a(f"v_xor_b32 v{28+s}, {32*s}, v20")
    hA=lambda s: 20 if s==0 else 28+s
    a(f"""s_waitcnt vmcnt(0)
s_barrier""")
    HF=36; WR=68; ACC=100
    q=[]
    def dsi(l,tag): a(l); q.append(tag)
    def dsw(tag):
        n=len(q)-1-q.index(tag); a(f"s_waitcnt lgkmcnt({min(n,15)})")
    order=[(s,b) for bp in (0,2) for s in range(8) for b in (bp,bp+1)]
    def rdw(i):
        s,b=order[i]
        for u in range(2): dsi(f"ds_read_b64_tr_b16 {vr(WR+4*(i&7)+2*u,2)}, v{24+b} offset:{(16*s+4*u)*256}",("w",i,u))
    dsi(f"ds_read_b128 {vr(HF,4)}, v{hA(0)}",("h",0))
    rdw(0); rdw(1)
    for s in range(1,8): dsi(f"ds_read_b128 {vr(HF+4*s,4)}, v{hA(s)}",("h",s))
    rdw(2); rdw(3)
    a(f"s_cmp_lt_u32 s3, 2\ns_cbranch_scc0 K1_NP2\nbuffer_store_dwordx4 v[16:19], v13, {sr(PT,4)}, 0 offen\nK1_NP2:")
    def outw(b):
        L=[]
        for f in range(2):
            r=ACC+16*b+8*f
            L+=[f"v_pk_mul_f32 {vr(r+2*j,2)}, {vr(r+2*j,2)}, s[38:39]" for j in range(4)]
            L+=[f"v_cvt_pk_bf16_f32 v{r+j}, v{r+2*j}, v{r+2*j+1}" for j in range(4)]
            L+=[f"ds_write_b128 v{hA(2*b+f)}, {vr(r,4)}"]
        return L
    pend=outw(0)+outw(1)
    for i,(s,b) in enumerate(order):
        dsw(("w",i,1))
        if i<16 and b==0 and q.index(("h",s))>q.index(("w",i,1)): dsw(("h",s))
        a(f"{MF} {vr(ACC+16*b,16)}, {vr(WR+4*(i&7),4)}, {vr(HF+4*s,4)}, {'0' if s==0 else vr(ACC+16*b,16)}")
        if i+4<32: rdw(i+4)
        if i>=19:
            for _ in range(3):
                if pend:
                    l=pend.pop(0)
                    if l.startswith("ds_"): dsi(l,("o",l))
                    else: a(l)
    assert not pend
    a("s_nop 7\ns_nop 1")
    for l in outw(2)+outw(3): a(l)
    a("s_waitcnt lgkmcnt(0)")
    for i in range(8): a(f"ds_read_b128 {vr(HF+4*i,4)}, v15 offset:{1024*i}")
    for i in range(8):
        a(f"s_waitcnt lgkmcnt({7-i})\nbuffer_store_dwordx4 {vr(HF+4*i,4)}, v{8+(i&3)}, {sr(BS,4)}, s{33+(i>>2)} offen offset:{1024*(i&3)}{st}")
    RT1()
    a("s_endpgm")
    CN=0; BA=1024; PK=2048; SG=3072
    D0=8; S0=16; BK=24; RK=32; PR=56
    a(f"""
K1_S:
s_cmp_ge_u32 s2, {G_W}
s_cbranch_scc1 K1_W
s_load_dwordx4 s[4:7], s[0:1], 24
s_load_dwordx2 s[8:9], s[0:1], 80
s_sub_u32 s3, s2, {G_S}
v_lshlrev_b32 v1, 4, v0
s_mul_i32 s10, s3, {C*4}
v_add_u32 v2, s10, v1
v_lshlrev_b32 v3, 2, v0
v_mov_b32 v4, 0
ds_write_b32 v3, v4 offset:{CN}
s_mov_b32 s14, {E*4}
s_mov_b32 s15, 0x20000
s_mov_b32 s18, {E*4}
s_mov_b32 s19, 0x20000
s_mov_b32 s22, {WS_END}
s_mov_b32 s23, 0x20000
s_movk_i32 s24, 21400
s_movk_i32 s25, -98
v_add_u32 v6, 4096, v2
v_cmp_gt_u32 vcc, {(C-1024)//4}, v0
v_cmp_gt_u32 s[30:31], s14, v2
v_cmp_gt_u32 s[34:35], s14, v6
s_and_b64 s[32:33], vcc, s[34:35]
s_waitcnt lgkmcnt(0)
s_mov_b32 s12, s6
s_mov_b32 s13, s7
s_mov_b32 s16, s4
s_mov_b32 s17, s5
buffer_load_dwordx4 v[8:11], v2, s[12:15], 0 offen
s_mov_b64 exec, s[32:33]
buffer_load_dwordx4 v[12:15], v6, s[12:15], 0 offen
s_mov_b64 exec, -1
buffer_load_dwordx4 v[16:19], v2, s[16:19], 0 offen
s_mov_b64 exec, s[32:33]
buffer_load_dwordx4 v[20:23], v6, s[16:19], 0 offen
s_mov_b64 exec, -1
s_mov_b32 s20, s8
s_mov_b32 s21, s9
v_mov_b32 v5, 1
v_and_b32 v7, 63, v0
v_lshlrev_b32 v7, 4, v7
s_and_b32 s26, s3, 7
s_lshl_b32 s26, s26, 5
s_lshr_b32 s27, s3, 3
s_add_u32 s26, s26, s27
s_mul_i32 s27, s26, {C}
s_lshl_b32 s28, s26, 2
s_add_u32 s28, s28, {WS_OFF}
s_lshl_b32 s29, s27, 3
s_add_u32 s29, s29, {WS_REC}
""")
    for x in range(2):
        src=2 if x==0 else 6
        e=PR+8*x+1
        a(f"""v_lshrrev_b32 v{e}, 12, v{src}
v_bfe_u32 v48, v{src}, 2, 10
v_lshl_or_b32 v{e}, v{e}, 16, v48""")
        for i in range(1,4): a(f"v_add_u32 v{e+2*i}, {i}, v{e}")
    a("s_waitcnt lgkmcnt(0)\ns_barrier")
    for x in range(2):
        a(f"s_mov_b64 exec, s[{30+2*x}:{31+2*x}]\ns_waitcnt vmcnt({3-x})")
        R=range(4*x,4*x+4)
        for i in R: a(f"v_mul_u32_u24 v{BK+i}, s24, v{D0+i}")
        for i in R: a(f"v_lshrrev_b32 v{BK+i}, 21, v{BK+i}")
        for i in R: a(f"v_mad_i32_i24 v{D0+i}, v{BK+i}, s25, v{D0+i}")
        for i in R: a(f"v_lshlrev_b32 v{BK+i}, 2, v{BK+i}\nds_add_rtn_u32 v{RK+i}, v{BK+i}, v5 offset:{CN}")
    a("s_mov_b64 exec, -1\ns_waitcnt vmcnt(0)")
    for i in range(8): a(f"v_lshl_or_b32 v{PR+2*i}, v{D0+i}, 19, v{S0+i}")
    a(f"""
s_waitcnt lgkmcnt(0)
s_barrier
ds_read_b128 v[16:19], v7 offset:{CN}
s_waitcnt lgkmcnt(0)
v_add_u32 v20, v16, v17
v_add3_u32 v20, v20, v18, v19
v_mov_b32 v21, v20
""")
    for s in ["row_shr:1 row_mask:0xf bank_mask:0xf bound_ctrl:0","row_shr:2 row_mask:0xf bank_mask:0xf bound_ctrl:0",
              "row_shr:4 row_mask:0xf bank_mask:0xf bound_ctrl:0","row_shr:8 row_mask:0xf bank_mask:0xf bound_ctrl:0",
              "row_bcast:15 row_mask:0xa bank_mask:0xf","row_bcast:31 row_mask:0xc bank_mask:0xf"]:
        a(f"s_nop 1\nv_add_u32_dpp v21, v21, v21 {s}")
    a(f"""
v_sub_u32 v48, v21, v20
v_add_u32 v49, v48, v16
v_add_u32 v50, v49, v17
v_add_u32 v51, v50, v18
ds_write_b128 v7, v[48:51] offset:{BA}
""")
    for i in range(8): a(f"ds_read_b32 v{BK+i}, v{BK+i} offset:{BA}")
    for i in range(4): a(f"v_add_u32 v{52+i}, s27, v{48+i}")
    for i in range(4): a(f"v_lshl_or_b32 v{16+i}, v{52+i}, 12, v{16+i}")
    a(f"""ds_write_b128 v7, v[16:19] offset:{PK}
ds_read_b32 v20, v3 offset:{PK}
v_lshlrev_b32 v21, 10, v0""")
    for x in range(2):
        a(f"s_mov_b64 exec, s[{30+2*x}:{31+2*x}]\ns_waitcnt lgkmcnt(6)")
        for i in range(4*x,4*x+4):
            a(f"v_add_lshl_u32 v{BK+i}, v{BK+i}, v{RK+i}, 3\nds_write_b64 v{BK+i}, {vr(PR+2*i,2)} offset:{SG}")
    a(f"""s_mov_b64 exec, -1
s_waitcnt lgkmcnt(8)
buffer_store_dword v20, v21, s[20:23], s28 offen
v_cmp_gt_u32 vcc, {C//2-768}, v0
s_add_u32 s30, s29, 4096
s_add_u32 s31, s29, 8192
s_add_u32 s32, s29, 12288
s_waitcnt lgkmcnt(0)
s_barrier""")
    for i in range(4): a(f"ds_read_b128 {vr(8+4*i,4)}, v1 offset:{SG+4096*i}")
    for i in range(4):
        if i==3: a("s_mov_b64 exec, vcc")
        a(f"s_waitcnt lgkmcnt({3-i})\nbuffer_store_dwordx4 {vr(8+4*i,4)}, v1, s[20:23], s{29+i} offen{st}")
    RT1()
    a(f"""
s_endpgm
K1_W:
s_load_dwordx2 s[4:5], s[0:1], 40
s_load_dwordx2 s[6:7], s[0:1], 56
s_load_dwordx2 s[8:9], s[0:1], 80
v_lshrrev_b32 v1, 6, v0
v_and_b32 v2, 31, v0
v_bfe_u32 v3, v0, 5, 1
v_readfirstlane_b32 s3, v1
s_sub_u32 s10, s2, {G_W-F0//4}
s_lshl_b32 s10, s10, 2
s_add_u32 s10, s10, s3
s_cmp_ge_u32 s10, {NWF}
s_cbranch_scc1 K1_END
s_cmp_eq_u32 s10, {NWF-1}
s_cbranch_scc1 K1_WX
; s10=f  s11=group(f>>5) s24=s s25=b
s_lshr_b32 s11, s10, 5
s_bfe_u32 s24, s10, 0x30002
s_and_b32 s25, s10, 3
v_and_b32 v4, 0x13, v2
v_and_b32 v5, 4, v2
v_lshl_or_b32 v4, v5, 1, v4
v_and_b32 v5, 8, v2
v_lshrrev_b32 v5, 1, v5
v_or_b32 v4, v4, v5
s_lshl_b32 s26, s24, 4
s_movk_i32 s27, 2048
s_movk_i32 s28, 512
s_movk_i32 s29, 256
s_mov_b32 s30, {LOG2E}
s_mov_b32 s14, {273*256}
s_mov_b32 s15, 0x20000
s_mov_b32 s18, {WS_W+NWF*1024}
s_mov_b32 s19, 0x20000
s_waitcnt lgkmcnt(0)
s_mov_b32 s12, s4
s_mov_b32 s13, s5
s_mov_b32 s16, s8
s_mov_b32 s17, s9
s_cmp_eq_u32 s11, 1
s_cbranch_scc1 K1_WGO
s_cmp_eq_u32 s11, 4
s_cbranch_scc0 K1_W3
s_movk_i32 s26, 257
s_cmp_eq_u32 s10, 132
s_cbranch_scc0 K1_WGO
s_movk_i32 s26, 256
s_mov_b32 s27, 0
s_mov_b32 s28, 4
s_mov_b32 s29, 2
v_and_b32 v2, 15, v0
v_lshlrev_b32 v2, 3, v2
s_branch K1_WGO
K1_W3:
s_mov_b32 s12, s6
s_mov_b32 s13, s7
s_mov_b32 s14, 65536
v_mov_b32 v2, v4
s_cmp_eq_u32 s11, 2
s_cbranch_scc1 K1_WGO
s_mov_b32 s30, 1.0
s_lshr_b32 s26, s24, 2
s_lshl_b32 s26, s26, 6
s_and_b32 s31, s24, 3
s_lshl_b32 s31, s31, 3
s_add_u32 s26, s26, s31
s_add_u32 s26, s26, 128
s_movk_i32 s27, 1024
s_movk_i32 s28, 256
s_movk_i32 s29, 8192
K1_WGO:
s_lshl_b32 s26, s26, 8
s_lshl_b32 s25, s25, 6
s_add_u32 s26, s26, s25
v_mul_u32_u24 v3, s27, v3
v_lshl_add_u32 v3, v2, 1, v3
""")
    for i in range(4):
        a(f"""buffer_load_ushort v{8+2*i}, v3, s[12:15], s26 offen
s_add_u32 s31, s26, s29
buffer_load_ushort v{9+2*i}, v3, s[12:15], s31 offen
s_add_u32 s26, s26, s28""")
    a(f"""
s_lshl_b32 s10, s10, 10
s_add_u32 s10, s10, {WS_W}
v_and_b32 v1, 63, v0
v_lshlrev_b32 v1, 4, v1
v_add_u32 v1, s10, v1
s_waitcnt vmcnt(0)
""")
    for i in range(8): a(f"v_lshlrev_b32 v{8+i}, 16, v{8+i}")
    for i in range(8): a(f"v_mul_f32 v{8+i}, s30, v{8+i}")
    for i in range(4): a(f"v_cvt_pk_bf16_f32 v{16+i}, v{8+2*i}, v{9+2*i}")
    a("""
buffer_store_dwordx4 v[16:19], v1, s[16:19], 0 offen
""")
    RT1()
    a(f"""s_endpgm
K1_WX:
s_load_dwordx2 s[12:13], s[0:1], 48
s_movk_i32 s14, 256
s_mov_b32 s15, 0x20000
s_mov_b32 s18, {WS_W+NWF*1024}
s_mov_b32 s19, 0x20000
v_lshlrev_b32 v3, 1, v2
v_lshlrev_b32 v1, 4, v2
s_mov_b32 s30, 0xbf317218
s_mov_b32 s10, {WS_W+(NWF-1)*1024}
s_waitcnt lgkmcnt(0)
s_mov_b32 s16, s8
s_mov_b32 s17, s9""")
    for b in range(4): a(f"buffer_load_ushort v{8+b}, v3, s[12:15], 0 offen offset:{64*b}")
    a("s_waitcnt vmcnt(0)")
    for b in range(4): a(f"v_lshlrev_b32 v{8+b}, 16, v{8+b}")
    for b in range(4): a(f"v_mul_f32 v{8+b}, s30, v{8+b}")
    a("buffer_store_dwordx4 v[8:11], v1, s[16:19], s10 offen")
    RT1()
    a("K1_END:")
    check(a.L,"k1")
    return kernel("k1_kernel", a, 168)
K1_LDS=65536
if __name__=="__main__":
    print(len(k1()),G1,hex(WS_POS),hex(WS_END))
```

```python
from asmlib import *
def k3(q,lo=0,n1=477,b1=0x1000000,b2=0x1010000):
    a=Asm()
    a(f"""
s_cmp_ge_u32 s2, 1
s_cbranch_scc1 K3_END
s_memrealtime s[20:21]
s_load_dwordx2 s[4:5], s[0:1], 80
v_lshlrev_b32 v1, 3, v0
v_lshlrev_b32 v2, 4, v0
v_add_u32 v2, {b2}, v2
s_waitcnt lgkmcnt(0)
""")
    for i in range(8):
        r=10+2*i if i<7 else 40
        a(f"v_add_u32 v3, {i*64+lo}, v0\nv_min_u32 v3, {n1-1}, v3\nv_cmp_lt_u32 vcc, 195, v3\nv_cndmask_b32 v4, 0, 4, vcc\nv_add_u32 v3, v3, v4\nv_lshlrev_b32 v3, 3, v3\nv_add_u32 v3, {b1}, v3\nglobal_load_dwordx2 v[{r}:{r+1}], v3, s[4:5]")
    for i in range(4): a(f"global_load_dwordx4 v[{24+4*i}:{27+4*i}], v2, s[4:5] offset:{1024*i}")
    a("s_waitcnt vmcnt(0)")
    for i in range(1,8):
        r=10+2*i if i<7 else 40
        a(f"v_min_u32 v10, v10, v{r}\nv_max_u32 v11, v11, v{r+1}")
    for i in range(1,4): a(f"v_min_u32 v24, v24, v{24+4*i}\nv_max_u32 v25, v25, v{25+4*i}\nv_max_u32 v26, v26, v{26+4*i}\nv_max_u32 v27, v27, v{27+4*i}")
    a("""s_mov_b32 s10, -1
s_mov_b32 s11, 0
s_mov_b32 s12, -1
s_mov_b32 s13, 0
s_mov_b32 s14, 0
s_mov_b32 s15, 0
s_mov_b32 s16, 0
K3_L:
v_readlane_b32 s17, v10, s16
s_min_u32 s10, s10, s17
v_readlane_b32 s17, v11, s16
s_max_u32 s11, s11, s17
v_readlane_b32 s17, v24, s16
s_min_u32 s12, s12, s17
v_readlane_b32 s17, v25, s16
s_max_u32 s13, s13, s17
v_readlane_b32 s17, v26, s16
s_max_u32 s14, s14, s17
v_readlane_b32 s17, v27, s16
s_max_u32 s15, s15, s17
s_add_u32 s16, s16, 1
s_cmp_lt_u32 s16, 64
s_cbranch_scc1 K3_L
""")
    x,y=q
    a(f"""s_sub_u32 s18, s{x}, s{y}
s_min_u32 s18, s18, 10000
s_lshl_b32 s18, s18, 2
s_memrealtime s[22:23]
s_waitcnt lgkmcnt(0)
K3_W:
s_memrealtime s[24:25]
s_waitcnt lgkmcnt(0)
s_sub_u32 s19, s24, s22
s_cmp_lt_u32 s19, s18
s_cbranch_scc1 K3_W
K3_END:""")
    return kernel("k3_kernel",a,48)
```

```python
import sys, importlib.util
sys.path.insert(0,"gen")
import k1, k3
def load(n,p):
    sp=importlib.util.spec_from_file_location(n,p); m=importlib.util.module_from_spec(sp); sys.modules[n]=m; sp.loader.exec_module(m); return m
new=k1
o1=load("k1","k1.py"); o2=load("k2o","k2.py")
out=sys.argv[1]; q=(10,10); st=""; lo=0; n1=477; rt=True
for x in sys.argv[2:]:
    if x.startswith("q="): q=tuple(int(t) for t in x[2:].split(","))
    if x.startswith("st="): st=" "+x[3:].replace("+"," ")
    if x.startswith("rt="): rt=int(x[3:])
    if x.startswith("r="): lo,n1=(int(t) for t in x[2:].split(","))
hdr=f"; @launch kernel=k0_kernel grid=({new.G1},1,1) block=(256,1,1) lds={new.K1_LDS}\n; @launch kernel=k1_kernel grid=({o1.G1},1,1) block=(256,1,1) lds={o1.K1_LDS}\n; @launch kernel=k2_kernel grid=(256,1,1) block=(256,1,1) lds={o2.LDS}\n; @launch kernel=k3_kernel grid=(1,1,1) block=(64,1,1) lds=0\n"
t=new.k1(rt=rt,st=st).replace("K1_","K0_").replace("k1_kernel","k0_kernel")
open(out,"w").write(hdr+'.amdgcn_target "amdgcn-amd-amdhsa--gfx950"\n'+t+o1.k1()+o2.k2()+k3.k3(q,lo,n1))
```

```python
from asmlib import *
N=25000; E=400000; NB=98; C=1568; NCH=256
WS_W=0; WS_OFF=0x22000; WS_REC=0x62000; WS_POS=WS_REC+NCH*C*8; WS_END=WS_POS+(N+128)*16; WS_B=0x400000
assert WS_END<=WS_B
F0=32; NWF=134
NG=196; G_S=200; G_W=G_S+NCH; NWG_W=(NWF-F0+3)//4
G1=G_W+NWG_W
LOG2E=0xbfb8aa3b
RTB=0x1000000
MF="v_mfma_f32_32x32x16_bf16"
def k1(rt=False,st="",opt=()):
    a=Asm()
    def RT0():
        if rt: a("s_memrealtime s[40:41]")
    def RP(i):
        if rt==i: a("s_memrealtime s[42:43]")
    def RT1():
        if rt: a(f"""s_mov_b64 exec, -1
s_waitcnt vmcnt(0)
{"s_memrealtime s[42:43]" if rt is True else ""}
s_load_dwordx2 s[44:45], s[0:1], 80
s_lshl_b32 s46, s2, 3
s_add_u32 s46, s46, {RTB}
s_waitcnt lgkmcnt(0)
v_mov_b32 v2, s40
v_mov_b32 v3, s42
v_mov_b32 v1, s46
global_store_dwordx2 v1, v[2:3], s[44:45]""")
    RT0(); RP(5)
    a(f"""
s_cmp_ge_u32 s2, {G_S}
s_cbranch_scc1 K1_S
s_cmp_ge_u32 s2, {NG}
s_cbranch_scc1 K1_END
""")
    HS=12; WE=16; BS=20; PS=24; PT=28
    a(f"""
s_load_dwordx4 s[4:7], s[0:1], 0
s_load_dwordx2 s[8:9], s[0:1], 40
s_load_dwordx2 s[10:11], s[0:1], 80
v_lshrrev_b32 v1, 6, v0
v_and_b32 v2, 63, v0
v_lshrrev_b32 v3, 4, v2
v_and_b32 v4, 15, v0
v_readfirstlane_b32 s3, v1
v_xor_b32 v5, v4, v3
v_lshlrev_b32 v5, 4, v5
v_lshl_or_b32 v8, v3, 8, v5
v_xor_b32 v9, 64, v8
v_xor_b32 v10, 0x80, v8
v_xor_b32 v11, 0xc0, v8
v_lshlrev_b32 v5, 2, v3
v_xor_b32 v5, v4, v5
v_lshlrev_b32 v5, 4, v5
v_lshl_or_b32 v12, v3, 8, v5
s_lshl_b32 s32, s3, 13
s_lshl_b32 s33, s2, 15
s_add_u32 s33, s33, s32
s_add_u32 s34, s33, 4096
s_add_u32 s35, s32, 32768
s_add_u32 s36, s32, {32768+4096}
s_add_u32 s37, s32, 4096
s_mov_b32 s{HS+2}, {N*256}
s_mov_b32 s{HS+3}, 0x20000
s_mov_b32 s{WE+2}, 65536
s_mov_b32 s{WE+3}, 0x20000
s_mov_b32 s{PS+2}, {N*6}
s_mov_b32 s{PS+3}, 0x20000
s_lshl_b32 s38, s2, 7
v_add_u32 v13, s38, v0
v_mul_u32_u24 v14, 6, v13
v_mov_b32 v16, 0
v_mov_b32 v17, 0
v_mov_b32 v18, 0
v_mov_b32 v19, 0
s_mov_b32 m0, s35
s_waitcnt lgkmcnt(0)
s_mov_b32 s{HS}, s4
s_mov_b32 s{HS+1}, s5
s_mov_b32 s{WE}, s8
s_mov_b32 s{WE+1}, s9
""")
    RP(6)
    for i in range(8):
        if i==4: a("s_mov_b32 m0, s36\ns_nop 0")
        a(f"buffer_load_dwordx4 v{8+(i&3)}, {sr(HS,4)}, s{33+(i>>2)} offen offset:{1024*(i&3)} lds")
    for i in range(8):
        if i&3==0: a(f"s_mov_b32 m0, s{32 if i==0 else 37}\ns_nop 0")
        a(f"buffer_load_dwordx4 v12, {sr(WE,4)}, s{35+(i>>2)} offen offset:{1024*(i&3)} lds")
    a(f"""
s_mov_b32 s{PS}, s6
s_mov_b32 s{PS+1}, s7
s_add_u32 s{BS}, s10, {WS_B}
s_addc_u32 s{BS+1}, s11, 0
s_mov_b32 s{BS+2}, {N*256}
s_mov_b32 s{BS+3}, 0x20000
s_add_u32 s{PT}, s10, {WS_POS}
s_addc_u32 s{PT+1}, s11, 0
s_mov_b32 s{PT+2}, {N*16}
s_mov_b32 s{PT+3}, 0x20000
s_cmp_lt_u32 s3, 2
s_cbranch_scc0 K1_NP
buffer_load_short_d16_hi v16, v14, {sr(PS,4)}, 0 offen
buffer_load_short_d16_hi v17, v14, {sr(PS,4)}, 0 offen offset:2
buffer_load_short_d16_hi v18, v14, {sr(PS,4)}, 0 offen offset:4
K1_NP:
v_lshlrev_b32 v13, 4, v13
v_and_b32 v5, 31, v0
v_lshrrev_b32 v6, 5, v2
v_xor_b32 v7, v6, v4
v_lshlrev_b32 v7, 4, v7
v_lshl_or_b32 v7, v5, 8, v7
v_add_u32 v20, s35, v7
v_bfe_u32 v21, v0, 2, 2
v_lshl_or_b32 v22, v6, 3, v21
v_lshlrev_b32 v22, 8, v22
v_and_b32 v23, 1, v0
v_lshl_or_b32 v22, v23, 3, v22
v_bfe_u32 v23, v0, 1, 1
v_lshl_or_b32 v22, v23, 4, v22
v_and_b32 v23, 1, v3
v_lshl_or_b32 v22, v23, 5, v22
v_lshl_or_b32 v24, v21, 6, v22
v_xor_b32 v25, 64, v24
v_xor_b32 v26, 0x80, v24
v_xor_b32 v27, 0xc0, v24
v_lshl_add_u32 v15, v2, 4, s35
s_mov_b32 s38, {LOG2E}
s_mov_b32 s39, {LOG2E}
""")
    for s in range(1,8): a(f"v_xor_b32 v{28+s}, {32*s}, v20")
    hA=lambda s: 20 if s==0 else 28+s
    RP(1)
    a(f"""s_waitcnt vmcnt(0)
s_barrier""")
    RP(2)
    HF=36; WR=68; ACC=100
    q=[]
    def dsi(l,tag): a(l); q.append(tag)
    def dsw(tag):
        n=len(q)-1-q.index(tag); a(f"s_waitcnt lgkmcnt({min(n,15)})")
    order=[(s,b) for bp in (0,2) for s in range(8) for b in (bp,bp+1)]
    def rdw(i):
        s,b=order[i]
        for u in range(2): dsi(f"ds_read_b64_tr_b16 {vr(WR+4*(i&7)+2*u,2)}, v{24+b} offset:{(16*s+4*u)*256}",("w",i,u))
    dsi(f"ds_read_b128 {vr(HF,4)}, v{hA(0)}",("h",0))
    rdw(0); rdw(1)
    for s in range(1,8): dsi(f"ds_read_b128 {vr(HF+4*s,4)}, v{hA(s)}",("h",s))
    rdw(2); rdw(3)
    a(f"s_cmp_lt_u32 s3, 2\ns_cbranch_scc0 K1_NP2\nbuffer_store_dwordx4 v[16:19], v13, {sr(PT,4)}, 0 offen\nK1_NP2:")
    def outw(b):
        L=[]
        for f in range(2):
            r=ACC+16*b+8*f
            L+=[f"v_pk_mul_f32 {vr(r+2*j,2)}, {vr(r+2*j,2)}, s[38:39]" for j in range(4)]
            L+=[f"v_cvt_pk_bf16_f32 v{r+j}, v{r+2*j}, v{r+2*j+1}" for j in range(4)]
            L+=[f"ds_write_b128 v{hA(2*b+f)}, {vr(r,4)}"]
        return L
    pend=outw(0)+outw(1)
    for i,(s,b) in enumerate(order):
        dsw(("w",i,1))
        if i<16 and b==0 and q.index(("h",s))>q.index(("w",i,1)): dsw(("h",s))
        a(f"{MF} {vr(ACC+16*b,16)}, {vr(WR+4*(i&7),4)}, {vr(HF+4*s,4)}, {'0' if s==0 else vr(ACC+16*b,16)}")
        if i+4<32: rdw(i+4)
        if i>=19:
            for _ in range(3):
                if pend:
                    l=pend.pop(0)
                    if l.startswith("ds_"): dsi(l,("o",l))
                    else: a(l)
    assert not pend
    a("s_nop 7\ns_nop 1")
    for l in outw(2)+outw(3): a(l)
    a("s_waitcnt lgkmcnt(0)")
    RP(3)
    for i in range(8): a(f"ds_read_b128 {vr(HF+4*i,4)}, v15 offset:{1024*i}")
    for i in range(8):
        a(f"s_waitcnt lgkmcnt({7-i})\nbuffer_store_dwordx4 {vr(HF+4*i,4)}, v{8+(i&3)}, {sr(BS,4)}, s{33+(i>>2)} offen offset:{1024*(i&3)}{st}")
    RP(4)
    RT1()
    a("s_endpgm")
    CN=0; BA=1024; PK=2048; SG=3072
    D0=8; S0=16; BK=24; RK=32; PR=56
    a(f"""
K1_S:
s_cmp_ge_u32 s2, {G_W}
s_cbranch_scc1 K1_W
s_load_dwordx4 s[4:7], s[0:1], 24
s_load_dwordx2 s[8:9], s[0:1], 80
s_sub_u32 s3, s2, {G_S}
v_lshlrev_b32 v1, 4, v0
s_mul_i32 s10, s3, {C*4}
v_add_u32 v2, s10, v1
v_lshlrev_b32 v3, 2, v0
v_mov_b32 v4, 0
ds_write_b32 v3, v4 offset:{CN}
s_mov_b32 s14, {E*4}
s_mov_b32 s15, 0x20000
s_mov_b32 s18, {E*4}
s_mov_b32 s19, 0x20000
s_mov_b32 s22, {WS_END}
s_mov_b32 s23, 0x20000
s_movk_i32 s24, 21400
s_movk_i32 s25, -98
v_add_u32 v6, 4096, v2
v_cmp_gt_u32 vcc, {(C-1024)//4}, v0
v_cmp_gt_u32 s[30:31], s14, v2
v_cmp_gt_u32 s[34:35], s14, v6
s_and_b64 s[32:33], vcc, s[34:35]
s_waitcnt lgkmcnt(0)
s_mov_b32 s12, s6
s_mov_b32 s13, s7
s_mov_b32 s16, s4
s_mov_b32 s17, s5
buffer_load_dwordx4 v[8:11], v2, s[12:15], 0 offen
s_mov_b64 exec, s[32:33]
buffer_load_dwordx4 v[12:15], v6, s[12:15], 0 offen
s_mov_b64 exec, -1
buffer_load_dwordx4 v[16:19], v2, s[16:19], 0 offen
s_mov_b64 exec, s[32:33]
buffer_load_dwordx4 v[20:23], v6, s[16:19], 0 offen
s_mov_b64 exec, -1
s_mov_b32 s20, s8
s_mov_b32 s21, s9
v_mov_b32 v5, 1
v_and_b32 v7, 63, v0
v_lshlrev_b32 v7, 4, v7
s_and_b32 s26, s3, 7
s_lshl_b32 s26, s26, 5
s_lshr_b32 s27, s3, 3
s_add_u32 s26, s26, s27
s_mul_i32 s27, s26, {C}
s_lshl_b32 s28, s26, 2
s_add_u32 s28, s28, {WS_OFF}
s_lshl_b32 s29, s27, 3
s_add_u32 s29, s29, {WS_REC}
""")
    for x in range(2):
        src=2 if x==0 else 6
        e=PR+8*x+1
        a(f"""v_lshrrev_b32 v{e}, 12, v{src}
v_bfe_u32 v48, v{src}, 2, 10
v_lshl_or_b32 v{e}, v{e}, 16, v48""")
        for i in range(1,4): a(f"v_add_u32 v{e+2*i}, {i}, v{e}")
    a("s_waitcnt lgkmcnt(0)\ns_barrier")
    RP(1)
    for x in range(2):
        a(f"s_mov_b64 exec, s[{30+2*x}:{31+2*x}]\ns_waitcnt vmcnt({3-x})")
        R=range(4*x,4*x+4)
        for i in R: a(f"v_mul_u32_u24 v{BK+i}, s24, v{D0+i}")
        for i in R: a(f"v_lshrrev_b32 v{BK+i}, 21, v{BK+i}")
        for i in R: a(f"v_mad_i32_i24 v{D0+i}, v{BK+i}, s25, v{D0+i}")
        for i in R: a(f"v_lshlrev_b32 v{BK+i}, 2, v{BK+i}\nds_add_rtn_u32 v{RK+i}, v{BK+i}, v5 offset:{CN}")
    a("s_mov_b64 exec, -1\ns_waitcnt vmcnt(0)")
    RP(2)
    for i in range(8): a(f"v_lshl_or_b32 v{PR+2*i}, v{D0+i}, 19, v{S0+i}")
    a(f"""
s_waitcnt lgkmcnt(0)
s_barrier
ds_read_b128 v[16:19], v7 offset:{CN}
s_waitcnt lgkmcnt(0)
v_add_u32 v20, v16, v17
v_add3_u32 v20, v20, v18, v19
v_mov_b32 v21, v20
""")
    for s in ["row_shr:1 row_mask:0xf bank_mask:0xf bound_ctrl:0","row_shr:2 row_mask:0xf bank_mask:0xf bound_ctrl:0",
              "row_shr:4 row_mask:0xf bank_mask:0xf bound_ctrl:0","row_shr:8 row_mask:0xf bank_mask:0xf bound_ctrl:0",
              "row_bcast:15 row_mask:0xa bank_mask:0xf","row_bcast:31 row_mask:0xc bank_mask:0xf"]:
        a(f"s_nop 1\nv_add_u32_dpp v21, v21, v21 {s}")
    a(f"""
v_sub_u32 v48, v21, v20
v_add_u32 v49, v48, v16
v_add_u32 v50, v49, v17
v_add_u32 v51, v50, v18
ds_write_b128 v7, v[48:51] offset:{BA}
""")
    for i in range(8): a(f"ds_read_b32 v{BK+i}, v{BK+i} offset:{BA}")
    for i in range(4): a(f"v_add_u32 v{52+i}, s27, v{48+i}")
    for i in range(4): a(f"v_lshl_or_b32 v{16+i}, v{52+i}, 12, v{16+i}")
    a(f"""ds_write_b128 v7, v[16:19] offset:{PK}
ds_read_b32 v20, v3 offset:{PK}
v_lshlrev_b32 v21, 10, v0""")
    for x in range(2):
        a(f"s_mov_b64 exec, s[{30+2*x}:{31+2*x}]\ns_waitcnt lgkmcnt(6)")
        for i in range(4*x,4*x+4):
            a(f"v_add_lshl_u32 v{BK+i}, v{BK+i}, v{RK+i}, 3\nds_write_b64 v{BK+i}, {vr(PR+2*i,2)} offset:{SG}")
    a(f"""s_mov_b64 exec, -1
s_waitcnt lgkmcnt(8)
buffer_store_dword v20, v21, s[20:23], s28 offen
v_cmp_gt_u32 vcc, {C//2-768}, v0
s_add_u32 s30, s29, 4096
s_add_u32 s31, s29, 8192
s_add_u32 s32, s29, 12288
s_waitcnt lgkmcnt(0)
s_barrier""")
    RP(3)
    for i in range(4): a(f"ds_read_b128 {vr(8+4*i,4)}, v1 offset:{SG+4096*i}")
    for i in range(4):
        if i==3: a("s_mov_b64 exec, vcc")
        a(f"s_waitcnt lgkmcnt({3-i})\nbuffer_store_dwordx4 {vr(8+4*i,4)}, v1, s[20:23], s{29+i} offen{st}")
    RP(4)
    RT1()
    a(f"""
s_endpgm
K1_W:
s_load_dwordx2 s[4:5], s[0:1], 40
s_load_dwordx2 s[6:7], s[0:1], 56
s_load_dwordx2 s[8:9], s[0:1], 80
v_lshrrev_b32 v1, 6, v0
v_and_b32 v2, 31, v0
v_bfe_u32 v3, v0, 5, 1
v_readfirstlane_b32 s3, v1
s_sub_u32 s10, s2, {G_W-F0//4}
s_lshl_b32 s10, s10, 2
s_add_u32 s10, s10, s3
s_cmp_ge_u32 s10, {NWF}
s_cbranch_scc1 K1_END
s_cmp_eq_u32 s10, {NWF-1}
s_cbranch_scc1 K1_WX
; s10=f  s11=group(f>>5) s24=s s25=b
s_lshr_b32 s11, s10, 5
s_bfe_u32 s24, s10, 0x30002
s_and_b32 s25, s10, 3
v_and_b32 v4, 0x13, v2
v_and_b32 v5, 4, v2
v_lshl_or_b32 v4, v5, 1, v4
v_and_b32 v5, 8, v2
v_lshrrev_b32 v5, 1, v5
v_or_b32 v4, v4, v5
s_lshl_b32 s26, s24, 4
s_movk_i32 s27, 2048
s_movk_i32 s28, 512
s_movk_i32 s29, 256
s_mov_b32 s30, {LOG2E}
s_mov_b32 s14, {273*256}
s_mov_b32 s15, 0x20000
s_mov_b32 s18, {WS_W+NWF*1024}
s_mov_b32 s19, 0x20000
s_waitcnt lgkmcnt(0)
s_mov_b32 s12, s4
s_mov_b32 s13, s5
s_mov_b32 s16, s8
s_mov_b32 s17, s9
s_cmp_eq_u32 s11, 1
s_cbranch_scc1 K1_WGO
s_cmp_eq_u32 s11, 4
s_cbranch_scc0 K1_W3
s_movk_i32 s26, 257
s_cmp_eq_u32 s10, 132
s_cbranch_scc0 K1_WGO
s_movk_i32 s26, 256
s_mov_b32 s27, 0
s_mov_b32 s28, 4
s_mov_b32 s29, 2
v_and_b32 v2, 15, v0
v_lshlrev_b32 v2, 3, v2
s_branch K1_WGO
K1_W3:
s_mov_b32 s12, s6
s_mov_b32 s13, s7
s_mov_b32 s14, 65536
v_mov_b32 v2, v4
s_cmp_eq_u32 s11, 2
s_cbranch_scc1 K1_WGO
s_mov_b32 s30, 1.0
s_lshr_b32 s26, s24, 2
s_lshl_b32 s26, s26, 6
s_and_b32 s31, s24, 3
s_lshl_b32 s31, s31, 3
s_add_u32 s26, s26, s31
s_add_u32 s26, s26, 128
s_movk_i32 s27, 1024
s_movk_i32 s28, 256
s_movk_i32 s29, 8192
K1_WGO:
s_lshl_b32 s26, s26, 8
s_lshl_b32 s25, s25, 6
s_add_u32 s26, s26, s25
v_mul_u32_u24 v3, s27, v3
v_lshl_add_u32 v3, v2, 1, v3
""")
    for i in range(4):
        a(f"""buffer_load_ushort v{8+2*i}, v3, s[12:15], s26 offen
s_add_u32 s31, s26, s29
buffer_load_ushort v{9+2*i}, v3, s[12:15], s31 offen
s_add_u32 s26, s26, s28""")
    a(f"""
s_lshl_b32 s10, s10, 10
s_add_u32 s10, s10, {WS_W}
v_and_b32 v1, 63, v0
v_lshlrev_b32 v1, 4, v1
v_add_u32 v1, s10, v1
s_waitcnt vmcnt(0)
""")
    for i in range(8): a(f"v_lshlrev_b32 v{8+i}, 16, v{8+i}")
    for i in range(8): a(f"v_mul_f32 v{8+i}, s30, v{8+i}")
    for i in range(4): a(f"v_cvt_pk_bf16_f32 v{16+i}, v{8+2*i}, v{9+2*i}")
    a("""
buffer_store_dwordx4 v[16:19], v1, s[16:19], 0 offen
""")
    RT1()
    a(f"""s_endpgm
K1_WX:
s_load_dwordx2 s[12:13], s[0:1], 48
s_movk_i32 s14, 256
s_mov_b32 s15, 0x20000
s_mov_b32 s18, {WS_W+NWF*1024}
s_mov_b32 s19, 0x20000
v_lshlrev_b32 v3, 1, v2
v_lshlrev_b32 v1, 4, v2
s_mov_b32 s30, 0xbf317218
s_mov_b32 s10, {WS_W+(NWF-1)*1024}
s_waitcnt lgkmcnt(0)
s_mov_b32 s16, s8
s_mov_b32 s17, s9""")
    for b in range(4): a(f"buffer_load_ushort v{8+b}, v3, s[12:15], 0 offen offset:{64*b}")
    a("s_waitcnt vmcnt(0)")
    for b in range(4): a(f"v_lshlrev_b32 v{8+b}, 16, v{8+b}")
    for b in range(4): a(f"v_mul_f32 v{8+b}, s30, v{8+b}")
    a("buffer_store_dwordx4 v[8:11], v1, s[16:19], s10 offen")
    RT1()
    a("K1_END:")
    check(a.L,"k1")
    return kernel("k1_kernel", a, 168)
K1_LDS=65536
if __name__=="__main__":
    print(len(k1()),G1,hex(WS_POS),hex(WS_END))
```

```python
from asmlib import *
RTB=0x1000000
def kx(var,G):
    a=Asm()
    a(f"s_memrealtime s[40:41]\ns_cmp_ge_u32 s2, {G}\ns_cbranch_scc1 KX_END")
    if var in ("ld","ldh","lds_","ldh8"):
        a("s_load_dwordx4 s[4:7], s[0:1], 0\ns_load_dwordx2 s[8:9], s[0:1], 24\ns_waitcnt lgkmcnt(0)")
    if var.startswith("mov"):
        for i in range(int(var[3:])): a(f"v_mov_b32 v{2+i%8}, 0x12345")
    if var=="ldh": a("s_lshl_b32 s10, s2, 13\nv_lshl_add_u32 v1, v0, 4, s10\nglobal_load_dwordx4 v[4:7], v1, s[4:5]\ns_waitcnt vmcnt(0)")
    if var=="ldh8":
        a("s_mul_i32 s10, s2, 12288\nv_lshl_add_u32 v1, v0, 4, s10")
        for i in range(3): a(f"global_load_dwordx4 v[{4+4*i}:{7+4*i}], v1, s[4:5]\nv_add_u32 v1, 4096, v1")
        a("s_waitcnt vmcnt(0)")
    a(f"""s_memrealtime s[42:43]
s_load_dwordx2 s[44:45], s[0:1], 80
s_lshl_b32 s46, s2, 3
s_add_u32 s46, s46, {RTB}
s_waitcnt lgkmcnt(0)
v_mov_b32 v2, s40
v_mov_b32 v3, s42
v_mov_b32 v1, s46
global_store_dwordx2 v1, v[2:3], s[44:45]
KX_END:""")
    return kernel("k0_kernel",a,32)
```

```python
import sys, importlib.util
sys.path.insert(0,"gen")
import k1, k3
def load(n,p):
    sp=importlib.util.spec_from_file_location(n,p); m=importlib.util.module_from_spec(sp); sys.modules[n]=m; sp.loader.exec_module(m); return m
new=k1
o1=load("k1","k1.py"); o2=load("k2o","k2.py")
out=sys.argv[1]; q=(10,10); st=""; lo=0; n1=477; rt=True; kx_=None
for x in sys.argv[2:]:
    if x.startswith("q="): q=tuple(int(t) for t in x[2:].split(","))
    if x.startswith("st="): st=" "+x[3:].replace("+"," ")
    if x.startswith("rt="): rt=int(x[3:])
    if x.startswith("kx="): kx_=x[3:]
    if x.startswith("r="): lo,n1=(int(t) for t in x[2:].split(","))
hdr=f"; @launch kernel=k0_kernel grid=({new.G1},1,1) block=(256,1,1) lds={new.K1_LDS}\n; @launch kernel=k1_kernel grid=({o1.G1},1,1) block=(256,1,1) lds={o1.K1_LDS}\n; @launch kernel=k2_kernel grid=(256,1,1) block=(256,1,1) lds={o2.LDS}\n; @launch kernel=k3_kernel grid=(1,1,1) block=(64,1,1) lds=0\n"
t=new.k1(rt=rt,st=st).replace("K1_","K0_").replace("k1_kernel","k0_kernel")
if kx_:
    import kx; t=kx.kx(kx_,new.G1)
open(out,"w").write(hdr+'.amdgcn_target "amdgcn-amd-amdhsa--gfx950"\n'+t+o1.k1()+o2.k2()+k3.k3(q,lo,n1))
```

```python
import sys
sys.path.insert(0,"gen"); sys.path.insert(0,"mb")
from host import *
from asmlib import vr,ar,sr,check
ITER=400
MF="v_mfma_f32_32x32x16_bf16"
DX=0;DY=32;D2=64;T_=64+32;P_=T_+32
def spine(D):
    cvt=[f"v_cvt_pk_bf16_f32 v{P_+j}, v{T_+2*j}, v{T_+2*j+1}" for j in range(16)]
    ex=[f"v_exp_f32 v{T_+i}, v{D+i}" for i in range(32)]
    rc=[f"v_rcp_f32 v{T_+i}, v{T_+i}" for i in range(32)]
    mu=[f"v_pk_mul_f32 {vr(T_+2*j,2)}, {vr(D+2*j,2)}, {vr(T_+2*j,2)}" for j in range(16)]
    return cvt+ex+rc+mu
def place(S,items):
    it=sorted(range(len(items)),key=lambda i:(items[i][0],i)); out=[]; n=0
    for i,s in enumerate(S):
        while n<len(it) and items[it[n]][0]<=i: out.append(items[it[n]][1]); n+=1
        out.append(s)
    return out+[items[x][1] for x in it[n:]]
MPOS=[0,4,9,14,18,22,26,30,34,39,44,50,58,66]
def mfs(D):
    m=lambda d,A,B,c=None: f"{MF} {vr(d,16)}, {A}, {B}, {c or vr(d,16)}"
    p1=lambda i: f"v_mfma_f32_32x32x8bf16_1k {vr(T_+16*i,16)}, a[0:1], a[0:1], {vr(T_+16*i,16)}"
    I=lambda f,i: m(D+16*i,ar(4+4*i+8*f,4),ar(20+4*f,4),"0" if f==0 else None)
    sg=lambda s,i: m(D2+16*i,ar(28+4*s,4),vr(P_+8*i+4*s,4))
    X=lambda i: m(D+16*i,ar(36,4),ar(40+4*i,4))
    return [I(0,0),I(0,1),I(1,0),I(1,1),sg(0,0),sg(0,1),sg(1,0),sg(1,1),p1(0),X(0),X(1),p1(1),X(0),X(1)]
def slot(Dv,Dm,fill,mpos=MPOS,mf=True):
    it=[(p,m) for p,m in zip(mpos,mfs(Dm))] if mf else []
    return place(spine(Dv),it+fill)
def two(fill,**k): return slot(DX,DY,fill,**k)+slot(DY,DX,fill,**k)
rd=lambda s: f"ds_read_b128 {ar(56+4*(s%8),4)}, v150 offset:{1024*(s%16)}"
r32=lambda s: f"ds_read_b32 v{152+(s%8)}, v151 offset:{256*(s%16)}"
w64=lambda s: f"ds_write_b64 v149, v[160:161] offset:{512*(s%16)}"
dm=lambda i: f"buffer_load_dwordx4 v150, s[12:15], 0 offen offset:{1024*(i&3)} lds"
va=lambda i: f"v_add_u32 v{162+(i%6)}, v151, v151"
sa=lambda i: f"s_add_u32 s{40+(i%4)}, s{40+(i%4)}, 1"
wt=lambda i: "s_waitcnt vmcnt(32)"
free=[p for p in range(18,80) if p not in MPOS and p-1 not in MPOS]
aftm=MPOS
T={}
T["base"]=two([])
T["nomf"]=two([],mf=False)
for nm,f in (("sa",sa),("rd",rd),("r32",r32),("w64",w64),("va",va),("wt",wt),("dm",dm)):
    n=8 if nm=="dm" else 14
    T[nm+"_tr"]=two([(free[2*i+1],f(i)) for i in range(n)])
    T[nm+"_tr1"]=two([(free[i],f(i)) for i in range(n)])
    T[nm+"_am"]=two([(aftm[i],f(i)) for i in range(n)])
    T[nm+"_am1"]=two([(aftm[i]+1,f(i)) for i in range(n)])
    T[nm+"_pk"]=two([(81+i,f(i)) for i in range(n)])
T["rd2_tr"]=two([(free[i],rd(i)) for i in range(28)])
T["sa2_tr"]=two([(free[i],sa(i)) for i in range(28)])
T["mix_tr"]=two([(free[i],(sa,rd,r32,w64)[i&3](i)) for i in range(28)])
T["rd_am_x2"]=two([(aftm[i>>1],rd(i)) for i in range(28)])
def mk(name,body):
    return kernel(name,f"""
s_load_dwordx2 s[4:5], s[0:1], 0
s_load_dwordx2 s[12:13], s[0:1], 8
"""+"\n".join(f"v_mov_b32 v{i}, 0.5" for i in range(1,168))+"\n"+"\n".join(f"v_accvgpr_write_b32 a{i}, 0" for i in range(96))+f"""
v_and_b32 v149, 63, v0
v_lshlrev_b32 v150, 4, v149
v_lshlrev_b32 v151, 2, v149
v_lshlrev_b32 v149, 3, v149
v_lshrrev_b32 v1, 6, v0
s_nop 1
v_readfirstlane_b32 s20, v1
s_lshl_b32 s21, s20, 14
v_add_u32 v150, s21, v150
v_add_u32 v151, s21, v151
v_add_u32 v149, s21, v149
s_mov_b32 m0, s21
s_mov_b32 s14, 0x100000
s_mov_b32 s15, 0x20000
s_mov_b32 s22, {ITER}
s_waitcnt lgkmcnt(0)
s_barrier
s_memrealtime s[24:25]
s_memtime s[26:27]
s_waitcnt lgkmcnt(0)
.p2align 6
L_{name}:
"""+"\n".join(body)+f"""
s_sub_u32 s22, s22, 1
s_cmp_lg_u32 s22, 0
s_cbranch_scc1 L_{name}
s_waitcnt vmcnt(0) lgkmcnt(0)
s_memtime s[28:29]
s_memrealtime s[30:31]
s_waitcnt lgkmcnt(0)
s_sub_u32 s28, s28, s26
s_sub_u32 s30, s30, s24
v_mov_b32 v2, s28
v_mov_b32 v3, s30
s_lshl_b32 s2, s2, 3
v_mov_b32 v1, s2
global_store_dwordx2 v1, v[2:3], s[4:5]
""",vgpr=168+96 if "big" in sys.argv else 256,acc=168 if "big" in sys.argv else 160) if False else kernel(name,"",vgpr=8)
def mk2(name,body):
    txt=f"""
s_load_dwordx2 s[4:5], s[0:1], 0
s_load_dwordx2 s[12:13], s[0:1], 8
"""+"\n".join(f"v_mov_b32 v{i}, 0.5" for i in range(1,168))+"\n"+"\n".join(f"v_accvgpr_write_b32 a{i}, 0" for i in range(88))+f"""
v_and_b32 v149, 63, v0
v_lshlrev_b32 v150, 4, v149
v_lshlrev_b32 v151, 2, v149
v_lshlrev_b32 v149, 3, v149
v_lshrrev_b32 v1, 6, v0
s_nop 1
v_readfirstlane_b32 s20, v1
s_lshl_b32 s21, s20, 14
v_add_u32 v150, s21, v150
v_add_u32 v151, s21, v151
v_add_u32 v149, s21, v149
s_mov_b32 m0, s21
s_mov_b32 s14, 0x100000
s_mov_b32 s15, 0x20000
s_mov_b32 s22, {ITER}
s_waitcnt lgkmcnt(0)
s_barrier
s_memrealtime s[24:25]
s_memtime s[26:27]
s_waitcnt lgkmcnt(0)
.p2align 6
L_{name}:
"""+"\n".join(body)+f"""
s_sub_u32 s22, s22, 1
s_cmp_lg_u32 s22, 0
s_cbranch_scc1 L_{name}
s_waitcnt vmcnt(0) lgkmcnt(0)
s_memtime s[28:29]
s_memrealtime s[30:31]
s_waitcnt lgkmcnt(0)
s_sub_u32 s28, s28, s26
s_sub_u32 s30, s30, s24
v_mov_b32 v2, s28
v_mov_b32 v3, s30
s_lshl_b32 s2, s2, 3
v_mov_b32 v1, s2
global_store_dwordx2 v1, v[2:3], s[4:5]
"""
    return kernel(name,txt,vgpr=256,acc=168)
def main(T):
    asm=HEAD; names=[]
    for nm,L in T.items():
        L=[l.replace("a[64+","a[") for l in L]
        check(L+L[:30],nm)
        asm+=mk2(nm+"_kernel",L); names.append((nm+"_kernel",(256,1,1),(512,1,1),0))
    co=build(asm,names,11,"fill")
    if "local" in sys.argv: return
    m=Mod(co); out=DeviceBuffer(1<<16); tab=DeviceBuffer(8<<20)
    for nm in T:
        r=[]
        for blk in (256,512):
            for rep in range(3):
                m.launch(nm+"_kernel",(256,1,1),(blk,1,1),160*1024,[out.ptr,tab.ptr]+[out.ptr]*9); sync()
            o=out.to_numpy(np.uint32,(256,2))
            r+=[np.median(o[:,0])/ITER/(blk//256),np.median(o[:,1])*10/ITER/(blk//256)]
        print(f"{nm:10s} n={len(T[nm])} 1w: {r[0]:7.1f} cyc {r[1]:6.1f} ns | 2w: {r[2]:7.1f} cyc {r[3]:6.1f} ns")
if __name__=="__main__": main(T)
```

```python
import sys
sys.path.insert(0,"gen"); sys.path.insert(0,"mb")
import fill
from fill import *
S=spine(DX)
cvt,ex,rc,mu=S[:16],S[16:48],S[48:80],S[80:]
T={}
for n in (1,2,3,4,6,8,12,16): T[f"ex{n}"]=ex*n
for n in (1,2,4,8,16,24): T[f"cvt{n}"]=cvt*n
B=two([])
for n in (1,2,3,4): T[f"base{n}"]=B*n
A=two([],mf=False)
for n in (1,2,3,4): T[f"nomf{n}"]=A*n
T["brk"]=ex*2+["s_branch LX_brk","s_nop 0","LX_brk:"]+ex*2
T["brk64"]=ex*2+["s_branch LX_brk64"]+["s_nop 0"]*64+["LX_brk64:"]+ex*2
T["nbrk"]=ex*2+["s_cbranch_execz LX_nbrk"]+ex*2+["LX_nbrk:"]
main(T)
```

```python
from asmlib import Asm, kernel as akernel
def k3(k,avg=0,base=0x1010000,nw=256,stride=16):
    a=Asm(); nul=k==9; post=k==8; k={9:0,8:1}.get(k,k)
    a(f"""s_cmp_ge_u32 s2, 1
s_cbranch_scc1 K3_END
s_memrealtime s[20:21]
s_load_dwordx2 s[4:5], s[0:1], 80
v_mul_u32_u24 v1, {stride}, v0
v_add_u32 v1, {base}, v1
v_mov_b32 v10, -1
v_mov_b32 v11, 0
s_waitcnt lgkmcnt(0)""")
    for i in range(nw//64):
        a(f"global_load_dword v{12+2*i}, v1, s[4:5]\nglobal_load_dword v{13+2*i}, v1, s[4:5] offset:{4*k}\nv_add_u32 v1, {64*stride}, v1")
    a("s_waitcnt vmcnt(0)")
    for i in range(nw//64): a(f"v_min_u32 v10, v10, v{12+2*i}")
    a("s_mov_b32 s10, -1\ns_mov_b32 s16, 0\nK3_L:\nv_readlane_b32 s17, v10, s16\ns_min_u32 s10, s10, s17\ns_add_u32 s16, s16, 1\ns_cmp_lt_u32 s16, 64\ns_cbranch_scc1 K3_L")
    for i in range(nw//64): a(f"v_subrev_u32 v{13+2*i}, s10, v{13+2*i}\nv_{'add' if avg else 'max'}_u32 v11, v11, v{13+2*i}")
    a(f"s_mov_b32 s11, 0\ns_mov_b32 s16, 0\nK3_M:\nv_readlane_b32 s17, v11, s16\ns_{'add' if avg else 'max'}_u32 s11, s11, s17\ns_add_u32 s16, s16, 1\ns_cmp_lt_u32 s16, 64\ns_cbranch_scc1 K3_M")
    if post: a("s_sub_u32 s20, s20, s10\ns_sub_u32 s11, s20, s11")
    a(f"""{f"s_lshr_b32 s18, s11, {nw.bit_length()-3}" if avg else "s_lshl_b32 s18, s11, 2"}
s_min_u32 s18, s18, {0 if nul else 40000}
s_memrealtime s[22:23]
s_waitcnt lgkmcnt(0)
K3_W:
s_memrealtime s[24:25]
s_waitcnt lgkmcnt(0)
s_sub_u32 s19, s24, s22
s_cmp_lt_u32 s19, s18
s_cbranch_scc1 K3_W
K3_END:""")
    return akernel("k3_kernel",a,48)
```

```python
from asmlib import *
N=25000; E=400000; NB=98; CAP=1792; WR=CAP//4; C=1568
WS_OFF=0; WS_F2=0x80000; WS_REC=0x81000; WS_POS=WS_REC+256*C*8; WS_END=WS_POS+N*16; WS_B=0x400000
assert WS_END<=WS_B-3072
LOG2E=0xbfb8aa3b; NLN2=0xbf317218; SC=" sc1"; ST=" sc0 sc1"; SPIN=20000
TSB=0x1300000; DMPB=0x1400000; TLB=0x1100000; RTB=0x1010000
PD=0; REC=1568; CNT=REC+CAP*16; BASE=CNT+512; TRASH=BASE+576+32
SRC=REC+(CAP+96)*16; TB=SRC+CAP*2; WD=TB+128; AT=WD+256; ZR=AT+98*264; SB=ZR+256; MT=SB+8192; FX=MT+98*272; LEND=FX+32
MK=REC+512; W3T=MK+8192; SG=W3T+4096; CN=SG+C*8; BA=CN+1024; OFT=96768
STG=98304; LDS=163840
assert BA+1024<=CNT and SG%16==0 and LEND<=OFT and OFT+1024<=STG
assert LEND<=STG and TRASH+272<=SRC and ZR%16==0 and MT%16==0 and AT%16==0 and REC==98*16 and 32768<LEND-ZR<=36864
H=4; EA=8; POS=12; WS=16; OUT=20; HO=24
sN0=28; sNN=29; sW=30; sR0=31; sNT=32; sM=33; sCap=34; sNP=35; sK=36; sk=37; sEv=38; sTF=39; sTW=40
sNb=41; sNbF=42; sKm1=43; sKh=44; sId=45; sM0=46; sCEA=50; sC256=51; sMB=52; sWR=53; sNRH=54; sNRE=55
sT=56
sMask=60
sOne10=65; sOne01=66
sInit=74; sB=75; sU=76
sTS=84
DSTS=60; SRCS=64; WE=68; sLG=72; sMx=76; DBG=80; WH=HO; WX=OUT; sTgA=38; sTgB=39
NRH=N*256+3072; NRE=E*32
DX=0; DY=32; D2=64; T_=128; P_=160; FT=176; vDA=176
aAh=192; cDma=200; vSrc=208; vRec=212; vPd=216; vEid=219; vPs=220; vFx=223; vWx=224
aRec=228; aSrc=229; aS=230; cSc=231; aSc=232; vOH=234; mulL=235; vX=236; vInc=237; vH16=238; aPB=239; aPS=240
vS16=241; vN8=242; cAW0=243; cAW1=244; cMT=245; cPT=246; vFL=247; vB=248; vT=254; vEA=255
aWh=0; aOne=64; aW3=128; aAW=144; aH=160; aHL=192; aE=224; aOH=232; aSf=236; aZ=244; aSel=248
aY=lambda b: 16*b
MF="v_mfma_f32_32x32x16_bf16"
def mf(d,A,B,c=None,dk="v"):
    return f"{MF} {vr(d,16,dk)}, {A}, {B}, {vr(d,16,dk) if c is None else c}"
def scan(a,regs,op="add"):
    ins={"add":"v_add_u32_dpp","max":"v_max_u32_dpp"}[op]
    steps=["row_shr:1 row_mask:0xf bank_mask:0xf bound_ctrl:0","row_shr:2 row_mask:0xf bank_mask:0xf bound_ctrl:0",
           "row_shr:4 row_mask:0xf bank_mask:0xf bound_ctrl:0","row_shr:8 row_mask:0xf bank_mask:0xf bound_ctrl:0",
           "row_bcast:15 row_mask:0xa bank_mask:0xf","row_bcast:31 row_mask:0xc bank_mask:0xf"]
    for s in steps:
        if len(regs)<3: a(f"s_nop {2-len(regs)}")
        for r in regs: a(f"{ins} v{r}, v{r}, v{r} {s}")

def cost(l):
    op=l.split()[0]
    if op.startswith(TRANS): return 8
    if op.startswith("v_mfma"): return 8
    return 4
def spine(D):
    cvt=[f"v_cvt_pk_bf16_f32 v{P_+j}, v{T_+2*j}, v{T_+2*j+1}" for j in range(16)]
    ex=[f"v_exp_f32 v{T_+i}, v{D+i}" for i in range(32)]
    ad=[f"v_pk_add_f32 {vr(T_+2*j,2)}, {vr(T_+2*j,2)}, 1.0 op_sel_hi:[1,0]" for j in range(16)]
    rc=[f"v_rcp_f32 v{T_+i}, v{T_+i}" for i in range(32)]
    mu=[f"v_pk_mul_f32 {vr(T_+2*j,2)}, {vr(D+2*j,2)}, {vr(T_+2*j,2)}" for j in range(16)]
    return cvt,ex,ad,rc,mu
def place(S,items):
    it=sorted(range(len(items)),key=lambda i:(items[i][0],i)); out=[]; n=0
    for i,s in enumerate(S):
        while n<len(it) and items[it[n]][0]<=i: out.append(items[it[n]][1]); n+=1
        out.append(s)
    return out+[items[x][1] for x in it[n:]]
def P1(i): return f"v_mfma_f32_32x32x8bf16_1k {vr(T_+16*i,16)}, {ar(aOne,2)}, {ar(aOne,2)}, {vr(T_+16*i,16)}"
def mainmf(D,b0,epar):
    I=lambda f,i: mf(D+16*i, ar(aH+4*(2*(b0+i)+f),4), ar(aSel+4*f,4), "0" if f==0 else None)
    Ee=lambda i: mf(D+16*i, ar(aE+4*epar,4), ar(aW3+4*(b0+i),4))
    O=lambda i: mf(D+16*i, ar(aOH,4), ar(aAW+4*(b0+i),4))
    return I,Ee,O
def seg(b0,s,i): return mf(D2+16*(b0+i), ar(aSf+4*s,4), vr(P_+8*i+4*s,4))
def phaseB(ps,pd,addr,off,tb=vB):
    return [f"v_sub_f32 v{tb}, v{pd}, v{ps}",
      f"v_sub_f32 v{tb+1}, v{pd+1}, v{ps+1}",
      f"v_sub_f32 v{tb+2}, v{pd+2}, v{ps+2}",
      f"v_mul_f32 v{tb+3}, v{tb}, v{tb}",
      f"v_cvt_pk_bf16_f32 v{tb}, v{tb}, v{tb+1}",
      f"v_fmac_f32 v{tb+3}, v{tb+1}, v{tb+1}",
      f"v_fmac_f32 v{tb+3}, v{tb+2}, v{tb+2}",
      f"v_cvt_pk_bf16_f32 v{tb+2}, v{tb+2}, v{tb+3}",
      f"ds_write_b32 v{addr}, v{tb} offset:{off}",
      f"ds_write_b16 v{addr}, v{tb+2} offset:{off+4}",
      f"ds_write_b16_d16_hi v{addr}, v{tb+2} offset:{off+8}"]
def dma(i,src,da):
    return (f"v_mad_u32_u16 v{da}, v{src+(i>>1)}, s{sC256}, v{cDma+i} op_sel:[{i&1},0,0,0]",
            f"buffer_load_dwordx4 v{da}, {sr(H,4)}, 0 offen offset:{1024*(i&3)}{SC} lds")
MPOS=[0,4,9,14,18,22,26,30,34,39,44,50,58,66]
def slotmf(D,b0,sb,epar):
    I,Ee,O=mainmf(D,b0,epar)
    return [I(0,0),I(0,1),I(1,0),I(1,1),seg(sb,0,0),seg(sb,0,1),seg(sb,1,0),seg(sb,1,1),P1(0),Ee(0),Ee(1),P1(1),O(0),O(1)]
def build_slot(D,M,post,pre,mpos=MPOS):
    cvt,ex,ad,rc,mu=spine(D); it=[]
    for i,m in enumerate(M):
        it+=[(mpos[i],x) for x in pre[i]]+[(mpos[i],m)]+[(mpos[i],x) for x in post[i]]
    return place(cvt+ex+rc+mu,it)
def slotA(p):
    M=slotmf(DY,2,2,p)
    buf=8192*(1-p)
    rd=lambda s: f"ds_read_b128 {ar(aH+4*s,4)}, v{aAh+s} offset:{buf}"
    tr=lambda j: f"ds_read_b64_tr_b16 {ar(aSf+2*j,2)}, v{aS} offset:{512*j}"
    post=[[] for _ in M]; pre=[[] for _ in M]
    post[0]+=[f"ds_read_b128 {vr(vRec,4)}, v{aRec} offset:{512*(1+p)}",f"ds_read_b32 v{vEid}, v{aRec} offset:{512*(2+p)+12}"]
    post[1]+=[f"ds_read_b128 {vr(vSrc,4)}, v{aSrc} offset:{192+64*p}"]
    post[4]+=[f"s_waitcnt vmcnt({9+p})",rd(0),rd(1)]
    post[5]+=[tr(0),tr(1),rd(2)]
    post[6]+=[rd(3),rd(4)]
    post[7]+=[tr(2),tr(3),rd(5)]
    post[8]+=[rd(6),rd(7)]
    if p==0:
        B=phaseB(vPs,vPd,aPB,1024)
        post[4]+=B[0:2]; post[5]+=B[2:4]; post[6]+=B[4:6]; post[7]+=B[6:7]; post[8]+=B[7:8]
        post[9]+=B[8:11]
        post[10]+=[f"ds_read_u16 v{vS16}, v{aPS} offset:256",f"ds_read_u16 v{vN8}, v{aPB} offset:{2048+10}"]
    else:
        post[1]+=[f"v_lshlrev_b32 v{vB}, 4, v{vS16}",f"v_lshlrev_b32 v{vB+1}, 1, v{vN8}"]
        post[2]+=[f"ds_read_b96 {vr(vPd,3)}, v{vB+1} offset:{PD}",f"buffer_load_dwordx3 {vr(vPs,3)}, v{vB}, {sr(POS,4)}, 0 offen{SC}"]
        post[9]+=[f"v_add_u32 v{aRec}, 1024, v{aRec}",f"v_add_u32 v{aSrc}, 128, v{aSrc}"]
        post[10]+=[f"v_add_u32 v{aPB}, 1024, v{aPB}",f"v_add_u32 v{aPS}, 128, v{aPS}"]
    post[11]+=[f"s_add_u32 s{sk}, s{sk}, 1"]
    return build_slot(DX,M,post,pre)
def fillB(p):
    post=[[] for _ in range(14)]; pre=[[] for _ in range(14)]
    d=[dma(i,vSrc,vDA+i) for i in range(8)]
    post[0]+=[f"ds_write_b64 v{aSc+p}, {ar(aZ,2)}",
              f"v_mad_u32_u16 v{vOH}, v{vRec+2}, v{mulL}, v{vX} op_sel:[1,0,0,0]",
              f"v_dot2_u32_u16 v{vEA}, v{vEid}, s{sCEA}, v{vH16}",
              f"v_mad_u32_u16 v{aSc+1-p}, v{vRec+2}, 1, v{cSc} op_sel:[1,0,0,0]"]
    post[1]+=[f"ds_read_b128 {ar(aOH,4)}, v{vOH}",
              f"ds_write_b64 v{aSc+1-p}, {vr(vRec,2)}",
              f"buffer_load_dwordx4 {ar(aE+4*p,4)}, v{vEA}, {sr(EA,4)}, 0 offen",
              f"s_cmp_lt_i32 s{sk}, s{sKh}",f"s_cselect_b32 s{H+2}, s{sNRH}, 0",f"s_mov_b32 m0, s{sM0+2*(1-p)}",
              d[0][0],d[1][0]]
    post[2]+=[d[0][1],d[1][1],f"s_cselect_b32 s{EA+2}, s{sNRE}, 0",d[2][0],d[3][0]]
    post[3]+=[d[2][1],d[3][1],f"s_mov_b32 m0, s{sM0+2*(1-p)+1}",d[4][0],d[5][0]]
    post[4]+=[d[4][1],d[5][1],d[6][0],d[7][0]]
    post[5]+=[d[6][1],d[7][1],f"v_add_u32 v{vX}, v{vInc}, v{vX}"]
    pre[9]+=[f"s_waitcnt vmcnt({17+p})"]
    pre[12]+=["s_waitcnt lgkmcnt(0)"]
    return post,pre
def slotB(p):
    post,pre=fillB(p)
    return build_slot(DY,slotmf(DX,0,0,1-p),post,pre,[0,4,6,9]+MPOS[4:])
def slotBlite():
    post,pre=fillB(1); M=slotmf(DX,0,0,0); out=[]
    for i in range(14):
        out+=pre[i]
        if i<4 or i in (9,10,12,13): out.append(M[i])
        out+=post[i]
    return out
def kf(dbg=None,ts=False,opt=(),name="kf_kernel"):
    a=Asm()
    tsn=[0]
    tsi=[0]; skip=[int(x) for o in opt if o.startswith("skip:") for x in o[5:].split("+")]
    def TS():
        tsi[0]+=1
        if ts and tsn[0]<12 and tsi[0]-1 not in skip:
            a(f"s_memtime s[96:97]\ns_waitcnt lgkmcnt(0)\ns_mov_b32 s{sTS+tsn[0]}, s96"); tsn[0]+=1
    def RS(i):
        if f"rs{i}" in opt: a("s_memrealtime s[96:97]\ns_waitcnt lgkmcnt(0)\ns_mov_b32 s99, s96")
    def dump(tag):
        if dbg!=tag: return
        a(f"""s_waitcnt vmcnt(0) lgkmcnt(0)
s_barrier
s_mul_i32 s{sT}, s2, {LDS}
s_add_u32 s{sT}, s{sT}, {DMPB}
s_mov_b32 s{WS+2}, 0x8000000
v_lshlrev_b32 v1, 4, v{vT}
s_mov_b32 s{sT+1}, 0
DUMPL:
ds_read_b128 v[4:7], v1
s_waitcnt lgkmcnt(0)
buffer_store_dwordx4 v[4:7], v1, {sr(WS,4)}, s{sT} offen
v_add_u32 v1, 4096, v1
s_waitcnt vmcnt(0)
s_add_u32 s{sT+1}, s{sT+1}, 1
s_cmp_lt_u32 s{sT+1}, 40
s_cbranch_scc1 DUMPL
s_endpgm""")
    def wdma(v,srd,g0,l0):
        L=[]
        for i in range(8):
            pre=[]
            if i==0: pre=[f"s_lshl_b32 s{sT}, s{sW}, 13",f"s_add_u32 m0, s{sT}, {l0}",f"s_add_u32 s{sT}, s{sT}, {g0}"]
            if i==4: pre=[f"s_add_u32 m0, m0, 4096",f"s_add_u32 s{sT}, s{sT}, 4096"]
            L.append(pre+[f"buffer_load_dwordx4 v{v}, {sr(srd,4)}, s{sT} offen offset:{1024*(i&3)} lds"])
        return L
    def whdma():
        a(f"""v_and_b32 v{vB}, 63, v{vT}
v_lshrrev_b32 v{vB+1}, 4, v{vB}
s_and_b32 s{sT+1}, s{sW}, 1
v_and_b32 v{vB+2}, 1, v{vB+1}
s_lshl_b32 s{sT+1}, s{sT+1}, 3
v_lshl_or_b32 v{vB+2}, v{vB+2}, 2, s{sT+1}
v_and_b32 v{vB}, 15, v{vB}
v_xor_b32 v{vB}, v{vB}, v{vB+2}
v_lshlrev_b32 v{vB}, 4, v{vB}
s_lshl_b32 s{sT}, s{sW}, 13
s_mov_b32 m0, s{sM0}
s_add_u32 s{sT}, s{sT}, 32768
v_lshl_or_b32 v{vB}, v{vB+1}, 8, v{vB}""")
        for i in range(4): a(f"buffer_load_dwordx4 v{vB}, {sr(WH,4)}, s{sT} offen offset:{1024*i} lds")
        a(f"s_mov_b32 m0, s{sM0+1}\ns_add_u32 s{sT}, s{sT}, 4096")
        for i in range(4): a(f"buffer_load_dwordx4 v{vB}, {sr(WH,4)}, s{sT} offen offset:{1024*i} lds")
    q=[]
    def dsi(l,tag): a(l); q.append(tag)
    def dsw(tag):
        n=len(q)-1-q.index(tag); a(f"s_waitcnt lgkmcnt({min(n,15)})")
    def emit(l):
        if l.startswith("ds_"): dsi(l,("x",len(a.L)))
        else: a(l)
    BIG="v_bfrev_b32 v{}, 2"
    vG=40; vS4=44; vWd=45; vXB=46; hA=48; vW=56; vWp=60
    PR=64; BK=80; RKS=88; ACC=64; RING=128; BST=160; vDr=252
    if "rt" in opt: a("s_memrealtime s[100:101]")
    a(f"""
s_memrealtime {sr(sTgA,2)}
s_cmp_ge_u32 s2, 256
s_cbranch_scc1 K2_END
s_load_dwordx2 {sr(DSTS,2)}, s[0:1], 32
s_load_dwordx2 {sr(SRCS,2)}, s[0:1], 24
s_load_dwordx2 {sr(DBG,2)}, s[0:1], 72
s_load_dwordx2 {sr(HO,2)}, s[0:1], 0
s_load_dwordx2 {sr(WE,2)}, s[0:1], 40
s_load_dwordx2 {sr(POS,2)}, s[0:1], 8
s_load_dwordx2 {sr(WS,2)}, s[0:1], 80
s_load_dwordx2 {sr(EA,2)}, s[0:1], 16
s_load_dwordx2 {sr(WX,2)}, s[0:1], 48
v_lshlrev_b32 v{vS4}, 4, v0
s_mul_i32 s{sT}, s2, {C*4}
v_lshrrev_b32 v1, 6, v0
s_mov_b32 s{DSTS+2}, {E*4}
v_add_u32 v2, s{sT}, v{vS4}
v_readfirstlane_b32 s{sW}, v1
v_add_u32 v3, 4096, v2
v_cmp_gt_u32 vcc, {(C-1024)//4}, v0
v_cmp_gt_u32 {sr(sMx+2,2)}, s{DSTS+2}, v3
v_cmp_gt_u32 {sr(sMx,2)}, s{DSTS+2}, v2
{BIG.format(25)}
s_mov_b32 s{DSTS+3}, 0x20000
s_and_b64 {sr(sMx+2,2)}, {sr(sMx+2,2)}, vcc
s_mov_b32 s{SRCS+2}, {E*4}
s_mov_b32 s{SRCS+3}, 0x20000
v_cndmask_b32 v24, v25, v3, {sr(sMx+2,2)}
v_mov_b32 v{vT}, v0
v_and_b32 v4, 63, v0
s_and_b32 s{sT}, s2, 7
s_lshl_b32 s{sT}, s{sT}, 5
s_lshr_b32 s{sT+1}, s2, 3
s_add_u32 s{sB}, s{sT}, s{sT+1}
s_mul_i32 s{sN0}, s{sB}, {NB}
v_lshrrev_b32 v32, 4, v4
v_and_b32 v33, 15, v4
v_xor_b32 v{vG}, v32, v33
v_lshlrev_b32 v{vG}, 4, v{vG}
v_lshl_or_b32 v{vG}, v32, 8, v{vG}
s_lshl_b32 s{sT}, s{sW}, 6
v_xor_b32 v30, s{sT}, v{vG}
v_or_b32 v25, s2, v0
v_lshlrev_b32 v25, 8, v25
s_mov_b32 s{DBG+2}, 256
s_mov_b32 s{DBG+3}, 0x20000
s_mov_b32 s{HO+2}, {N*256}
s_mov_b32 s{HO+3}, 0x20000
s_lshl_b32 s{sT+2}, s{sN0}, 8
s_lshl_b32 s{sT+1}, s{sW}, 10
s_add_u32 s{sT+1}, s{sT+1}, s{sT+2}
s_mul_i32 s{sT+3}, s{sW}, 1056
s_add_u32 m0, s{sT+3}, {AT}
s_waitcnt lgkmcnt(0)
""")
    TS()
    nv=[0]
    def vm(l): a(l); nv[0]+=1
    vm(f"buffer_load_dwordx4 v[8:11], v2, {sr(DSTS,4)}, 0 offen")
    vm(f"buffer_load_dwordx4 v[12:15], v24, {sr(DSTS,4)}, 0 offen")
    vm(f"buffer_load_dwordx4 v[16:19], v2, {sr(SRCS,4)}, 0 offen")
    vm(f"buffer_load_dwordx4 v[20:23], v24, {sr(SRCS,4)}, 0 offen")
    a(f"""s_lshl_b32 s{sTgB}, s{sTgB}, 23
s_or_b32 s{sTgB}, s{sTgB}, 1
v_mov_b32 v26, s{sTgA}
v_mov_b32 v27, s{sTgB}""")
    vm(f"buffer_store_dwordx2 v[26:27], v25, {sr(DBG,4)}, 0 offen{ST}")
    fill=[]
    for x in range(2):
        e=PR+8*x+1
        fill+=[f"v_lshrrev_b32 v{e}, 12, v{2+x}",f"v_bfe_u32 v31, v{2+x}, 2, 10",f"v_lshl_or_b32 v{e}, v{e}, 16, v31"]+[f"v_add_u32 v{e+2*i}, {i}, v{e}" for i in range(1,4)]
    fill+=[f"v_lshlrev_b32 v31, 2, v32",f"v_xor_b32 v31, v33, v31",f"v_lshlrev_b32 v31, 4, v31",f"v_lshl_or_b32 v{vWd}, v32, 8, v31",
           f"s_mov_b32 s{WE+2}, {273*256}",f"s_mov_b32 s{WE+3}, 0x20000"]
    for t in range(6):
        vm(f"buffer_load_dwordx4 v30, {sr(HO,4)}, s{sT+1} offen lds")
        if t<5: a(f"s_add_u32 m0, m0, 4224\ns_add_u32 s{sT+1}, s{sT+1}, 4096")
        for _ in range(3): a(fill.pop(0))
    assert not fill
    a(f"""s_mov_b32 m0, {AT+24*1056}
s_add_u32 s{sT+2}, s{sT+2}, {24*1024}
s_mov_b32 exec_hi, 0""")
    vm(f"buffer_load_dwordx4 v{vG}, {sr(HO,4)}, s{sT+2} offen lds")
    a("s_mov_b32 exec_hi, -1")
    V=wdma(vWd,WE,32768,STG)
    V+=[[f"buffer_load_short_d16_hi v{36+i}, v30, {sr(POS,4)}, 0 offen offset:{2*i}"] for i in range(3)]
    V+=wdma(vWd,WE,0,STG+32768)
    V+=[[f"s_lshl_b32 s{sT}, s{sW}, 10",f"s_add_u32 m0, s{sT}, {W3T}",f"s_add_u32 s{sT}, s{sT}, {257*256}",f"buffer_load_dwordx4 v{vWd}, {sr(WE,4)}, s{sT} offen lds"]]
    V+=[[f"s_mov_b32 s{sT}, 65536",f"buffer_load_dword v{vDr}, v26, {sr(WE,4)}, s{sT} offen"]]
    V+=[[f"buffer_load_short_d16_hi v{vWx+b}, v27, {sr(WX,4)}, 0 offen offset:{64*b}"] for b in range(4)]
    K=Asm()
    K(f"""
s_load_dwordx2 {sr(WH,2)}, s[0:1], 56
v_add_u32 v31, s{sN0}, v0
v_cmp_gt_u32 vcc, {NB}, v0
{BIG.format(24)}
v_mul_u32_u24 v30, 6, v31
v_lshlrev_b32 v31, 4, v31
v_cndmask_b32 v30, v24, v30, vcc
v_cndmask_b32 v31, v24, v31, vcc
v_mov_b32 v36, 0
v_mov_b32 v37, 0
v_mov_b32 v38, 0
v_mov_b32 v39, 0
s_mov_b32 s{POS+2}, {N*6}
s_mov_b32 s{POS+3}, 0x20000
v_lshlrev_b32 v1, 4, v4
v_and_b32 v5, 31, v4
v_lshrrev_b32 v6, 5, v4
v_lshlrev_b32 v26, 2, v4
v_lshlrev_b32 v27, 1, v5
s_movk_i32 s{WX+2}, 256
s_mov_b32 s{WX+3}, 0x20000
v_mov_b32 v{vWx}, 0
v_mov_b32 v{vWx+1}, 0
v_mov_b32 v{vWx+2}, 0
v_mov_b32 v{vWx+3}, 0
; ---- LDS clears
v_mov_b32 v96, 0
v_mov_b32 v97, 0
v_mov_b32 v98, 0
v_mov_b32 v99, 0
v_lshlrev_b32 v2, 2, v0
ds_write_b32 v2, v96 offset:{CN}
s_lshl_b32 s{sMB}, s{sW}, 11
s_add_u32 s{sMB}, s{sMB}, {MK}
v_add_u32 v2, s{sMB}, v1
ds_write_b128 v2, v[96:99]
ds_write_b128 v2, v[96:99] offset:1024
v_lshlrev_b32 v28, 3, v4
ds_write_b64 v28, v[96:97] offset:{CNT}
v_add_u32 v2, {ZR}, v{vS4}
v_add_u32 v3, 0x8000, v2
v_min_u32 v3, {LEND-16}, v3
""")
    for i in range(8): K(f"ds_write_b128 v2, v[96:99] offset:{4096*i}")
    K(f"""
ds_write_b128 v3, v[96:99]
v_lshl_add_u32 v7, s{sW}, 5, v5
v_lshlrev_b32 v{vH16}, 4, v6
s_mov_b32 s{WS+2}, {WS_END}
s_mov_b32 s{WS+3}, 0x20000
s_mov_b32 s{sR0}, 0
s_movk_i32 s{sCap}, {CAP}
s_mov_b32 s{sInit}, 0
s_lshl_b32 s{sM0}, s{sW}, 14
s_add_u32 s{sM0}, s{sM0}, {STG}
s_add_u32 s{sM0+1}, s{sM0}, 4096
s_add_u32 s{sM0+2}, s{sM0}, 8192
s_add_u32 s{sM0+3}, s{sM0}, 12288
s_add_u32 s{H}, s{WS}, {WS_B-3072}
s_addc_u32 s{H+1}, s{WS+1}, 0
s_mov_b32 s{sNRH}, {NRH}
s_cmp_eq_u32 s{sW}, 3
s_cselect_b32 s{H+2}, 0, s{sNRH}
s_mov_b32 s{H+3}, 0x20000
s_mov_b32 s{sNRE}, {NRE}
s_mov_b32 s{EA+2}, {NRE}
s_mov_b32 s{EA+3}, 0x20000
s_mov_b32 s{sCEA}, {32|(32768<<16)}
s_movk_i32 s{sC256}, 256
s_sub_u32 s{sNN}, {N}, s{sN0}
s_min_u32 s{sNN}, s{sNN}, {NB}
s_mov_b32 s{sId}, 1
s_mul_i32 s{sWR}, s{sW}, {WR}
v_lshrrev_b32 v100, 3, v5
v_and_b32 v101, 3, v5
v_cmp_eq_u32 vcc, v100, v101
v_lshlrev_b32 v100, 2, v5
v_and_b32 v101, 16, v100
v_mov_b32 v102, 0x3F80
v_lshlrev_b32 v102, v101, v102
v_cndmask_b32 v102, 0, v102, vcc
ds_write_b32 v100, v102 offset:{TB}
v_and_b32 v100, 7, v5
v_lshlrev_b32 v100, 2, v100
v_lshrrev_b32 v101, 3, v5
v_add_lshl_u32 v100, v100, v101, 8
v_and_b32 v101, 15, v5
v_xor_b32 v101, v6, v101
v_lshl_or_b32 v100, v101, 4, v100
v_add_u32 v{aAh}, s{sM0}, v100
v_lshlrev_b32 v101, 4, v101
v_lshrrev_b32 v102, 2, v7
v_mul_u32_u24 v102, 1056, v102
v_and_b32 v103, 3, v7
v_lshl_add_u32 v102, v103, 8, v102
v_add_u32 v102, {AT}, v102
""")
    for s in range(1,8): K(f"v_xor_b32 v{aAh+s}, {32*s}, v{aAh}\nv_xor_b32 v{hA+s}, {32*s}, v101")
    K(f"v_add_u32 v{hA}, v102, v101")
    for s in range(1,8): K(f"v_add_u32 v{hA+s}, v102, v{hA+s}")
    K(f"""
v_bfe_u32 v101, v4, 4, 1
v_lshlrev_b32 v102, 3, v101
v_xor_b32 v100, v33, v102
v_lshlrev_b32 v100, 4, v100
""")
    for i in range(8): K(f"v_xor_b32 v{cDma+i}, {16*i|(3072-1024*(i&3))}, v100")
    K(f"""
v_bfe_u32 v102, v4, 2, 2
v_and_b32 v103, 3, v4
v_lshlrev_b32 v103, 3, v103
v_lshl_or_b32 v103, v101, 5, v103
; transposed weight reads: row 8h+r', 64 byte block b^r'
v_lshl_add_u32 v104, v6, 3, v102
v_lshl_add_u32 v104, v104, 8, v103
v_lshl_add_u32 v104, v102, 6, v104
v_add_u32 v{vW}, {STG}, v104
v_lshrrev_b32 v104, 1, v4
v_xor_b32 v104, v104, v4
v_and_b32 v104, 1, v104
v_mul_u32_u24 v104, 24, v104
v_xor_b32 v{vWp}, v104, v{vW}
""")
    for b in range(1,4): K(f"v_xor_b32 v{vW+b}, {64*b}, v{vW}\nv_xor_b32 v{vWp+b}, {64*b}, v{vWp}\nv_xor_b32 v{vG+b}, {64*b}, v{vG}")
    K(f"""
v_lshl_add_u32 v104, v6, 2, v102
v_lshl_add_u32 v104, v104, 6, v103
s_lshl_b32 s{sT+2}, s{sW}, 11
s_add_u32 s{sT+2}, s{sT+2}, {SB}
v_add_u32 v{aS}, s{sT+2}, v104
v_lshl_add_u32 v{cSc}, v5, 6, s{sT+2}
v_mov_b32 v{aSc+1}, v{cSc}
v_mov_b32 v{aSc}, v{cSc}
v_cmp_eq_u32 vcc, 0, v6
v_cmp_eq_u32 {sr(sLG,2)}, 0, v102
v_lshlrev_b32 v{vInc}, 9, v6
v_cndmask_b32 v{mulL}, 0, 2, vcc
v_mul_u32_u24 v104, 264, v102
v_add3_u32 v104, v104, v103, s{sC256}
v_add_u32 v104, {AT-256}, v104
v_mov_b32 v105, {ZR}
v_cndmask_b32 v{cAW0}, v105, v104, vcc
v_add_u32 v104, {4*264}, v104
v_add_u32 v103, {WD}, v103
v_cndmask_b32 v105, v105, v103, {sr(sLG,2)}
v_cndmask_b32 v{cAW1}, v105, v104, vcc
v_lshrrev_b32 v104, 2, v5
v_mul_u32_u24 v104, 256, v104
v_lshl_add_u32 v104, v5, 2, v104
v_add_u32 v{cPT}, {MT+256}, v104
v_lshlrev_b32 v104, 2, v5
v_mul_u32_u24 v105, 272, v6
v_add_u32 v105, {MT}, v105
v_add_u32 v{cMT}, v105, v104
s_lshl_b32 s{sT+2}, s{sW}, 2
s_add_u32 s{sT+2}, s{sT+2}, {FX}
v_mov_b32 v{vFx}, s{sT+2}
v_lshlrev_b32 v104, 2, v6
v_sub_u32 v104, v5, v104
v_subrev_u32 v105, 16, v104
""")
    for f in range(2):
        e=104+f
        K(f"""v_and_b32 v100, -12, v{e}
v_cmp_eq_u32 vcc, 0, v100
v_and_b32 v100, 3, v{e}
v_bfe_u32 v101, v{e}, 3, 1
v_lshl_or_b32 v100, v101, 2, v100
v_lshlrev_b32 v100, 4, v100
v_add_u32 v100, {TB}, v100
v_mov_b32 v101, {ZR}
v_cndmask_b32 v{32+f}, v101, v100, vcc""")
    K(f"""
v_mul_u32_u24 v34, 264, v7
v_lshl_add_u32 v34, v6, 3, v34
v_add_u32 v34, {AT}, v34
v_cmp_gt_u32 vcc, {NB}, v7
v_mov_b32 v35, {TRASH}
s_mul_i32 s{sT+2}, s{sW}, 8448
v_cndmask_b32 v34, v35, v34, vcc
s_add_u32 s{sT+2}, s{sT+2}, {AT}
v_add_u32 v35, s{sT+2}, v1
v_lshl_add_u32 v47, v4, 2, s{sMB}
v_lshrrev_b32 v100, 5, v0
v_cmp_eq_u32 vcc, 4, v100
s_and_b32 s{sT+2}, s{sW}, 1
s_lshl_b32 s{sT+2}, s{sT+2}, 12
v_cndmask_b32 v{vXB}, v24, v{vG}, vcc
s_lshr_b32 s{sT+3}, s{sW}, 1
s_lshl_b32 s{sT+3}, s{sT+3}, 30
s_or_b32 s{sT+2}, s{sT+2}, s{sT+3}
v_lshl_add_u32 v29, v4, 13, s{sT+2}
s_movk_i32 s{sK}, 21400
s_movk_i32 s{sk}, -98
v_mov_b32 v25, 1
""")
    for i in range(4): K(f"v_accvgpr_write_b32 a{aZ+i}, 0")
    K(f"v_lshrrev_b32 v100, 1, v{mulL}\nv_mul_u32_u24 v100, 0x3F80, v100\nv_accvgpr_write_b32 a{aOne+1}, 0\nv_accvgpr_write_b32 a{aOne}, v100")
    KL=K.L; nV=len(V)
    gap=int([o[4:] for o in opt if o.startswith("gap:")][0]) if any(o.startswith("gap:") for o in opt) else 7
    j=0
    while KL or V:
        if V:
            for l in V.pop(0): a(l)
            nv[0]+=1
        n=gap if V else 10**6
        while KL and n>0:
            l=KL.pop(0); a(l); n-=1
            while KL and KL[0].startswith(("s_addc","s_cselect")): a(KL.pop(0))
    a(f"s_waitcnt lgkmcnt(0)\ns_load_dwordx2 {sr(OUT,2)}, s[0:1], 64\ns_barrier")
    a(f"""ds_read_b128 {ar(aSel,4)}, v32
ds_read_b128 {ar(aSel+4,4)}, v33
s_mov_b32 s{WH+2}, 65536
s_mov_b32 s{OUT+2}, {N*262}
s_add_u32 s{POS}, s{WS}, {WS_POS}
s_addc_u32 s{POS+1}, s{WS+1}, 0
s_mov_b32 s{POS+2}, {N*16}
s_mov_b32 s{sLG}, {LOG2E}
s_mov_b32 s{sLG+1}, {LOG2E}
s_mul_i32 s{sNT}, s2, {C*8}
s_add_u32 s{sNT}, s{sNT}, {WS_REC}
s_add_u32 s{sM}, s{sNT}, 4096
s_add_u32 s{sNP}, s{sNT}, 8192
s_add_u32 s{sTW}, s{sNT}, 12288
s_bitcmp1_b32 s{sW}, 0
s_cselect_b64 {sr(sT+2,2)}, -1, 0
""")
    TS()
    D0=8; S0=16; NV=nv[0]
    for x in range(2):
        a(f"s_mov_b64 exec, {sr(sMx+2*x,2)}\ns_waitcnt vmcnt({NV-1-x})")
        if x==0: TS(); RS(1)
        R=range(4*x,4*x+4)
        for i in R: a(f"v_mul_u32_u24 v{BK+i}, s{sK}, v{D0+i}")
        for i in R: a(f"v_lshrrev_b32 v{BK+i}, 21, v{BK+i}")
        for i in R: a(f"v_mad_i32_i24 v{D0+i}, v{BK+i}, s{sk}, v{D0+i}")
        for i in R: a(f"v_lshlrev_b32 v{BK+i}, 2, v{BK+i}\nds_add_rtn_u32 v{RKS+i}, v{BK+i}, v25 offset:{CN}")
    a(f"s_mov_b64 exec, -1\ns_waitcnt vmcnt({NV-4})")
    for i in range(8): a(f"v_lshl_or_b32 v{PR+2*i}, v{D0+i}, 19, v{S0+i}")
    a(f"""
s_waitcnt lgkmcnt(0)
s_barrier
ds_read_b128 v[96:99], v1 offset:{CN}
s_waitcnt lgkmcnt(0)
v_add_u32 v104, v96, v97
v_add3_u32 v104, v104, v98, v99
v_mov_b32 v105, v104
""")
    scan(a,[105])
    a(f"""
v_sub_u32 v100, v105, v104
v_add_u32 v101, v100, v96
v_add_u32 v102, v101, v97
v_add_u32 v103, v102, v98
ds_write_b128 v1, v[100:103] offset:{BA}
""")
    for i in range(8): a(f"ds_read_b32 v{BK+i}, v{BK+i} offset:{BA}")
    for i in range(4): a(f"v_lshl_or_b32 v{96+i}, v{100+i}, 12, v{96+i}")
    a(f"""v_cndmask_b32 v24, v96, v98, {sr(sT+2,2)}
v_cndmask_b32 v26, v97, v99, {sr(sT+2,2)}""")
    for x in range(2):
        a(f"s_mov_b64 exec, {sr(sMx+2*x,2)}\ns_waitcnt lgkmcnt(4)")
        for i in range(4*x,4*x+4):
            a(f"v_add_lshl_u32 v{BK+i}, v{BK+i}, v{RKS+i}, 3\nds_write_b64 v{BK+i}, {vr(PR+2*i,2)} offset:{SG}")
    a(f"""s_mov_b64 exec, -1
v_cmp_gt_u32 vcc, {C//2-768}, v0
{BIG.format(2)}
v_mov_b32 v3, 0
v_cndmask_b32 v2, v2, v{vS4}, vcc
s_waitcnt lgkmcnt(0)
s_barrier""")
    for i in range(4): a(f"ds_read_b128 {vr(8+4*i,4)}, v{vS4} offset:{SG+4096*i}")
    for i in range(4):
        a(f"s_waitcnt lgkmcnt({3-i})\nbuffer_store_dwordx4 {vr(8+4*i,4)}, v{2 if i==3 else vS4}, {sr(WS,4)}, s{(sNT,sM,sNP,sTW)[i]} offen{ST}")
    a(f"buffer_load_dwordx2 v[32:33], v3, {sr(DBG,4)}, 0 offen{SC}")
    TS(); RS(2)
    a(f"s_waitcnt vmcnt({NV-20+5})\ns_barrier")
    order=[(s,b) for bp in (0,2) for s in range(8) for b in (bp,bp+1)]
    def gemm(va,off,first,fl,late,n0=19,per=3):
        q.clear()
        def rdw(i):
            s,b=order[i]
            for u in range(2): dsi(f"ds_read_b64_tr_b16 {vr(RING+4*(i&7)+2*u,2)}, v{va+b} offset:{off+(16*s+4*u)*256}",("w",i,u))
        rdh=lambda s: dsi(f"ds_read_b128 {ar(aHL+4*s,4)}, v{hA+s}",("h",s))
        if first: rdh(0)
        rdw(0); rdw(1)
        if first:
            for s in range(1,8): rdh(s)
        rdw(2); rdw(3)
        for i,(s,b) in enumerate(order):
            dsw(("w",i,1))
            if first and i<16 and b==0 and q.index(("h",s))>q.index(("w",i,1)): dsw(("h",s))
            a(mf(ACC+16*b, vr(RING+4*(i&7),4), ar(aHL+4*s,4), "0" if s==0 else None))
            if i+4<32: rdw(i+4)
            for l in fl.get(i,[]): emit(l)
            if i>=n0:
                for _ in range(per):
                    if late: emit(late.pop(0))
        assert not late
    lg=sr(sLG,2)
    def outw(b):
        L=[]
        for f in range(2):
            r=ACC+16*b+8*f
            L+=[f"v_pk_mul_f32 {vr(r+2*j,2)}, {vr(r+2*j,2)}, {lg}" for j in range(4)]
            L+=[f"v_cvt_pk_bf16_f32 v{r+j}, v{r+2*j}, v{r+2*j+1}" for j in range(4)]
            L+=[f"ds_write_b128 v{hA+2*b+f}, {vr(r,4)}"]
        return L
    fl={4:[f"s_cmp_eq_u32 s{sW}, 3",f"s_cselect_b32 s{sT}, {SG-(AT+24*1056)}, 0"]}
    for s in range(8): fl[10+s]=[f"v_add_u32 v{hA+s}, s{sT}, v{hA+s}"]
    fl[5]=[f"s_lshl_b32 s{sNT}, s{sN0}, 8",f"s_add_u32 s{sNP}, s{sNT}, {3072+24*1024}",f"s_lshl_b32 s{sM}, s{sW}, 13",f"s_add_u32 s{sNT}, s{sNT}, s{sM}"]
    fl[6]=[f"s_add_u32 s{sNT}, s{sNT}, 3072",f"s_add_u32 s{sM}, s{sNT}, 4096",
           f"s_and_b32 s{sTW}, s2, 2",f"s_lshl_b32 s{sTW}, s{sTW}, 9",f"s_and_b32 s{sT+1}, s2, 1",f"s_lshl_b32 s{sT+1}, s{sT+1}, 3"]
    fl[7]=[f"s_add_u32 s{sTW}, s{sTW}, s{sT+1}",f"s_lshr_b32 s{sT+1}, s2, 2",f"s_lshl_b32 s{sT+1}, s{sT+1}, 4",f"s_add_u32 s{sTW}, s{sTW}, s{sT+1}",f"s_movk_i32 s{sNb}, {SPIN}"]
    gemm(vW,0,True,fl,outw(0)+outw(1))
    a("s_nop 7\ns_nop 1")
    for l in outw(2)+outw(3): a(l)
    a("s_waitcnt lgkmcnt(0)")
    for i in range(8): a(f"ds_read_b128 {vr(BST+4*i,4)}, v35 offset:{1056*i}")
    TS()
    a(f"""s_waitcnt vmcnt(0)
K2_TG:
v_readfirstlane_b32 s{sTgB}, v33
v_readfirstlane_b32 s{sTgA}, v32
s_cmp_eq_u32 s{sTgB}, 0
s_cbranch_scc1 K2_TGW
K2_TGD:
s_and_b32 s{sTgB}, s{sTgB}, -2
v_mov_b32 v25, s{sTgA}
v_mov_b32 v27, s{sTgA}
v_or_b32 v24, s{sTgB}, v24
v_or_b32 v26, s{sTgB}, v26
s_waitcnt lgkmcnt(0)
s_barrier
buffer_store_dwordx2 v[24:25], v29, {sr(WS,4)}, s{sTW} offen{ST}
buffer_store_dwordx2 v[26:27], v29, {sr(WS,4)}, s{sTW} offen offset:2048{ST}
""")
    TS(); RS(3)
    def atw(b):
        L=[]
        for qq in range(4):
            r=ACC+16*b+4*qq
            L+=[f"v_pk_mul_f32 {vr(r,2)}, {vr(r,2)}, {lg}",f"v_pk_mul_f32 {vr(r+2,2)}, {vr(r+2,2)}, {lg}",
                f"v_cvt_pk_bf16_f32 v{r}, v{r}, v{r+1}",f"v_cvt_pk_bf16_f32 v{r+1}, v{r+2}, v{r+3}",
                f"ds_write_b64 v34, {vr(r,2)} offset:{64*b+16*qq}"]
        return L
    fl={i:[f"buffer_store_dwordx4 {vr(BST+4*i,4)}, v{vG+(i&3)}, {sr(H,4)}, s{(sNT,sM)[i>>2]} offen offset:{1024*(i&3)}{ST}"] for i in range(8)}
    fl[0]=[f"ds_read_b128 v[8:11], v1 offset:{SG}",f"ds_write_b128 v{vS4}, v[36:39] offset:{PD}"]+fl[0]
    fl[8]=[f"buffer_store_dwordx4 v[8:11], v{vXB}, {sr(H,4)}, s{sNP} offen{ST}"]
    fl[9]=[f"buffer_store_dwordx4 v[36:39], v31, {sr(POS,4)}, 0 offen{ST}"]
    for i,g in enumerate(wdma(vWd,WH,0,STG)):
        fl.setdefault(9+i,[]).extend(g[:-1]); fl.setdefault(10+i,[]).insert(0,g[-1])
    for b in range(4):
        fl[1+b]+=[f"v_subrev_u32 v{12+b}, {STG-W3T}, v{vW+b}"]
        fl[10+2*b]+=[f"ds_read_b64_tr_b16 {ar(aW3+4*b,2)}, v{12+b}"]; fl[11+2*b]+=[f"ds_read_b64_tr_b16 {ar(aW3+4*b+2,2)}, v{12+b} offset:1024"]
    gemm(vW,32768,False,fl,atw(0)+atw(1),19,4)
    a(f"s_mov_b32 s{H+2}, s{sNRH}\ns_nop 7\ns_nop 0")
    for l in atw(2)+atw(3): a(l)
    TS()
    a(f"""
v_add_u32 v22, {OFT}, v1
s_cmp_lg_u32 s{sW}, 3
s_cbranch_scc1 K2_S3
s_lshl_b32 s{sT}, s{sB}, 11
s_mov_b32 s{sT+1}, {C*4096}
v_lshlrev_b32 v20, 2, v4
v_mul_lo_u32 v16, v20, s{sT+1}
v_add_u32 v17, s{sT+1}, v16
v_add_u32 v18, s{sT+1}, v17
v_add_u32 v19, s{sT+1}, v18
s_movk_i32 s{sNb}, {SPIN}
K2_PL:
buffer_load_dwordx4 v[8:11], v1, {sr(WS,4)}, s{sT} offen{SC}
buffer_load_dwordx4 v[12:15], v1, {sr(WS,4)}, s{sT} offen offset:1024{SC}
s_sub_u32 s{sNb}, s{sNb}, 1
s_waitcnt vmcnt(1)
v_xor_b32 v8, s{sTgB}, v8
v_xor_b32 v10, s{sTgB}, v10
v_xor_b32 v9, s{sTgA}, v9
v_xor_b32 v11, s{sTgA}, v11
s_waitcnt vmcnt(0)
v_xor_b32 v12, s{sTgB}, v12
v_xor_b32 v14, s{sTgB}, v14
v_or3_b32 v20, v8, v10, v12
v_xor_b32 v13, s{sTgA}, v13
v_or_b32 v20, v20, v14
v_xor_b32 v15, s{sTgA}, v15
v_lshrrev_b32 v20, 23, v20
v_or3_b32 v21, v9, v11, v13
v_or3_b32 v20, v20, v21, v15
v_cmp_ne_u32 vcc, 0, v20
s_cmp_eq_u64 vcc, 0
s_cbranch_scc0 K2_PW
v_add_u32 v8, v16, v8
v_add_u32 v9, v17, v10
v_add_u32 v10, v18, v12
v_add_u32 v11, v19, v14
K2_PD:
ds_write_b128 v22, v[8:11]
K2_S3:
s_waitcnt lgkmcnt(0)
s_barrier
""")
    TS(); RS(4)
    a(f"""K2_R1:
ds_read_b128 v[24:27], v22
s_add_u32 s{sT+1}, s{sWR}, s{sR0}
s_movk_i32 s{sT}, {WR}
s_waitcnt lgkmcnt(0)""")
    a(f"""
v_and_b32 v16, 0xfff, v24
v_and_b32 v17, 0xfff, v25
v_and_b32 v18, 0xfff, v26
v_and_b32 v19, 0xfff, v27
v_add_u32 v17, v16, v17
v_add_u32 v36, v18, v19
v_add_u32 v36, v17, v36
v_add_u32 v18, v17, v18
v_mov_b32 v19, v36
""")
    steps=["row_shr:1 row_mask:0xf bank_mask:0xf bound_ctrl:0","row_shr:2 row_mask:0xf bank_mask:0xf bound_ctrl:0",
           "row_shr:4 row_mask:0xf bank_mask:0xf bound_ctrl:0","row_shr:8 row_mask:0xf bank_mask:0xf bound_ctrl:0",
           "row_bcast:15 row_mask:0xa bank_mask:0xf","row_bcast:31 row_mask:0xc bank_mask:0xf"]
    for i,s in enumerate(steps):
        a(f"v_add_u32_dpp v36, v36, v36 {s}")
        if i<2: a(f"v_lshrrev_b32 v{24+2*i}, 12, v{24+2*i}\nv_lshrrev_b32 v{25+2*i}, 12, v{25+2*i}")
        elif i<5: a("s_nop 1")
    a(f"""
v_subrev_u32 v40, s{sT+1}, v36
v_readlane_b32 s{sNT}, v36, 63
v_sub_u32 v36, v40, v19
v_add_u32 v37, v36, v16
v_add_u32 v38, v36, v17
v_add_u32 v39, v36, v18
""")
    for u in range(4): a(f"v_sub_u32 v{24+u}, v{24+u}, v{36+u}")
    for u in range(5): a(f"v_med3_i32 v{36+u}, v{36+u}, 0, s{sT}")
    for u in range(4): a(f"v_lshl_add_u32 v{41+u}, v{36+u}, 2, s{sMB}")
    for u in range(4): a(f"v_cmpx_lt_i32 vcc, v{36+u}, v{37+u}\nds_write_b32 v{41+u}, v{24+u}\ns_mov_b64 exec, -1")
    IDX=40; RC=8; ND=160; RK=168
    for j in range(7): a(f"ds_read_b32 v{IDX+j}, v47 offset:{256*j}")
    a(f"""s_sub_u32 s{sM}, s{sNT}, s{sR0}
s_min_u32 s{sM}, s{sM}, s{sCap}
s_sub_i32 s{sT}, s{sM}, s{sWR}""")
    for j in range(7):
        a(f"v_cmp_gt_i32 {sr(sMask+2*j,2)}, s{sT}, v4")
        if j<6: a(f"s_sub_i32 s{sT}, s{sT}, 64")
    a(f"s_mov_b32 s{sT}, {WS_REC}\ns_waitcnt lgkmcnt(0)")
    scan(a,[IDX+j for j in range(7)],"max")
    ld=lambda j: a(f"v_add_lshl_u32 v{IDX+j}, v{IDX+j}, v4, 3\nbuffer_load_dwordx2 {vr(RC+2*j,2)}, v{IDX+j}, {sr(WS,4)}, s{sT} offen offset:{512*j}{SC}")
    for j in range(6): a(f"v_readlane_b32 s{sU+j}, v{IDX+j}, 63")
    ld(0)
    for j in range(1,7):
        a(f"v_max_u32 v{IDX+j}, s{sU+j-1}, v{IDX+j}")
        if j<6: a(f"s_max_u32 s{sU+j}, s{sU+j}, s{sU+j-1}")
        ld(j)
    TS(); RS(5)
    a(f"""s_cmp_lg_u32 s{sInit}, 0
s_waitcnt vmcnt(7) lgkmcnt(0)
s_barrier
s_cbranch_scc1 K2_NY
v_cmp_eq_u32 vcc, 192, v{vT}
{BIG.format(2)}
v_mov_b32 v22, s{sTgB}
v_mov_b32 v23, s{sTgA}
s_lshl_b32 s{sT}, s2, 3
v_cndmask_b32 v2, v2, 0, vcc
s_add_u32 s{sT}, s{sT}, {WS_F2}
s_mov_b32 s{sInit}, 1
buffer_store_dwordx2 v[22:23], v2, {sr(WS,4)}, s{sT} offen{ST}
s_mov_b32 s{sT+2}, {LOG2E}
s_mov_b32 s{sT+3}, {LOG2E}
""")
    TS()
    lg=sr(sT+2,2); W=[]
    for b in range(4):
        W+=[f"v_accvgpr_read_b32 v{160+j}, a{aW3+4*b+j}" for j in range(4)]
        W+=[x for j in range(4) for x in (f"v_lshlrev_b32 v{164+2*j}, 16, v{160+j}",f"v_and_b32 v{165+2*j}, 0xffff0000, v{160+j}")]
        W+=[f"v_pk_mul_f32 {vr(164+2*j,2)}, {vr(164+2*j,2)}, {lg}" for j in range(4)]
        W+=[f"v_cvt_pk_bf16_f32 v{160+j}, v{164+2*j}, v{165+2*j}" for j in range(4)]
        W+=[f"v_accvgpr_write_b32 a{aW3+4*b+j}, v{160+j}" for j in range(4)]
    W+=[f"v_lshlrev_b32 v164, 16, v{vDr}",f"v_and_b32 v165, 0xffff0000, v{vDr}",f"v_pk_mul_f32 v[164:165], v[164:165], {lg}",f"v_lshlrev_b32 v2, 2, v4",
        f"v_cvt_pk_bf16_f32 v164, v164, v165",f"ds_write_b32 v2, v164 offset:{WD}"]+[f"v_mul_f32 v{vWx+b}, {NLN2}, v{vWx+b}" for b in range(4)]
    fl={}
    for i in range(19):
        fl[i]=W[:6]; W=W[6:]
    assert not W
    def yw(b): return [f"v_pk_mul_f32 {vr(ACC+16*b+2*j,2)}, {vr(ACC+16*b+2*j,2)}, {lg}" for j in range(8)]+[f"v_accvgpr_write_b32 a{aY(b)+j}, v{ACC+16*b+j}" for j in range(16)]
    gemm(vWp,0,False,fl,yw(0)+yw(1),19,4)
    a("s_nop 7\ns_nop 1")
    for l in yw(2)+yw(3): a(l)
    TS()
    a(f"s_waitcnt vmcnt(1)\nK2_YD:\nv_mov_b32 v27, 1")
    TS(); RS(6)
    for j in range(7): a(f"v_lshrrev_b32 v{ND+j}, 17, v{RC+2*j}")
    for j in range(7): a(f"s_mov_b64 exec, {sr(sMask+2*j,2)}\nds_add_rtn_u32 v{RK+j}, v{ND+j}, v27 offset:{CNT}")
    a(f"""s_mov_b64 exec, -1
v_mov_b32 v30, 0
v_mov_b32 v31, 1.0
v_add_u32 v29, {BASE}, v28
v_lshlrev_b32 v22, 3, v{vT}
s_waitcnt lgkmcnt(0)
s_barrier
""")
    TS()
    a(f"""
ds_read_b64 v[36:37], v28 offset:{CNT}
s_waitcnt lgkmcnt(0)
v_add_u32 v38, v36, v37
v_mov_b32 v39, v38
""")
    scan(a,[39])
    a(f"""
v_sub_u32 v56, v39, v38
v_add_u32 v56, {NB}, v56
v_add_u32 v57, v56, v36
ds_write_b64 v28, v[56:57] offset:{BASE}
v_readlane_b32 s{sNP}, v39, 63
ds_read2_b32 v[58:59], v29 offset0:7 offset1:8
""")
    for j in range(7): a(f"ds_read_b32 v{IDX+j}, v{ND+j} offset:{BASE}")
    a(f"""
s_mov_b32 s{sT}, {WS_F2}
s_mov_b32 s{sK}, 0
buffer_load_dwordx2 v[24:25], v22, {sr(WS,4)}, s{sT} offen{SC}
s_cmp_eq_u32 s{sNP}, 0
s_cbranch_scc1 K2_K0
s_add_u32 s{sT}, s{sNP}, {NB}
s_waitcnt lgkmcnt(7)
v_sub_u32 v60, v58, v56
v_sub_u32 v61, v59, v57
v_cmp_gt_u32 {sr(sU,2)}, 31, v60
v_cmp_gt_u32 {sr(sU+2,2)}, s{sT}, v58
v_cmp_gt_u32 {sr(sU+4,2)}, 31, v61
v_cmp_gt_u32 vcc, s{sT}, v59
s_and_b64 {sr(sU,2)}, {sr(sU,2)}, {sr(sU+2,2)}
s_and_b64 vcc, vcc, {sr(sU+4,2)}
s_or_b64 vcc, vcc, {sr(sU,2)}
s_and_b32 vcc_hi, vcc_hi, 0x1ffff
s_cmp_lg_u64 vcc, 0
s_cbranch_scc1 K2_PAD
K2_PADRET:
v_cmp_lt_u32 vcc, 0, v38
s_add_u32 s{sU+4}, s{sNP}, 31
s_lshr_b32 s{sU+4}, s{sU+4}, 5
s_flbit_i32_b64 s{sT}, vcc
s_sub_u32 s{sT}, 63, s{sT}
v_readlane_b32 s{sT+1}, v37, s{sT}
s_lshl_b32 s{sT+2}, s{sU+4}, 5
s_sub_u32 s{sT+2}, s{sT+2}, s{sNP}
s_cmp_lg_u32 s{sT+1}, 0
s_addc_u32 s{sT}, s{sT}, s{sT}
v_cmp_gt_u32 vcc, s{sT+2}, v4
s_lshl_b32 s{sT+1}, s{sT}, 19
s_add_u32 s{sT}, s{sT}, s{sN0}
s_add_u32 s{sT+2}, s{sNP}, {NB}
v_mov_b32 v60, 0
v_mov_b32 v61, 0
v_mov_b32 v62, s{sT+1}
v_mov_b32 v63, 0
v_mov_b32 v58, s{sT}
v_add_lshl_u32 v56, v4, s{sT+2}, 4
v_add_lshl_u32 v57, v4, s{sT+2}, 1
s_mov_b64 exec, vcc
ds_write_b128 v56, v[60:63]
ds_write_b16 v57, v58 offset:{SRC-2*NB}
s_mov_b64 exec, -1
s_waitcnt lgkmcnt(2)
""")
    for j in range(7):
        a(f"v_add_lshl_u32 v{ND+j}, v{IDX+j}, v{RK+j}, 4\nv_add_lshl_u32 v{IDX+j}, v{IDX+j}, v{RK+j}, 1")
    for j in range(7):
        a(f"""s_mov_b64 exec, {sr(sMask+2*j,2)}
ds_write2_b64 v{ND+j}, v[30:31], {vr(RC+2*j,2)} offset0:0 offset1:1
ds_write_b16 v{IDX+j}, v{RC+2*j} offset:{SRC-2*NB}""")
    a(f"""
s_mov_b64 exec, -1
s_lshr_b32 s{sT}, s{sU+4}, 2
s_and_b32 s{sT+1}, s{sU+4}, 3
s_mul_i32 s{sT+2}, s{sT}, s{sW}
s_min_u32 s{sT+3}, s{sW}, s{sT+1}
s_add_u32 s{sT+2}, s{sT+2}, s{sT+3}
s_cmp_lt_u32 s{sW}, s{sT+1}
s_addc_u32 s{sK}, s{sT}, 0
s_lshl_b32 s{sT}, s{sT+2}, 9
s_add_u32 s{sT}, s{sT}, {REC}
s_lshl_b32 s{sT+1}, s{sT+2}, 6
s_add_u32 s{sT+1}, s{sT+1}, {SRC}
v_lshl_add_u32 v{aRec}, v5, 4, s{sT}
v_lshl_add_u32 v{aPB}, v4, 4, s{sT}
v_lshl_add_u32 v{aPS}, v4, 1, s{sT+1}
v_and_b32 v2, 48, v4
v_add_u32 v{aSrc}, s{sT+1}, v2
v_mul_u32_u24 v2, 496, v6
v_lshl_add_u32 v2, v5, 9, v2
v_add_u32 v2, s{sT}, v2
v_cmp_eq_u32 vcc, 0, v6
v_mov_b32 v3, {TB}
s_sub_u32 s{sKm1}, s{sK}, 1
v_cndmask_b32 v{vX}, v{aRec}, v3, vcc
s_sub_u32 s{sKh}, s{sK}, 3
s_cmp_eq_u32 s{sInit}, 2
s_cbranch_scc1 K2_FD
s_movk_i32 s{sNb}, {SPIN}
s_mov_b32 s{sInit}, 2
K2_FC:
s_waitcnt vmcnt(0)
v_xor_b32 v24, s{sTgB}, v24
v_xor_b32 v25, s{sTgA}, v25
v_or_b32 v24, v24, v25
v_cmp_ne_u32 vcc, 0, v24
s_cmp_eq_u64 vcc, 0
s_cbranch_scc0 K2_FCW
K2_FD:
s_cmp_eq_u32 s{sK}, 0
s_waitcnt lgkmcnt(0)
s_barrier
s_cbranch_scc1 K2_K0
""")
    TS(); RS(7)
    dump("sort")
    a(f"""
ds_read_u16 v8, v{aPS}
ds_read_b128 v[12:15], v{aSrc}
ds_read_b32 v9, v{aRec} offset:12
ds_read_b128 v[16:19], v{aSrc} offset:64
ds_read_u16 v{vS16}, v{aPS} offset:128
ds_read_u16 v10, v{aPB} offset:10
ds_read_u16 v{vN8}, v{aPB} offset:{1024+10}
ds_read_u16 v{vFL}, v2 offset:10
ds_read_b128 {vr(vSrc,4)}, v{aSrc} offset:128
ds_read_b32 v{vEid}, v{aRec} offset:{512+12}
s_mov_b32 m0, s{sM0}
s_waitcnt lgkmcnt(9)
v_lshlrev_b32 v20, 4, v8
buffer_load_dwordx3 v[24:26], v20, {sr(POS,4)}, 0 offen{SC}
s_waitcnt lgkmcnt(7)
v_dot2_u32_u16 v{vEA}, v9, s{sCEA}, v{vH16}
""")
    for i in range(8):
        d=dma(i,12,vDA+i)
        if i==4: a(f"s_mov_b32 m0, s{sM0+1}")
        a(d[0]); a(d[1])
    a(f"""buffer_load_dwordx4 {ar(aE,4)}, v{vEA}, {sr(EA,4)}, 0 offen
s_cmp_gt_u32 s{sK}, 1
s_cselect_b32 s{H+2}, s{sNRH}, 0
s_cselect_b32 s{EA+2}, s{sNRE}, 0
s_mov_b32 m0, s{sM0+2}
s_waitcnt lgkmcnt(3)""")
    for i in range(8):
        d=dma(i,16,vDA+i)
        if i==4: a(f"s_mov_b32 m0, s{sM0+3}")
        a(d[0]); a(d[1])
    a(f"""
v_lshlrev_b32 v20, 4, v{vS16}
buffer_load_dwordx3 {vr(vPs,3)}, v20, {sr(POS,4)}, 0 offen{SC}
v_lshlrev_b32 v10, 1, v10
v_lshlrev_b32 v11, 1, v{vN8}
ds_read_b96 v[28:30], v10 offset:{PD}
ds_read_b96 {vr(vPd,3)}, v11 offset:{PD}""")
    TS()
    F=[f"v_cmp_gt_u32 vcc, s{sK}, v5","v_mov_b32 v3, 0xffff",f"s_mov_b32 s{sk}, -1",f"s_mov_b32 s{sTF}, -2",
       f"s_movk_i32 s{sOne10}, 0x3F80",f"s_mov_b32 s{sOne01}, 1.0","s_waitcnt lgkmcnt(0)",
       f"v_cndmask_b32 v{vFL}, v3, v{vFL}, vcc",f"v_mov_b32 v{D2}, 0",
       f"v_readlane_b32 s{sNb}, v{vFL}, 0",f"s_add_u32 s{sT+1}, s{sNb}, 56",f"s_mul_i32 s{sT+2}, s{sNb}, 33",
       f"v_cmp_lt_u32 vcc, s{sT+1}, v{vFL}",f"s_lshr_b32 s{sT+2}, s{sT+2}, 1",
       f"v_mad_u32_u24 v{vOH}, v{mulL}, s{sT+2}, v{cAW0}",f"v_mad_u32_u24 v{vEA}, v{mulL}, s{sT+2}, v{cAW1}",
       f"s_sub_i32 s{sT+3}, 0, s{sNb}",f"s_ff1_i32_b32 s{sTW}, vcc_hi",f"s_sub_u32 s{sTW}, s{sTW}, 1",f"s_mov_b32 s{sEv}, s{sTW}",
       f"v_mad_i32_i24 v{vX}, v{mulL}, s{sT+3}, v{vX}",f"v_add_u32 v{cSc}, s{sT+3}, v{cSc}"]
    for b in range(4): F+=[f"ds_read_b64_tr_b16 {ar(aAW+4*b,2)}, v{vOH} offset:{64*b}",f"ds_read_b64_tr_b16 {ar(aAW+4*b+2,2)}, v{vEA} offset:{64*b}"]
    F+=[f"v_mov_b32 v{D2+i}, 0" for i in range(1,64)]+[f"v_mov_b32 v{T_+i}, 0" for i in range(32)]+[f"v_accvgpr_write_b32 a{aSf+i}, 0" for i in range(8)]
    a.extend(F)
    TS()
    a("s_waitcnt vmcnt(18)")
    for l in phaseB(24,28,aPB,0): a(l)
    a(f"ds_read_b128 {vr(vRec,4)}, v{aRec}\ns_waitcnt vmcnt(10)")
    for s in range(8): a(f"ds_read_b128 {ar(aH+4*s,4)}, v{aAh+s}")
    if "noh" in opt: a(f"s_mov_b32 s{sNRH}, 0")
    if "noea" in opt: a(f"s_mov_b32 s{sNRE}, 0")
    if "nopg" in opt: a(f"s_mov_b32 s{POS+2}, 0")
    if "rt" in opt: a("s_memrealtime s[98:99]" if not any(o.startswith("rs") for o in opt) else "s_memrealtime s[96:97]\ns_waitcnt lgkmcnt(0)\ns_mov_b32 s98, s96")
    a("s_waitcnt lgkmcnt(0)")
    TS()
    a.extend(slotBlite())
    A0,A1,B0,B1=slotA(0),slotA(1),slotB(0),slotB(1)
    bnd=f"s_cmp_ge_i32 s{sk}, s{sEv}\ns_waitcnt lgkmcnt(0)\ns_cbranch_scc1 K2_H"
    def TL(i):
        if "tl" in opt: a(f"s_memtime s[96:97]\ns_add_u32 s98, s{sk}, 2\ns_lshl_b64 exec, 1, s98\ns_waitcnt lgkmcnt(0)\nv_mov_b32 v{vWx+i}, s96\ns_mov_b64 exec, -1\ns_nop 3")
    a("K2_LOOP:"); TL(0); a.extend(A0); TL(1); a(bnd); a("K2_B0:"); TL(2); a.extend(B0)
    TL(0); a.extend(A1); TL(1); a(bnd); a("K2_B1:"); TL(2); a.extend(B1); a("s_branch K2_LOOP")
    check(B1+A0,"wrap")
    Z=ar(aZ,4)
    a(f"""
K2_H:
s_cmp_lg_u32 s{sk}, s{sTF}
s_cbranch_scc1 K2_NOFL
s_add_u32 s{sT+2}, s{sk}, 31
s_mul_i32 s{sT}, s{sNbF}, 34
v_readlane_b32 s{sT+2}, v{vFL}, s{sT+2}
v_add_u32 v{vOH}, s{sT}, v{cMT}
v_add_u32 v{vEA}, s{sT}, v{cPT}
""")
    mad=lambda q,pb: f"v{vOH} offset:{544*q+128*pb}"
    pk=[]
    for b in range(4):
        wxp=vr(vWx+(b&2),2); o=b&1
        for j in range(8):
            if b==0: pk.append(f"v_pk_mul_f32 {vr(FT+2*j,2)}, {vr(D2+2*j,2)}, {wxp} op_sel:[0,{o}] op_sel_hi:[1,{o}]")
            else: pk.append(f"v_pk_fma_f32 {vr(FT+2*j,2)}, {vr(D2+16*b+2*j,2)}, {wxp}, {vr(FT+2*j,2)} op_sel:[0,{o},0] op_sel_hi:[1,{o},1]")
    rd=[f"ds_read_b32 v{2*q+pb}, {mad(q,pb)}" for q in range(4) for pb in range(2)]+[f"ds_read_b32 v10, v{vEA}"]
    for i,l in enumerate(pk):
        a(l)
        if i<9: a(rd[i])
    a(f"""s_sub_u32 s{sT+2}, s{sT+2}, s{sNbF}
s_mul_i32 s{sT+3}, s{sT+2}, 34
s_lshl_b32 s{sT+2}, s{sT+2}, 1
s_add_u32 s{sT+3}, s{sT+3}, {MT+256+12}
v_mov_b32 v9, s{sId}""")
    for j in range(8): a(f"v_cvt_pk_bf16_f32 v{P_+j}, v{FT+2*j}, v{FT+2*j+1}")
    lo=lambda q,pb: D2+32*pb+4*q+3
    dots=[]; cv=[]
    for pb in range(2):
        for qq in range(4):
            dots+=[f"v_dot2_f32_bf16 v{lo(qq,pb)}, v{2*qq+pb}, s{sOne10}, v{lo(qq,pb)}",f"v_dot2_f32_bf16 v{lo(qq,pb)+16}, v{2*qq+pb}, s{sOne01}, v{lo(qq,pb)+16}"]
            cv.append(f"v_cvt_pk_bf16_f32 v{P_+8+4*pb+qq}, v{lo(qq,pb)}, v{lo(qq,pb)+16}")
    a("s_waitcnt lgkmcnt(0)")
    a(dots[0]); a(dots[1])
    a(mf(FT,vr(P_,4),ar(aSel,4),"0"))
    for l in dots[2:8]: a(l)
    a(mf(FT,vr(P_+4,4),ar(aSel+4,4)))
    for l in dots[8:11]+cv[:4]: a(l)
    a(mf(D2,Z,Z,"0"))
    for l in dots[11:16]: a(l)
    a("s_nop 0")
    a(mf(D2+16,Z,Z,"0"))
    for l in cv[4:8]: a(l)
    ad=[f"v_add_f32 v{FT+i}, v{FT+i}, v{FT+i+w}" for w in (8,4,2,1) for i in range(w)]
    for l in ad[:2]: a(l)
    a(mf(D2+32,Z,Z,"0"))
    for l in ad[2:8]: a(l)
    a(mf(D2+48,Z,Z,"0"))
    for l in ad[8:]: a(l)
    a(f"v_mov_b32 v11, v{FT}")
    for qq in range(4):
        a(f"v_cmpx_ge_i32 vcc, s{sT+2}, v{vH16}")
        if qq<3: a(f"s_sub_i32 s{sT+2}, s{sT+2}, 32")
        for pb in range(2):
            m=mad(qq,pb).split(); a(f"ds_write_b32 {m[0]}, v{P_+8+4*pb+qq} {m[1]}")
    a(f"""
s_mov_b64 exec, -1
s_nop 0
v_permlane32_swap_b32 v11, v{FT}
v_add_f32 v10, v10, v11
v_add_f32 v10, v10, v{FT}
v_cmpx_ge_u32 vcc, s{sT+3}, v{cPT}
ds_write_b32 v{vEA}, v10
s_mov_b64 exec, 1
ds_write_b32 v{vFx}, v9
s_mov_b64 exec, -1
s_cmp_eq_u32 s{sk}, s{sK}
s_cbranch_scc1 K2_REND
K2_NOFL:
s_cmp_eq_u32 s{sk}, s{sKm1}
s_cbranch_scc1 K2_TAIL
s_mov_b32 s{sEv}, s{sTW}
s_cmp_lg_u32 s{sk}, s{sTW}
s_cbranch_scc1 K2_RET
s_add_u32 s{sTF}, s{sk}, 1
s_mov_b32 s{sNbF}, s{sNb}
v_readlane_b32 s{sT}, v{vFL}, s{sTF}
s_mov_b32 s{sEv}, s{sTF}
s_add_u32 s{sT+1}, s{sT}, 56
s_mul_i32 s{sT+2}, s{sT}, 33
v_cmp_lt_u32 vcc, s{sT+1}, v{vFL}
s_lshr_b32 s{sT+2}, s{sT+2}, 1
v_mad_u32_u24 v{vOH}, v{mulL}, s{sT+2}, v{cAW0}
v_mad_u32_u24 v{vEA}, v{mulL}, s{sT+2}, v{cAW1}
s_sub_i32 s{sT+3}, s{sNb}, s{sT}
s_mov_b32 s{sNb}, s{sT}
""")
    for b in range(4):
        a(f"ds_read_b64_tr_b16 {ar(aAW+4*b,2)}, v{vOH} offset:{64*b}\nds_read_b64_tr_b16 {ar(aAW+4*b+2,2)}, v{vEA} offset:{64*b}")
    a(f"""
v_mad_i32_i24 v{vX}, v{mulL}, s{sT+3}, v{vX}
v_add_u32 v{cSc}, s{sT+3}, v{cSc}
s_ff1_i32_b32 s{sTW}, vcc_hi
s_sub_u32 s{sTW}, s{sTW}, 1
K2_RET:
s_bitcmp1_b32 s{sk}, 0
s_cbranch_scc1 K2_B1
s_branch K2_B0
K2_TAIL:
""")
    whdma()
    cvt,ex,ad,rc,mu=spine(DY)
    it=[(18,seg(0,0,0)),(22,seg(0,0,1)),(26,seg(0,1,0)),(30,seg(0,1,1)),(34,P1(0)),(50,P1(1)),(60,f"ds_read_b32 v12, v{vFx} offset:4")]
    a.extend(place(cvt+ex+rc+mu,it))
    for l in cvt: a(l)
    a(f"s_mov_b32 s{sk}, s{sK}\ns_mov_b32 s{sTF}, s{sK}")
    for l in [seg(2,0,0),seg(2,0,1),seg(2,1,0),seg(2,1,1)]: a(l)
    a(f"""
ds_write_b64 v{aSc}, {ar(aZ,2)}
ds_write_b64 v{aSc+1}, {ar(aZ,2)}
s_mov_b32 s{sNbF}, s{sNb}
s_cmp_eq_u32 s{sW}, 3
s_cbranch_scc1 K2_H
K2_FW:
s_waitcnt lgkmcnt(0)
v_readfirstlane_b32 s{sT}, v12
ds_read_b32 v12, v{vFx} offset:4
s_cmp_eq_u32 s{sT}, s{sId}
s_cbranch_scc1 K2_H
s_branch K2_FW
K2_TGW:
s_sub_u32 s{sNb}, s{sNb}, 1
s_cbranch_scc1 K2_TGD
buffer_load_dwordx2 v[32:33], v3, {sr(DBG,4)}, 0 offen{SC}
s_waitcnt vmcnt(0)
s_branch K2_TG
K2_PW:
s_cmp_lg_u32 s{sNb}, 0
s_cbranch_scc1 K2_PL
v_mov_b32 v8, 0
v_mov_b32 v9, 0
v_mov_b32 v10, 0
v_mov_b32 v11, 0
s_branch K2_PD
K2_NY:
s_waitcnt vmcnt(0)
s_branch K2_YD
K2_FCW:
s_sub_u32 s{sNb}, s{sNb}, 1
s_cbranch_scc1 K2_FD
s_mov_b32 s{sT}, {WS_F2}
buffer_load_dwordx2 v[24:25], v22, {sr(WS,4)}, s{sT} offen{SC}
s_branch K2_FC
K2_ROUND:
v_and_b32 v4, 63, v{vT}
v_mov_b32 v8, 0
v_mov_b32 v9, 0
v_mov_b32 v10, 0
v_mov_b32 v11, 0
v_lshlrev_b32 v1, 4, v4
v_lshlrev_b32 v28, 3, v4
v_add_u32 v2, s{sMB}, v1
ds_write_b128 v2, v[8:11]
ds_write_b128 v2, v[8:11] offset:1024
ds_write_b64 v28, v[8:9] offset:{CNT}
v_and_b32 v5, 31, v4
v_lshrrev_b32 v6, 5, v4
v_lshl_add_u32 v47, v4, 2, s{sMB}
v_add_u32 v22, {OFT}, v1
s_lshl_b32 s{sT}, s{sW}, 11
s_add_u32 s{sT}, s{sT}, {SB}
v_lshl_add_u32 v{cSc}, v5, 6, s{sT}
v_lshl_add_u32 v{aSc}, v5, 6, s{sT}
v_lshl_add_u32 v{aSc+1}, v5, 6, s{sT}
s_add_u32 s{sId}, s{sR0}, 1
s_mov_b32 s{H+2}, s{sNRH}
s_mov_b32 s{EA+2}, s{sNRE}
s_waitcnt lgkmcnt(0)
s_branch K2_R1
K2_PAD:
s_waitcnt lgkmcnt(0)
s_barrier
v_cmp_gt_u32 vcc, 49, v4
v_add_u32 v60, 3, v36
v_add_u32 v61, 3, v37
v_and_b32 v60, -4, v60
v_and_b32 v61, -4, v61
v_max_u32 v60, 4, v60
v_max_u32 v61, 4, v61
v_cndmask_b32 v60, 0, v60, vcc
v_cndmask_b32 v61, 0, v61, vcc
v_add_u32 v38, v60, v61
v_mov_b32 v39, v38
""")
    scan(a,[39])
    a(f"""
v_sub_u32 v56, v39, v38
v_add_u32 v56, {NB}, v56
v_add_u32 v57, v56, v60
v_readlane_b32 s{sNP}, v39, 63
ds_write_b64 v28, v[56:57] offset:{BASE}
s_cmp_le_u32 s{sNP}, {CAP}
s_cbranch_scc1 K2_PAD2
s_movk_i32 s{sCap}, {CAP-4*NB}
s_waitcnt lgkmcnt(0)
s_barrier
s_branch K2_ROUND
K2_PAD2:
""")
    for j in range(7): a(f"ds_read_b32 v{IDX+j}, v{ND+j} offset:{BASE}")
    a(f"""
v_mov_b32 v152, 0
v_mov_b32 v153, 0
v_mov_b32 v155, 0
""")
    for u in range(2):
        a(f"""v_add_u32 v36, s{sW}, v{36+u}
v_cmp_lt_u32 vcc, v36, v{60+u}
v_lshl_or_b32 v58, v4, 1, {u}
v_lshlrev_b32 v154, 19, v58
v_add_u32 v58, s{sN0}, v58
v_add_lshl_u32 v59, v36, v{56+u}, 4
v_add_lshl_u32 v36, v36, v{56+u}, 1
s_mov_b64 exec, vcc
ds_write_b128 v59, v[152:155]
ds_write_b16 v36, v58 offset:{SRC-2*NB}
s_mov_b64 exec, -1""")
    a(f"""
v_mov_b32 v37, v61
s_waitcnt lgkmcnt(0)
s_branch K2_PADRET
K2_K0:
v_mov_b32 v9, s{sId}
ds_write_b32 v{vFx}, v9
""")
    whdma()
    a(f"""
K2_REND:
s_add_u32 s{sR0}, s{sR0}, s{sM}
s_movk_i32 s{sCap}, {CAP}
v_and_b32 v252, 63, v{vT}
v_and_b32 v212, 31, v252
v_lshl_add_u32 v212, s{sW}, 5, v212
v_mul_u32_u24 v215, 272, v212
v_add_u32 v215, {MT}, v215
v_add_u32 v213, v{vH16}, v215
v_lshlrev_b32 v214, 4, v212
v_bfe_u32 v253, v252, 2, 1
v_mul_u32_u24 v208, {16384+128}, v253
v_bfe_u32 v253, v252, 3, 1
v_mul_u32_u24 v253, 320, v253
v_lshl_add_u32 v253, v{vH16}, 6, v253
v_add_u32 v208, v208, v253
v_bfe_u32 v253, v252, 4, 1
v_lshl_or_b32 v208, v253, 5, v208
v_and_b32 v253, 1, v252
v_lshl_or_b32 v208, v253, 4, v208
v_bfe_u32 v253, v252, 1, 1
v_lshl_or_b32 v208, v253, 3, v208
v_add_u32 v208, {STG}, v208
v_xor_b32 v209, 64, v208
v_xor_b32 v210, 0x80, v208
v_xor_b32 v211, 0xc0, v208
s_cmp_lt_u32 s{sR0}, s{sNT}
s_waitcnt vmcnt(0) lgkmcnt(0)
s_barrier
s_cbranch_scc1 K2_ROUND
""")
    if "rt" in opt: a("s_memrealtime s[96:97]\ns_waitcnt lgkmcnt(0)")
    TS()
    if "tl" in opt:
        a(f"s_mov_b32 s{WS+2}, 0x8000000\ns_lshl_b32 s{sT}, s2, 2\ns_add_u32 s{sT}, s{sT}, s{sW}\ns_lshl_b32 s{sT}, s{sT}, 10\ns_add_u32 s{sT}, s{sT}, {TLB}\nv_and_b32 v1, 63, v{vT}\nv_lshlrev_b32 v1, 2, v1")
        for i in range(3): a(f"buffer_store_dword v{vWx+i}, v1, {sr(WS,4)}, s{sT} offen offset:{256*i}")
        a("s_waitcnt vmcnt(0)")
    MFR=64; HF=128; TT=96; OS=112; WRG=64
    q.clear()
    eord=[(s,b) for b in range(4) for s in range(8)]
    def rdw(i):
        s,b=eord[i]
        for u in range(2): dsi(f"ds_read_b64_tr_b16 {ar(WRG+4*(i&15)+2*u,2)}, v{208+b} offset:{(s>>2)*32768+(s&3)*2048+u*512}",("w",i,u))
    rdm=lambda s: dsi(f"ds_read_b128 {vr(MFR+4*s,4)}, v213 offset:{32*s}",("m",s))
    rdm(0); rdw(0); rdm(1); rdw(1); rdm(2); rdw(2); rdm(3); rdw(3)
    for s in range(4,8): rdm(s)
    yrd=lambda b: [f"v_accvgpr_read_b32 v{16*b+x}, a{aY(b)+x}" for x in range(16)]
    hf=lambda b: [mf(HF+16*b, ar(aSel,4), ar(aHL+8*b,4), "0"), mf(HF+16*b, ar(aSel+4,4), ar(aHL+8*b+4,4))]
    h0=hf(0); y0=yrd(0)
    a(h0[0]); a.extend(y0[:8]); a(h0[1]); a.extend(y0[8:]); a('s_nop 0')
    side=yrd(1)+[("ds",f"ds_read_b96 v[200:202], v214 offset:{PD}","pd"),("ds",f"ds_read_b96 v[204:206], v215 offset:256","pt"),
           f"v_add_u32 v199, s{sN0}, v212",f"v_mul_u32_u24 v197, 6, v199",f"v_add_u32 v197, {N*256}, v197",
           f"v_cmp_gt_u32 vcc, s{sNN}, v212",f"v_bfrev_b32 v198, 2",f"v_lshl_add_u32 v199, v199, 8, v{vH16}",
           f"v_lshl_add_u32 v197, v{vH16}, 26, v197",f"v_cndmask_b32 v199, v198, v199, vcc",f"v_cndmask_b32 v197, v198, v197, vcc",
           f"s_mov_b32 s{sT+2}, {LOG2E}",f"s_mov_b32 s{sT+3}, {LOG2E}"]+yrd(2)+[
           ("wait","pt"),
           "v_add_f32 v200, v200, v204","v_add_f32 v201, v201, v205","v_add_f32 v202, v202, v206",
           "v_cvt_pk_bf16_f32 v200, v200, v201","v_cvt_pk_bf16_f32 v202, v202, v202",
           f"buffer_store_short v200, v197, {sr(OUT,4)}, 0 offen",f"buffer_store_short_d16_hi v200, v197, {sr(OUT,4)}, 0 offen offset:2",
           f"buffer_store_short v202, v197, {sr(OUT,4)}, 0 offen offset:4"]+yrd(3)
    def silu(b):
        D=16*b; c=sr(sT+2,2)
        e1=[f"v_exp_f32 v{TT+i}, v{D+i}" for i in range(16)]
        p1=[f"v_pk_fma_f32 {vr(TT+2*j,2)}, {vr(TT+2*j,2)}, {c}, {c}" for j in range(8)]
        r1=[f"v_rcp_f32 v{TT+i}, v{TT+i}" for i in range(16)]
        p2=[f"v_pk_fma_f32 {vr(TT+2*j,2)}, {vr(D+2*j,2)}, {vr(TT+2*j,2)}, {vr(HF+D+2*j,2)}" for j in range(8)]
        cv=[f"v_cvt_pk_bf16_f32 v{OS+8*(b&1)+j}, v{TT+2*j}, v{TT+2*j+1}" for j in range(8)]
        st=[f"buffer_store_dwordx4 {vr(OS+8*(b&1)+4*x,4)}, v199, {sr(OUT,4)}, 0 offen offset:{64*b+32*x}" for x in range(2)]
        return e1+p1+r1+p2+cv+st
    side+=[("at",10)]+silu(0)+[("at",20)]+silu(1)+[("at",30)]+silu(2)
    cur=[0]
    def doside(n):
        g=0
        while side and g<n:
            l=side[0]
            if isinstance(l,tuple):
                if l[0]=="at":
                    if cur[0]<l[1]: return
                elif l[0]=="ds": dsi(l[1],l[2]); g+=4
                elif l[0]=="wait": dsw(l[1]); g+=4
            else: a(l); g+=cost(l)
            side.pop(0)
    n=0
    for i,(s,b) in enumerate(eord):
        cur[0]=n
        dsw(("w",i,1))
        if b==0 and q.index(("m",s))>q.index(("w",i,1)): dsw(("m",s))
        a(mf(16*b, ar(WRG+4*(i&15),4), vr(MFR+4*s,4))); n+=1
        if i+4<32: rdw(i+4)
        doside(24 if i<8 else 40)
        if s==7 and b<3:
            for m in hf(b+1):
                cur[0]=n; a(m); n+=1; doside(24 if i<8 else 40)
    cur[0]=10**6; doside(10**6)
    for l in silu(3): a(l)
    dump("end")
    if ts:
        TS()
        a(f"s_mov_b32 s{WS+2}, 0x8000000\ns_lshl_b32 s{sT}, s2, 2\ns_add_u32 s{sT}, s{sT}, s{sW}\ns_lshl_b32 s{sT}, s{sT}, 6\ns_add_u32 s{sT}, s{sT}, {TSB}\nv_mov_b32 v1, 0")
        for i in range(tsn[0]): a(f"v_mov_b32 v2, s{sTS+i}\nbuffer_store_dword v2, v1, {sr(WS,4)}, s{sT} offen offset:{4*i}")
        a(f"v_mov_b32 v2, s{sK}\nbuffer_store_dword v2, v1, {sr(WS,4)}, s{sT} offen offset:60")
    if "rt" in opt: a(f"""s_waitcnt vmcnt(0)
s_memrealtime s[42:43]
s_load_dwordx2 s[44:45], s[0:1], 80
s_lshl_b32 s46, s2, 4
s_add_u32 s46, s46, {RTB}
s_waitcnt lgkmcnt(0)
v_mov_b32 v2, s100
v_mov_b32 v3, s42
v_mov_b32 v4, s98
v_mov_b32 v5, s{99 if any(o.startswith('rs') for o in opt) else 96}
v_mov_b32 v1, s46
global_store_dwordx4 v1, v[2:5], s[44:45]""")
    a("K2_END:")
    for o in opt:
        if o.startswith("pol:"):
            _,r,b=o.split(":"); r=sr({"ea":EA,"h":H,"pos":POS,"out":OUT}[r],4); b=b.replace("+"," ")
            a.L=[(l[:-4]+" "+b+" lds" if l.endswith(" lds") else l+" "+b) if l.startswith("buffer_") and r in l else l for l in a.L]
    check(a.L,"kf")
    return kernel(name, a, 512, acc=256)
if __name__=="__main__":
    t=kf(); print(len(t.split("\n")))
    for nm,s in (("A0",slotA(0)),("A1",slotA(1)),("B0",slotB(0)),("B1",slotB(1))):
        print(nm,len(s),sum(cost(l) for l in s))
```

```python
import sys
sys.path.insert(0,"gen"); sys.path.insert(0,"mb")
import os, importlib; kf=importlib.import_module(os.environ.get("KF","kf"))
NAME="gather_scatter__cheap_equivariant_egnn__graph_kernel"
HDR=""";
"""
def full(q=None,lst=False,**kw):
    if q or lst:
        hdr=f"; @launch kernel=kf_kernel grid=(256,1,1) block=(256,1,1) lds={kf.LDS}\n"
        if q: hdr+="; @launch kernel=k3_kernel grid=(1,1,1) block=(64,1,1) lds=0\n"
        nm="kf_kernel"
    else:
        hdr=f"; @launch grid=(256,1,1) block=(256,1,1) lds={kf.LDS}\n"; nm=NAME
    t=hdr+HDR+'.amdgcn_target "amdgcn-amd-amdhsa--gfx950"\n'+kf.kf(name=nm,**kw)
    if q:
        import k3f
        t+=k3f.k3(*q)
    return t
if __name__=="__main__":
    out=sys.argv[1]
    kw={}
    for x in sys.argv[2:]:
        if x=="list": kw["lst"]=True
        elif x.startswith("q="): kw["q"]=tuple(int(t) for t in x[2:].split(","))
        elif x.startswith("opt="): kw["opt"]=x[4:].split(",")
    open(out,"w").write(full(**kw))
```

```python
import sys, os
sys.path.insert(0,"mb"); sys.path.insert(0,"gen")
from host import *
N=25000; E=400000
def f2bf(x):
    x=np.ascontiguousarray(x,dtype=np.float32); u=x.view(np.uint32)
    r=((u>>16)&1)+0x7fff
    return ((u+r)>>16).astype(np.uint16)
def bf2f(u): return (u.astype(np.uint32)<<16).view(np.float32)
def rb(x): return bf2f(f2bf(x))
def make_inputs(seed=0, mode="rand"):
    g=np.random.default_rng(seed)
    I={}
    I["h"]=f2bf(g.standard_normal((N,128))*0.2)
    I["pos"]=f2bf(g.standard_normal((N,3))*0.4)
    I["e_attr"]=f2bf(g.standard_normal((E,16))*0.4)
    I["src"]=g.integers(0,N,E).astype(np.int32)
    if mode=="rand": d=g.integers(0,N,E)
    elif mode=="one": d=np.full(E,777)
    elif mode=="few": d=g.integers(0,40,E)*613
    elif mode=="skew": d=np.minimum((g.random(E)**4*N).astype(np.int64),N-1)
    elif mode=="sorted": d=np.sort(g.integers(0,N,E))
    elif mode=="sparse":
        d=np.where(g.random(E)<0.9, g.integers(0,2000,E), g.integers(0,N,E))
    elif mode=="last": d=g.integers(N-12,N,E)
    I["dst"]=d.astype(np.int32)
    I["w_e"]=f2bf(0.1*rb(g.standard_normal((273,128))*0.4))
    I["w_x"]=f2bf(0.1*rb(g.standard_normal((128,1))*0.2))
    I["w_h"]=f2bf(0.1*rb(g.standard_normal((256,128))*0.2))
    return I
def upload(arr):
    return DeviceBuffer.from_numpy(arr)
def reference(I):
    h=bf2f(I["h"]);pos=bf2f(I["pos"]);ea=bf2f(I["e_attr"]);we=bf2f(I["w_e"]);wx=bf2f(I["w_x"]);wh=bf2f(I["w_h"])
    s=I["src"];d=I["dst"]
    A=h@we[:128];B=h@we[128:256]
    diff=rb(pos[d]-pos[s]); d2=rb((diff*diff).sum(1))
    M=np.zeros((N,128),np.float64);P=np.zeros((N,3),np.float64)
    order=np.argsort(d,kind="stable")
    for c in range(0,E,50000):
        o=order[c:c+50000]
        x=A[d[o]]+B[s[o]]+d2[o,None]*we[256][None,:]+ea[o]@we[257:]
        m=x/(1+np.exp(-x))
        cs=m@wx
        u,st=np.unique(d[o],return_index=True)
        M[u]+=np.add.reduceat(m.astype(np.float64),st,axis=0)
        P[u]+=np.add.reduceat((diff[o]*cs).astype(np.float64),st,axis=0)
    y=h@wh[:128]+M.astype(np.float32)@wh[128:]
    return h+y/(1+np.exp(-y)), pos+P.astype(np.float32), M.astype(np.float32)
```

```python
from thost import *
import kf as K2
args=sys.argv[1:]
opt=(); dbg=None; ts=False; modes=["rand"]; local=False; reps=2
for x in args:
    if x.startswith("dbg="): dbg=x[4:]
    elif x=="ts": ts=True
    elif x=="local": local=True
    elif x.startswith("opt="): opt=x[4:].split(",")
    elif x.startswith("modes="): modes=x[6:].split(",")
    elif x.startswith("reps="): reps=int(x[5:])
from asmlib import Asm, kernel as akernel
pa=Asm(); pa("v_lshlrev_b32 v1, 4, v0\nv_mov_b32 v2, -1\nv_mov_b32 v3, -1\nv_mov_b32 v4, -1\nv_mov_b32 v5, -1")
for i in range(40): pa("ds_write_b128 v1, v[2:5]\nv_add_u32 v1, 4096, v1")
for i in range(6,256): pa(f"v_mov_b32 v{i}, -1")
for i in range(256): pa(f"v_accvgpr_write_b32 a{i}, -1")
pa("s_waitcnt lgkmcnt(0)")
asm=HEAD+akernel("kp_kernel",pa,512,acc=256)+K2.kf(dbg=dbg,ts=ts,opt=opt)
co=build(asm,[("kf_kernel",(256,1,1),(256,1,1),K2.LDS),("kp_kernel",(1024,1,1),(256,1,1),K2.LDS)],11,"kf")
if local: raise SystemExit
m=Mod(co)
def err(a,b): return float(np.abs(a-b).max()), float(np.sqrt(((a-b)**2).sum()/max((b**2).sum(),1e-30)))
out=DeviceBuffer(N*262+4096); dbgb=DeviceBuffer(256); ws=DeviceBuffer(64<<20); memset(ws,0xAB)
for mode in modes:
  for seed in range(reps):
    I=make_inputs(seed,mode)
    B=[upload(I[k]) for k in ("h","pos","e_attr","src","dst","w_e","w_x","w_h")]
    memset(out,0xFF); memset(dbgb,0)
    P=[b.ptr for b in B]+[out.ptr,dbgb.ptr,ws.ptr]
    m.launch("kp_kernel",(1024,1,1),(256,1,1),K2.LDS,P)
    t=Timer(); t.start()
    m.launch("kf_kernel",(256+3,1,1),(256,1,1),K2.LDS,P); us=t.stop(); sync()
    if dbg:
        W=ws.to_numpy(np.uint8,(64<<20,)); L=W[K2.DMPB:K2.DMPB+256*K2.LDS].reshape(256,K2.LDS)
        h=bf2f(I["h"]); we=bf2f(I["w_e"]); pos=bf2f(I["pos"]); LG=np.float32(-1.4426950216)
        hn,pn,M=reference(I)
        bad=np.zeros(8,int); mx=np.zeros(8)
        Bt=bf2f(W[K2.WS_B:K2.WS_B+N*256].view(np.uint16).reshape(N,128))
        p=np.arange(128); ch=(p&~31)+((p&16))+((p>>2)&1)*8+((p>>3)&1)*4+(p&3)
        mx[6]=np.abs(Bt-(h@we[128:256]*LG)[:,ch]).max()
        Pt=W[K2.WS_POS:K2.WS_POS+N*16].view(np.float32).reshape(N,4); bad[6]=not np.array_equal(Pt[:,:3],pos)
        for wg in range(256):
            b=(wg&7)*32+(wg>>3); n0=98*b; nn=min(98,N-n0); l=L[wg]
            e=np.nonzero((I["dst"]>=n0)&(I["dst"]<n0+98))[0]
            pd=l[K2.PD:K2.PD+98*16].view(np.float32).reshape(98,4)
            bad[0]+=not np.array_equal(pd[:nn,:3],pos[n0:n0+nn])
            at=bf2f(l[K2.AT:K2.AT+98*264].view(np.uint16).reshape(98,132)[:,:128])
            mx[1]=max(mx[1],np.abs(at[:nn]-h[n0:n0+nn]@we[:128]*LG).max())
            wd=bf2f(l[K2.WD:K2.WD+256].view(np.uint16)); mx[7]=max(mx[7],np.abs(wd-we[256]*LG).max())
            if dbg=="sort" and len(e)<=K2.CAP:
                T=(len(e)+31)//32
                r=l[K2.REC:K2.REC+K2.CAP*16].view(np.uint32).reshape(-1,4); s=l[K2.SRC:K2.SRC+K2.CAP*2].view(np.uint16)
                n=len(e); eid=(r[:n,3]>>16)*1024+(r[:n,3]&0xffff); nd=r[:T*32,2]>>19
                ok=np.array_equal(np.sort(eid),e) and np.array_equal(I["src"][eid],s[:n]) and np.array_equal(I["dst"][eid]-n0,nd[:n]) and (np.diff(nd.astype(int))>=0).all() and (r[:n,1]==0x3f800000).all() and (r[n:T*32,1]==0).all()
                bad[2]+=not ok
            if dbg=="end":
                mt=bf2f(l[K2.MT:K2.MT+98*272].view(np.uint16).reshape(98,136)[:,:128])
                p=np.arange(128); c2=32*(2*(p>>6)+(p&1))+((p&63)>>1)
                x=np.abs(mt[:nn]/LG-M[n0:n0+nn][:,c2]); mx[3]=max(mx[3],np.nan_to_num(x,nan=1e9).max())
                pt=l[K2.MT:K2.MT+98*272].view(np.float32).reshape(98,68)[:,64:]
                x=np.abs(pt[:nn,:3]-(pn-pos)[n0:n0+nn]); mx[4]=max(mx[4],np.nan_to_num(x,nan=1e9).max())
                bad[5]+=l[K2.SB:K2.SB+8192].any()
        print(mode,"bad",bad,"mx",mx, "scale M",np.abs(M).max(),"dP",np.abs(pn-pos).max(),"us",us)
        continue
    o=out.to_numpy(np.uint16,(N*131+2048,))
    hn,pn,M=reference(I)
    H=bf2f(o[:N*128]).reshape(N,128); Pp=bf2f(o[N*128:N*131]).reshape(N,3)
    print(mode,seed,"h",err(H,hn),"pos",err(Pp,pn),"nan",np.isnan(H).sum(),np.isnan(Pp).sum(),"tail ok",(o[N*131:]==0xffff).all(),"us",round(us,1))
    def showts(tag):
        W=ws.to_numpy(np.uint32,(16<<20,))[K2.TSB//4:K2.TSB//4+1024*16].reshape(1024,16).astype(np.int64)
        d=(W[:,1:13]-W[:,0:1])&0xffffff
        print("ts",tag,"med",np.median(d,axis=0).astype(int),"max",d.max(axis=0),"w3",np.median(d[3::4],axis=0).astype(int))
    if ts: showts("first")
    if mode=="rand" and seed==reps-1:
        big=DeviceBuffer(512<<20)
        for r in range(4):
            memset(big,r); memset(dbgb,0); memset(out,0xFF); sync()
            t.start(); m.launch("kf_kernel",(256,1,1),(256,1,1),K2.LDS,P); print("us",t.stop())
            o2=out.to_numpy(np.uint16,(N*131+2048,)); print("same as first:",(o2==o).mean())
            if "rt" in opt:
                W=ws.to_numpy(np.uint32,(16<<20,)).astype(np.int64); a2=W[K2.RTB//4:K2.RTB//4+1024].reshape(-1,4)
                t0=a2[:,0].min(); f=lambda x:np.round(np.percentile((x-t0)/100,[0,50,100]),2)
                print("start",f(a2[:,0]),"loop",f(a2[:,2]),"w3",f(a2[:,3]),"end",f(a2[:,1]))
        if ts: showts("cold")
```

```python
from asmlib import *
N=25000; E=400000; NB=98; CAP=1792; WR=CAP//4; C=1568
WS_OFF=0; WS_F2=0x80000; WS_REC=0x81000; WS_POS=WS_REC+256*C*8; WS_END=WS_POS+N*16; WS_B=0x400000
assert WS_END<=WS_B-3072
LOG2E=0xbfb8aa3b; NLN2=0xbf317218; SC=" sc1"; ST=" sc0 sc1"; SPIN=20000
TSB=0x1300000; DMPB=0x1400000; TLB=0x1100000; RTB=0x1010000
PD=0; REC=1568; CNT=REC+CAP*16; BASE=CNT+512; TRASH=BASE+576+32
SRC=REC+(CAP+96)*16; TB=SRC+CAP*2; WD=TB+128; AT=WD+256; ZR=AT+98*264; SB=ZR+256; MT=SB+8192; FX=MT+98*272; LEND=FX+32
MK=REC+512; W3T=MK+8192; SG=W3T+4096; CN=SG+C*8; BA=CN+1024; OFT=96768
STG=98304; LDS=163840
assert BA+1024<=CNT and SG%16==0 and LEND<=OFT and OFT+1024<=STG
assert LEND<=STG and TRASH+272<=SRC and ZR%16==0 and MT%16==0 and AT%16==0 and REC==98*16 and 32768<LEND-ZR<=36864
H=4; EA=8; POS=12; WS=16; OUT=20; HO=24
sN0=28; sNN=29; sW=30; sR0=31; sNT=32; sM=33; sCap=34; sNP=35; sK=36; sk=37; sEv=38; sTF=39; sTW=40
sNb=41; sNbF=42; sKm1=43; sKh=44; sId=45; sM0=46; sCEA=50; sC256=51; sMB=52; sWR=53; sNRH=54; sNRE=55
sT=56
sMask=60
sOne10=65; sOne01=66
sInit=74; sB=75; sU=76
sTS=84
DSTS=60; SRCS=64; WE=68; sLG=72; sMx=76; DBG=80; WH=HO; WX=OUT; sTgA=38; sTgB=39
NRH=N*256+3072; NRE=E*32
DX=0; DY=32; D2=64; T_=128; P_=160; FT=176; vDA=176
aAh=192; cDma=200; vSrc=208; vRec=212; vPd=216; vEid=219; vPs=220; vFx=223; vWx=224
aRec=228; aSrc=229; aS=230; cSc=231; aSc=232; vOH=234; mulL=235; vX=236; vInc=237; vH16=238; aPB=239; aPS=240
vS16=241; vN8=242; cAW0=243; cAW1=244; cMT=245; cPT=246; vFL=247; vB=248; vT=254; vEA=255
aWh=0; aOne=64; aW3=128; aAW=144; aH=160; aHL=192; aE=224; aOH=232; aSf=236; aZ=244; aSel=248
aY=lambda b: 16*b
MF="v_mfma_f32_32x32x16_bf16"
def mf(d,A,B,c=None,dk="v"):
    return f"{MF} {vr(d,16,dk)}, {A}, {B}, {vr(d,16,dk) if c is None else c}"
def scan(a,regs,op="add"):
    ins={"add":"v_add_u32_dpp","max":"v_max_u32_dpp"}[op]
    steps=["row_shr:1 row_mask:0xf bank_mask:0xf bound_ctrl:0","row_shr:2 row_mask:0xf bank_mask:0xf bound_ctrl:0",
           "row_shr:4 row_mask:0xf bank_mask:0xf bound_ctrl:0","row_shr:8 row_mask:0xf bank_mask:0xf bound_ctrl:0",
           "row_bcast:15 row_mask:0xa bank_mask:0xf","row_bcast:31 row_mask:0xc bank_mask:0xf"]
    for s in steps:
        if len(regs)<3: a(f"s_nop {2-len(regs)}")
        for r in regs: a(f"{ins} v{r}, v{r}, v{r} {s}")

def cost(l):
    op=l.split()[0]
    if op.startswith(TRANS): return 8
    if op.startswith("v_mfma"): return 8
    return 4
def spine(D):
    cvt=[f"v_cvt_pk_bf16_f32 v{P_+j}, v{T_+2*j}, v{T_+2*j+1}" for j in range(16)]
    ex=[f"v_exp_f32 v{T_+i}, v{D+i}" for i in range(32)]
    ad=[f"v_pk_add_f32 {vr(T_+2*j,2)}, {vr(T_+2*j,2)}, 1.0 op_sel_hi:[1,0]" for j in range(16)]
    rc=[f"v_rcp_f32 v{T_+i}, v{T_+i}" for i in range(32)]
    mu=[f"v_pk_mul_f32 {vr(T_+2*j,2)}, {vr(D+2*j,2)}, {vr(T_+2*j,2)}" for j in range(16)]
    return cvt,ex,ad,rc,mu
def place(S,items):
    it=sorted(range(len(items)),key=lambda i:(items[i][0],i)); out=[]; n=0
    for i,s in enumerate(S):
        while n<len(it) and items[it[n]][0]<=i: out.append(items[it[n]][1]); n+=1
        out.append(s)
    return out+[items[x][1] for x in it[n:]]
def P1(i): return f"v_mfma_f32_32x32x8bf16_1k {vr(T_+16*i,16)}, {ar(aOne,2)}, {ar(aOne,2)}, {vr(T_+16*i,16)}"
def mainmf(D,b0,epar):
    I=lambda f,i: mf(D+16*i, ar(aH+4*(2*(b0+i)+f),4), ar(aSel+4*f,4), "0" if f==0 else None)
    Ee=lambda i: mf(D+16*i, ar(aE+4*epar,4), ar(aW3+4*(b0+i),4))
    O=lambda i: mf(D+16*i, ar(aOH,4), ar(aAW+4*(b0+i),4))
    return I,Ee,O
def seg(b0,s,i): return mf(D2+16*(b0+i), ar(aSf+4*s,4), vr(P_+8*i+4*s,4))
def phaseB(ps,pd,addr,off,tb=vB):
    return [f"v_sub_f32 v{tb}, v{pd}, v{ps}",
      f"v_sub_f32 v{tb+1}, v{pd+1}, v{ps+1}",
      f"v_sub_f32 v{tb+2}, v{pd+2}, v{ps+2}",
      f"v_mul_f32 v{tb+3}, v{tb}, v{tb}",
      f"v_cvt_pk_bf16_f32 v{tb}, v{tb}, v{tb+1}",
      f"v_fmac_f32 v{tb+3}, v{tb+1}, v{tb+1}",
      f"v_fmac_f32 v{tb+3}, v{tb+2}, v{tb+2}",
      f"v_cvt_pk_bf16_f32 v{tb+2}, v{tb+2}, v{tb+3}",
      f"ds_write_b32 v{addr}, v{tb} offset:{off}",
      f"ds_write_b16 v{addr}, v{tb+2} offset:{off+4}",
      f"ds_write_b16_d16_hi v{addr}, v{tb+2} offset:{off+8}"]
def dma(i,src,da):
    return (f"v_mad_u32_u16 v{da}, v{src+(i>>1)}, s{sC256}, v{cDma+i} op_sel:[{i&1},0,0,0]",
            f"buffer_load_dwordx4 v{da}, {sr(H,4)}, 0 offen offset:{1024*(i&3)}{SC} lds")
MPOS=[0,4,9,14,18,22,26,30,34,39,44,50,58,66]
def slotmf(D,b0,sb,epar):
    I,Ee,O=mainmf(D,b0,epar)
    return [I(0,0),I(0,1),I(1,0),I(1,1),seg(sb,0,0),seg(sb,0,1),seg(sb,1,0),seg(sb,1,1),P1(0),Ee(0),Ee(1),P1(1),O(0),O(1)]
def build_slot(D,M,post,pre,mpos=MPOS):
    cvt,ex,ad,rc,mu=spine(D); it=[]
    for i,m in enumerate(M):
        it+=[(mpos[i],x) for x in pre[i]]+[(mpos[i],m)]+[(mpos[i],x) for x in post[i]]
    return place(cvt+ex+rc+mu,it)
def slotA(p):
    M=slotmf(DY,2,2,p)
    buf=8192*(1-p)
    rd=lambda s: f"ds_read_b128 {ar(aH+4*s,4)}, v{aAh+s} offset:{buf}"
    tr=lambda j: f"ds_read_b64_tr_b16 {ar(aSf+2*j,2)}, v{aS} offset:{512*j}"
    post=[[] for _ in M]; pre=[[] for _ in M]
    post[0]+=[f"ds_read_b128 {vr(vRec,4)}, v{aRec} offset:{512*(1+p)}",f"ds_read_b32 v{vEid}, v{aRec} offset:{512*(2+p)+12}"]
    post[1]+=[f"ds_read_b128 {vr(vSrc,4)}, v{aSrc} offset:{192+64*p}"]
    post[4]+=[f"s_waitcnt vmcnt({9+p})",rd(0),rd(1)]
    post[5]+=[tr(0),tr(1),rd(2)]
    post[6]+=[rd(3),rd(4)]
    post[7]+=[tr(2),tr(3),rd(5)]
    post[8]+=[rd(6),rd(7)]
    if p==0:
        B=phaseB(vPs,vPd,aPB,1024)
        post[4]+=B[0:2]; post[5]+=B[2:4]; post[6]+=B[4:6]; post[7]+=B[6:7]; post[8]+=B[7:8]
        post[9]+=B[8:11]
        post[10]+=[f"ds_read_u16 v{vS16}, v{aPS} offset:256",f"ds_read_u16 v{vN8}, v{aPB} offset:{2048+10}"]
    else:
        post[1]+=[f"v_lshlrev_b32 v{vB}, 4, v{vS16}",f"v_lshlrev_b32 v{vB+1}, 1, v{vN8}"]
        post[2]+=[f"ds_read_b96 {vr(vPd,3)}, v{vB+1} offset:{PD}",f"buffer_load_dwordx3 {vr(vPs,3)}, v{vB}, {sr(POS,4)}, 0 offen{SC}"]
        post[9]+=[f"v_add_u32 v{aRec}, 1024, v{aRec}",f"v_add_u32 v{aSrc}, 128, v{aSrc}"]
        post[10]+=[f"v_add_u32 v{aPB}, 1024, v{aPB}",f"v_add_u32 v{aPS}, 128, v{aPS}"]
    post[11]+=[f"s_add_u32 s{sk}, s{sk}, 1"]
    return build_slot(DX,M,post,pre)
def fillB(p):
    post=[[] for _ in range(14)]; pre=[[] for _ in range(14)]
    d=[dma(i,vSrc,vDA+i) for i in range(8)]
    post[0]+=[f"ds_write_b64 v{aSc+p}, {ar(aZ,2)}",
              f"v_mad_u32_u16 v{vOH}, v{vRec+2}, v{mulL}, v{vX} op_sel:[1,0,0,0]",
              f"v_dot2_u32_u16 v{vEA}, v{vEid}, s{sCEA}, v{vH16}",
              f"v_mad_u32_u16 v{aSc+1-p}, v{vRec+2}, 1, v{cSc} op_sel:[1,0,0,0]"]
    post[1]+=[f"ds_read_b128 {ar(aOH,4)}, v{vOH}",
              f"ds_write_b64 v{aSc+1-p}, {vr(vRec,2)}",
              f"buffer_load_dwordx4 {ar(aE+4*p,4)}, v{vEA}, {sr(EA,4)}, 0 offen",
              f"s_cmp_lt_i32 s{sk}, s{sKh}",f"s_cselect_b32 s{H+2}, s{sNRH}, 0",f"s_mov_b32 m0, s{sM0+2*(1-p)}",
              d[0][0],d[1][0]]
    post[2]+=[d[0][1],d[1][1],f"s_cselect_b32 s{EA+2}, s{sNRE}, 0",d[2][0],d[3][0]]
    post[3]+=[d[2][1],d[3][1],f"s_mov_b32 m0, s{sM0+2*(1-p)+1}",d[4][0],d[5][0]]
    post[4]+=[d[4][1],d[5][1],d[6][0],d[7][0]]
    post[5]+=[d[6][1],d[7][1],f"v_add_u32 v{vX}, v{vInc}, v{vX}"]
    pre[9]+=[f"s_waitcnt vmcnt({17+p})"]
    pre[12]+=["s_waitcnt lgkmcnt(0)"]
    return post,pre
def slotB(p):
    post,pre=fillB(p)
    return build_slot(DY,slotmf(DX,0,0,1-p),post,pre,[0,4,6,9]+MPOS[4:])
def slotBlite():
    post,pre=fillB(1); M=slotmf(DX,0,0,0); out=[]
    for i in range(14):
        out+=pre[i]
        if i<4 or i in (9,10,12,13): out.append(M[i])
        out+=post[i]
    return out
def kf(dbg=None,ts=False,opt=(),name="kf_kernel"):
    a=Asm()
    tsn=[0]
    tsi=[0]; skip=[int(x) for o in opt if o.startswith("skip:") for x in o[5:].split("+")]
    def TS():
        tsi[0]+=1
        if ts and tsn[0]<12 and tsi[0]-1 not in skip:
            a(f"s_memtime s[96:97]\ns_waitcnt lgkmcnt(0)\ns_mov_b32 s{sTS+tsn[0]}, s96"); tsn[0]+=1
    def RS(i):
        if f"rs{i}" in opt: a("s_memrealtime s[96:97]\ns_waitcnt lgkmcnt(0)\ns_mov_b32 s99, s96")
    def dump(tag):
        if dbg!=tag: return
        a(f"""s_waitcnt vmcnt(0) lgkmcnt(0)
s_barrier
s_mul_i32 s{sT}, s2, {LDS}
s_add_u32 s{sT}, s{sT}, {DMPB}
s_mov_b32 s{WS+2}, 0x8000000
v_lshlrev_b32 v1, 4, v{vT}
s_mov_b32 s{sT+1}, 0
DUMPL:
ds_read_b128 v[4:7], v1
s_waitcnt lgkmcnt(0)
buffer_store_dwordx4 v[4:7], v1, {sr(WS,4)}, s{sT} offen
v_add_u32 v1, 4096, v1
s_waitcnt vmcnt(0)
s_add_u32 s{sT+1}, s{sT+1}, 1
s_cmp_lt_u32 s{sT+1}, 40
s_cbranch_scc1 DUMPL
s_endpgm""")
    def wdma(v,srd,g0,l0):
        L=[]
        for i in range(8):
            pre=[]
            if i==0: pre=[f"s_lshl_b32 s{sT}, s{sW}, 13",f"s_add_u32 m0, s{sT}, {l0}",f"s_add_u32 s{sT}, s{sT}, {g0}"]
            if i==4: pre=[f"s_add_u32 m0, m0, 4096",f"s_add_u32 s{sT}, s{sT}, 4096"]
            L.append(pre+[f"buffer_load_dwordx4 v{v}, {sr(srd,4)}, s{sT} offen offset:{1024*(i&3)} lds"])
        return L
    def whdma():
        a(f"""v_and_b32 v{vB}, 63, v{vT}
v_lshrrev_b32 v{vB+1}, 4, v{vB}
s_and_b32 s{sT+1}, s{sW}, 1
v_and_b32 v{vB+2}, 1, v{vB+1}
s_lshl_b32 s{sT+1}, s{sT+1}, 3
v_lshl_or_b32 v{vB+2}, v{vB+2}, 2, s{sT+1}
v_and_b32 v{vB}, 15, v{vB}
v_xor_b32 v{vB}, v{vB}, v{vB+2}
v_lshlrev_b32 v{vB}, 4, v{vB}
s_lshl_b32 s{sT}, s{sW}, 13
s_mov_b32 m0, s{sM0}
s_add_u32 s{sT}, s{sT}, 32768
v_lshl_or_b32 v{vB}, v{vB+1}, 8, v{vB}""")
        for i in range(4): a(f"buffer_load_dwordx4 v{vB}, {sr(WH,4)}, s{sT} offen offset:{1024*i} lds")
        a(f"s_mov_b32 m0, s{sM0+1}\ns_add_u32 s{sT}, s{sT}, 4096")
        for i in range(4): a(f"buffer_load_dwordx4 v{vB}, {sr(WH,4)}, s{sT} offen offset:{1024*i} lds")
    q=[]
    def dsi(l,tag): a(l); q.append(tag)
    def dsw(tag):
        n=len(q)-1-q.index(tag); a(f"s_waitcnt lgkmcnt({min(n,15)})")
    def emit(l):
        if l.startswith("ds_"): dsi(l,("x",len(a.L)))
        else: a(l)
    BIG="v_bfrev_b32 v{}, 2"
    vG=208; vPT=212; vPP=216; vS4=44; vWd=45; hA=48; vW=56; vWp=60
    PR=64; BK=80; RKS=88; ACC=64; RING=128; BST=160; vDr=252; WHT=SB; sBS=sKm1
    assert WHT+32768<=FX
    bpos=0 if "bpos0" in opt else 1
    vq=[]
    def vm(l,tag=None): a(l); vq.append(tag)
    def vw(tag,extra=""):
        n=len(vq)-1-max(i for i,t in enumerate(vq) if t==tag); a(f"s_waitcnt vmcnt({n}){extra}")
    def grp(L,tag):
        for g in L:
            for l in g[:-1]: a(l)
            vm(g[-1],tag)
    if "rt" in opt: a("s_memrealtime s[100:101]")
    a(f"""
s_memrealtime {sr(sTgA,2)}
s_cmp_ge_u32 s2, 256
s_cbranch_scc1 K2_END
s_load_dwordx2 {sr(DSTS,2)}, s[0:1], 32
s_load_dwordx2 {sr(SRCS,2)}, s[0:1], 24
s_load_dwordx2 {sr(DBG,2)}, s[0:1], 72
s_load_dwordx2 {sr(HO,2)}, s[0:1], 0
s_load_dwordx2 {sr(WE,2)}, s[0:1], 40
s_load_dwordx2 {sr(H,2)}, s[0:1], 56
s_load_dwordx2 {sr(POS,2)}, s[0:1], 8
s_load_dwordx2 {sr(WS,2)}, s[0:1], 80
s_load_dwordx2 {sr(EA,2)}, s[0:1], 16
s_load_dwordx2 {sr(WX,2)}, s[0:1], 48
v_lshlrev_b32 v{vS4}, 4, v0
s_mul_i32 s{sT}, s2, {C*4}
v_lshrrev_b32 v1, 6, v0
s_mov_b32 s{DSTS+2}, {E*4}
v_add_u32 v2, s{sT}, v{vS4}
v_readfirstlane_b32 s{sW}, v1
v_add_u32 v3, 4096, v2
v_cmp_gt_u32 vcc, {(C-1024)//4}, v0
v_cmp_gt_u32 {sr(sMx+2,2)}, s{DSTS+2}, v3
v_cmp_gt_u32 {sr(sMx,2)}, s{DSTS+2}, v2
{BIG.format(25)}
s_mov_b32 s{DSTS+3}, 0x20000
s_and_b64 {sr(sMx+2,2)}, {sr(sMx+2,2)}, vcc
s_mov_b32 s{SRCS+2}, {E*4}
s_mov_b32 s{SRCS+3}, 0x20000
v_cndmask_b32 v24, v25, v3, {sr(sMx+2,2)}
v_mov_b32 v{vT}, v0
v_and_b32 v4, 63, v0
s_and_b32 s{sT}, s2, 7
s_lshl_b32 s{sT}, s{sT}, 5
s_lshr_b32 s{sT+1}, s2, 3
s_add_u32 s{sB}, s{sT}, s{sT+1}
s_mul_i32 s{sN0}, s{sB}, {NB}
v_lshrrev_b32 v32, 4, v4
v_and_b32 v33, 15, v4
v_xor_b32 v{vG}, v32, v33
v_lshlrev_b32 v{vG}, 4, v{vG}
v_lshl_or_b32 v{vG}, v32, 8, v{vG}
s_lshl_b32 s{sT}, s{sW}, 6
v_xor_b32 v30, s{sT}, v{vG}
v_or_b32 v25, s2, v0
v_lshlrev_b32 v25, 8, v25
v_lshlrev_b32 v1, 4, v4
s_mov_b32 s{DBG+2}, 256
s_mov_b32 s{DBG+3}, 0x20000
s_mov_b32 s{HO+2}, {N*256}
s_mov_b32 s{HO+3}, 0x20000
s_mov_b32 s{H+2}, {273*256}
s_mov_b32 s{H+3}, 0x20000
s_lshl_b32 s{sT}, s{sT+1}, 2
s_add_u32 s{sT}, s{sT}, s{sW}
s_lshl_b32 s{sT+2}, s{sN0}, 8
s_lshl_b32 s{sT+1}, s{sW}, 10
s_add_u32 s{sT+1}, s{sT+1}, s{sT+2}
s_mul_i32 s{sT+3}, s{sW}, 1056
s_add_u32 m0, s{sT+3}, {AT}
s_sub_u32 s{sT+3}, s{sT}, 69
s_cselect_b32 s{sT}, s{sT}, s{sT+3}
s_waitcnt lgkmcnt(0)
""")
    TS()
    vm(f"buffer_load_dwordx4 v[8:11], v2, {sr(DSTS,4)}, 0 offen","d0")
    a(f"s_cselect_b32 s{H}, s{WE}, s{H}\ns_cselect_b32 s{H+1}, s{WE+1}, s{H+1}")
    vm(f"buffer_load_dwordx4 v[12:15], v24, {sr(DSTS,4)}, 0 offen","d1")
    a(f"""s_lshl_b32 s{sT}, s{sT}, 10
s_lshl_b32 s{sTgB}, s{sTgB}, 23
s_or_b32 s{sTgB}, s{sTgB}, 1
v_mov_b32 v26, s{sTgA}
v_mov_b32 v27, s{sTgB}""")
    vm(f"buffer_store_dwordx2 v[26:27], v25, {sr(DBG,4)}, 0 offen{ST}")
    if "nopf" not in opt: vm(f"buffer_load_dwordx4 v[36:39], v1, {sr(H,4)}, s{sT} offen")
    vm(f"buffer_load_dwordx4 v[16:19], v2, {sr(SRCS,4)}, 0 offen","s")
    vm(f"buffer_load_dwordx4 v[20:23], v24, {sr(SRCS,4)}, 0 offen","s")
    fill=[]
    for x in range(2):
        e=PR+8*x+1
        fill+=[f"v_lshrrev_b32 v{e}, 12, v{2+x}",f"v_bfe_u32 v31, v{2+x}, 2, 10",f"v_lshl_or_b32 v{e}, v{e}, 16, v31"]+[f"v_add_u32 v{e+2*i}, {i}, v{e}" for i in range(1,4)]
    fill+=[f"v_lshlrev_b32 v31, 2, v32",f"v_xor_b32 v31, v33, v31",f"v_lshlrev_b32 v31, 4, v31",f"v_lshl_or_b32 v{vWd}, v32, 8, v31",
           f"s_mov_b32 s{WE+2}, {273*256}",f"s_mov_b32 s{WE+3}, 0x20000"]
    for t in range(6):
        vm(f"buffer_load_dwordx4 v30, {sr(HO,4)}, s{sT+1} offen lds","h")
        if t<5: a(f"s_add_u32 m0, m0, 4224\ns_add_u32 s{sT+1}, s{sT+1}, 4096")
        for _ in range(3): a(fill.pop(0))
    assert not fill
    a(f"""s_mov_b32 m0, {AT+24*1056}
s_add_u32 s{sT+2}, s{sT+2}, {24*1024}
s_mov_b32 exec_hi, 0""")
    vm(f"buffer_load_dwordx4 v{vG}, {sr(HO,4)}, s{sT+2} offen lds","h")
    a("s_mov_b32 exec_hi, -1")
    if "tv5" in opt: tsi[0]-=1; TS()
    K=a
    K(f"""
s_load_dwordx2 {sr(WH,2)}, s[0:1], 56
v_add_u32 v31, s{sN0}, v0
v_cmp_gt_u32 vcc, {NB}, v0
{BIG.format(24)}
v_mul_u32_u24 v30, 6, v31
v_lshlrev_b32 v31, 4, v31
v_cndmask_b32 v30, v24, v30, vcc
v_cndmask_b32 v{vPT}, v24, v31, vcc
v_mov_b32 v{vPP}, 0
v_mov_b32 v{vPP+1}, 0
v_mov_b32 v{vPP+2}, 0
v_mov_b32 v{vPP+3}, 0
s_mov_b32 s{POS+2}, {N*6}
s_mov_b32 s{POS+3}, 0x20000
v_and_b32 v5, 31, v4
v_lshrrev_b32 v6, 5, v4
v_lshlrev_b32 v26, 2, v4
v_lshlrev_b32 v27, 1, v5
s_movk_i32 s{WX+2}, 256
s_mov_b32 s{WX+3}, 0x20000
v_mov_b32 v{vWx}, 0
v_mov_b32 v{vWx+1}, 0
v_mov_b32 v{vWx+2}, 0
v_mov_b32 v{vWx+3}, 0
; ---- LDS clears
v_mov_b32 v96, 0
v_mov_b32 v97, 0
v_mov_b32 v98, 0
v_mov_b32 v99, 0
v_lshlrev_b32 v2, 2, v0
ds_write_b32 v2, v96 offset:{CN}
ds_write_b32 v26, v96 offset:{ZR}
s_lshl_b32 s{sMB}, s{sW}, 11
s_add_u32 s{sMB}, s{sMB}, {MK}
v_add_u32 v2, s{sMB}, v1
ds_write_b128 v2, v[96:99]
ds_write_b128 v2, v[96:99] offset:1024
v_lshlrev_b32 v28, 3, v4
ds_write_b64 v28, v[96:97] offset:{CNT}
v_lshl_add_u32 v7, s{sW}, 5, v5
v_lshlrev_b32 v{vH16}, 4, v6
s_mov_b32 s{WS+2}, {WS_END}
s_mov_b32 s{WS+3}, 0x20000
s_mov_b32 s{sR0}, 0
s_movk_i32 s{sCap}, {CAP}
s_mov_b32 s{sInit}, 0
s_lshl_b32 s{sM0}, s{sW}, 14
s_add_u32 s{sM0}, s{sM0}, {STG}
s_add_u32 s{sM0+1}, s{sM0}, 4096
s_add_u32 s{sM0+2}, s{sM0}, 8192
s_add_u32 s{sM0+3}, s{sM0}, 12288
s_add_u32 s{H}, s{WS}, {WS_B-3072}
s_addc_u32 s{H+1}, s{WS+1}, 0
s_mov_b32 s{sNRH}, {NRH}
s_mov_b32 s{H+2}, {NRH}
s_mov_b32 s{sNRE}, {NRE}
s_mov_b32 s{EA+2}, {NRE}
s_mov_b32 s{EA+3}, 0x20000
s_mov_b32 s{sCEA}, {32|(32768<<16)}
s_movk_i32 s{sC256}, 256
s_sub_u32 s{sNN}, {N}, s{sN0}
s_min_u32 s{sNN}, s{sNN}, {NB}
s_mov_b32 s{sId}, 1
s_mul_i32 s{sWR}, s{sW}, {WR}
v_lshrrev_b32 v100, 3, v5
v_and_b32 v101, 3, v5
v_cmp_eq_u32 vcc, v100, v101
v_lshlrev_b32 v100, 2, v5
v_and_b32 v101, 16, v100
v_mov_b32 v102, 0x3F80
v_lshlrev_b32 v102, v101, v102
v_cndmask_b32 v102, 0, v102, vcc
ds_write_b32 v100, v102 offset:{TB}
v_and_b32 v100, 7, v5
v_lshlrev_b32 v100, 2, v100
v_lshrrev_b32 v101, 3, v5
v_add_lshl_u32 v100, v100, v101, 8
v_and_b32 v101, 15, v5
v_xor_b32 v101, v6, v101
v_lshl_or_b32 v100, v101, 4, v100
v_add_u32 v{aAh}, s{sM0}, v100
; own h fragment addresses (rows past the bucket use a scratch row)
v_lshlrev_b32 v101, 4, v101
v_lshrrev_b32 v102, 2, v7
v_mul_u32_u24 v102, 1056, v102
v_and_b32 v103, 3, v7
v_lshl_add_u32 v102, v103, 8, v102
v_cmp_gt_u32 vcc, {NB}, v7
v_add_u32 v102, {AT}, v102
v_mov_b32 v35, {TRASH}
v_mul_u32_u24 v34, 264, v7
v_cndmask_b32 v102, v35, v102, vcc
v_lshl_add_u32 v34, v6, 3, v34
v_add_u32 v34, {AT}, v34
s_mul_i32 s{sT+2}, s{sW}, 8448
v_cndmask_b32 v34, v35, v34, vcc
s_add_u32 s{sT+2}, s{sT+2}, {AT}
v_add_u32 v35, s{sT+2}, v1
""")
    for s_ in range(1,8): K(f"v_xor_b32 v{aAh+s_}, {32*s_}, v{aAh}\nv_xor_b32 v{hA+s_}, {32*s_}, v101")
    K(f"v_add_u32 v{hA}, v102, v101")
    for s_ in range(1,8): K(f"v_add_u32 v{hA+s_}, v102, v{hA+s_}")
    K(f"""
v_bfe_u32 v101, v4, 4, 1
v_lshlrev_b32 v102, 3, v101
v_xor_b32 v100, v33, v102
v_lshlrev_b32 v100, 4, v100
""")
    for i in range(8): K(f"v_xor_b32 v{cDma+i}, {16*i|(3072-1024*(i&3))}, v100")
    K(f"""
v_bfe_u32 v102, v4, 2, 2
v_and_b32 v103, 3, v4
v_lshlrev_b32 v103, 3, v103
v_lshl_or_b32 v103, v101, 5, v103
; transposed weight reads: row 8h+r', 64 byte block b^r'
v_lshl_add_u32 v104, v6, 3, v102
v_lshl_add_u32 v104, v104, 8, v103
v_lshl_add_u32 v104, v102, 6, v104
v_add_u32 v{vW}, {STG}, v104
v_lshrrev_b32 v104, 1, v4
v_xor_b32 v104, v104, v4
v_and_b32 v104, 1, v104
v_mul_u32_u24 v104, 24, v104
v_xor_b32 v{vWp}, v104, v{vW}
v_cmp_gt_u32 vcc, 224, v0
s_cmp_eq_u32 s{sW}, 3
s_cselect_b32 s{sT+3}, 2.0, 0
v_cndmask_b32 v{vG}, v24, v{vG}, vcc
s_lshl_b32 s{sBS}, s{sN0}, 8
s_lshl_b32 s{sT+2}, s{sW}, 13
s_add_u32 s{sBS}, s{sBS}, s{sT+2}
s_add_u32 s{sBS}, s{sBS}, 3072
s_add_u32 s{sBS+1}, s{sBS}, 4096
s_or_b32 s{sBS+1}, s{sBS+1}, s{sT+3}
""")
    for b in range(1,4): K(f"v_xor_b32 v{vW+b}, {64*b}, v{vW}\nv_xor_b32 v{vWp+b}, {64*b}, v{vWp}\nv_xor_b32 v{vG+b}, {64*b}, v{vG}\nv_or_b32 v{vG+b}, s{sT+3}, v{vG+b}")
    for b in range(4): K(f"v_subrev_u32 v{vWp+b}, {STG-WHT}, v{vWp+b}")
    K(f"""
v_lshl_add_u32 v104, v6, 2, v102
v_lshl_add_u32 v104, v104, 6, v103
s_lshl_b32 s{sT+2}, s{sW}, 11
v_lshl_add_u32 v29, v4, 13, s{sT+2}
s_add_u32 s{sT+2}, s{sT+2}, {SB}
v_add_u32 v{aS}, s{sT+2}, v104
v_lshl_add_u32 v{cSc}, v5, 6, s{sT+2}
v_mov_b32 v{aSc+1}, v{cSc}
v_mov_b32 v{aSc}, v{cSc}
v_cmp_eq_u32 vcc, 0, v6
v_cmp_eq_u32 {sr(sLG,2)}, 0, v102
v_lshlrev_b32 v{vInc}, 9, v6
v_cndmask_b32 v{mulL}, 0, 2, vcc
v_mul_u32_u24 v104, 264, v102
v_add3_u32 v104, v104, v103, s{sC256}
v_add_u32 v104, {AT-256}, v104
v_mov_b32 v105, {ZR}
v_cndmask_b32 v{cAW0}, v105, v104, vcc
v_add_u32 v104, {4*264}, v104
v_add_u32 v103, {WD}, v103
v_cndmask_b32 v105, v105, v103, {sr(sLG,2)}
v_cndmask_b32 v{cAW1}, v105, v104, vcc
v_lshrrev_b32 v104, 2, v5
v_mul_u32_u24 v104, 256, v104
v_lshl_add_u32 v104, v5, 2, v104
v_add_u32 v{cPT}, {MT+256}, v104
v_lshlrev_b32 v104, 2, v5
v_mul_u32_u24 v105, 272, v6
v_add_u32 v105, {MT}, v105
v_add_u32 v{cMT}, v105, v104
s_lshl_b32 s{sT+2}, s{sW}, 2
s_add_u32 s{sT+2}, s{sT+2}, {FX}
v_mov_b32 v{vFx}, s{sT+2}
v_lshlrev_b32 v104, 2, v6
v_sub_u32 v104, v5, v104
v_subrev_u32 v105, 16, v104
""")
    for f in range(2):
        e=104+f
        K(f"""v_and_b32 v100, -12, v{e}
v_cmp_eq_u32 vcc, 0, v100
v_and_b32 v100, 3, v{e}
v_bfe_u32 v101, v{e}, 3, 1
v_lshl_or_b32 v100, v101, 2, v100
v_lshlrev_b32 v100, 4, v100
v_add_u32 v100, {TB}, v100
v_mov_b32 v101, {ZR}
v_cndmask_b32 v{32+f}, v101, v100, vcc""")
    K(f"""
v_lshl_add_u32 v47, v4, 2, s{sMB}
s_movk_i32 s{sK}, 21400
s_movk_i32 s{sk}, -98
v_mov_b32 v25, 1
s_mov_b32 s{sLG}, {LOG2E}
s_mov_b32 s{sLG+1}, {LOG2E}
s_mul_i32 s{sNT}, s2, {C*8}
s_add_u32 s{sNT}, s{sNT}, {WS_REC}
s_add_u32 s{sM}, s{sNT}, 4096
s_add_u32 s{sNP}, s{sNT}, 8192
s_add_u32 s{sNbF}, s{sNT}, 12288
s_and_b32 s{sTW}, s2, 2
s_lshl_b32 s{sTW}, s{sTW}, 9
s_and_b32 s{sT+1}, s2, 1
s_lshl_b32 s{sT+1}, s{sT+1}, 3
s_add_u32 s{sTW}, s{sTW}, s{sT+1}
s_lshr_b32 s{sT+1}, s2, 2
s_lshl_b32 s{sT+1}, s{sT+1}, 4
s_add_u32 s{sTW}, s{sTW}, s{sT+1}
s_movk_i32 s{sNb}, {SPIN}
""")
    for i in range(4): K(f"v_accvgpr_write_b32 a{aZ+i}, 0")
    K(f"v_lshrrev_b32 v100, 1, v{mulL}\nv_mul_u32_u24 v100, 0x3F80, v100\nv_accvgpr_write_b32 a{aOne+1}, 0\nv_accvgpr_write_b32 a{aOne}, v100")
    a(f"""s_waitcnt lgkmcnt(0)
s_barrier
ds_read_b128 {ar(aSel,4)}, v32
ds_read_b128 {ar(aSel+4,4)}, v33
s_mov_b32 s{WH+2}, 65536
s_bitcmp1_b32 s{sW}, 0
s_cselect_b64 {sr(sT+2,2)}, -1, 0
""")
    TS()
    D0=8; S0=16
    V2=wdma(vWd,WE,32768,STG); V1=wdma(vWd,WE,0,STG+32768); VH=wdma(vWd,WH,0,WHT)
    VS=[[f"buffer_load_short_d16_hi v{vPP+i}, v30, {sr(POS,4)}, 0 offen offset:{2*i}"] for i in range(3)]
    VS+=[[f"s_lshl_b32 s{sT}, s{sW}, 10",f"s_add_u32 m0, s{sT}, {W3T}",f"s_add_u32 s{sT}, s{sT}, {257*256}",f"buffer_load_dwordx4 v{vWd}, {sr(WE,4)}, s{sT} offen lds"]]
    VS+=[[f"s_mov_b32 s{sT}, 65536",f"buffer_load_dword v{vDr}, v26, {sr(WE,4)}, s{sT} offen"]]
    VS+=[[f"buffer_load_short_d16_hi v{vWx+b}, v27, {sr(WX,4)}, 0 offen offset:{64*b}"] for b in range(4)]
    for x in range(2):
        vw(f"d{x}")
        if x==0: TS(); RS(1)
        R=range(4*x,4*x+4)
        for l in V2[4*x][:-1]: a(l)
        for i in R: a(f"v_mul_u32_u24 v{BK+i}, s{sK}, v{D0+i}")
        vm(V2[4*x][-1],"w2")
        for i in R: a(f"v_lshrrev_b32 v{BK+i}, 21, v{BK+i}")
        vm(V2[4*x+1][-1],"w2")
        for i in R: a(f"v_mad_i32_i24 v{D0+i}, v{BK+i}, s{sk}, v{D0+i}")
        vm(V2[4*x+2][-1],"w2")
        for i in R: a(f"v_lshlrev_b32 v{BK+i}, 2, v{BK+i}")
        vm(V2[4*x+3][-1],"w2")
        a(f"s_mov_b64 exec, {sr(sMx+2*x,2)}")
        for i in R: a(f"ds_add_rtn_u32 v{RKS+i}, v{BK+i}, v25 offset:{CN}")
        a("s_mov_b64 exec, -1")
    vw("s")
    for i in range(8): a(f"v_lshl_or_b32 v{PR+2*i}, v{D0+i}, 19, v{S0+i}")
    a(f"""
s_waitcnt lgkmcnt(0)
s_barrier
ds_read_b128 v[96:99], v1 offset:{CN}""")
    grp(V1[:2],"w1")
    a(f"""s_waitcnt lgkmcnt(0)
v_add_u32 v104, v96, v97
v_add3_u32 v104, v104, v98, v99
v_mov_b32 v105, v104
""")
    steps=["row_shr:1 row_mask:0xf bank_mask:0xf bound_ctrl:0","row_shr:2 row_mask:0xf bank_mask:0xf bound_ctrl:0",
           "row_shr:4 row_mask:0xf bank_mask:0xf bound_ctrl:0","row_shr:8 row_mask:0xf bank_mask:0xf bound_ctrl:0",
           "row_bcast:15 row_mask:0xa bank_mask:0xf","row_bcast:31 row_mask:0xc bank_mask:0xf"]
    for i,s_ in enumerate(steps):
        g=V1[2+i]
        if len(g)==1: a("s_nop 0")
        grp([g],"w1")
        a(f"v_add_u32_dpp v105, v105, v105 {s_}")
    a(f"""
v_sub_u32 v100, v105, v104
v_add_u32 v101, v100, v96
v_add_u32 v102, v101, v97
v_add_u32 v103, v102, v98
ds_write_b128 v1, v[100:103] offset:{BA}
""")
    for i in range(8): a(f"ds_read_b32 v{BK+i}, v{BK+i} offset:{BA}")
    for i in range(4): a(f"v_lshl_or_b32 v{96+i}, v{100+i}, 12, v{96+i}")
    a(f"""v_cndmask_b32 v24, v96, v97, {sr(sT+2,2)}
v_cndmask_b32 v96, v98, v99, {sr(sT+2,2)}
s_bitcmp1_b32 s{sW}, 1
s_cselect_b64 {sr(sT+2,2)}, -1, 0""")
    for x in range(2):
        a(f"s_mov_b64 exec, {sr(sMx+2*x,2)}\ns_waitcnt lgkmcnt(4)")
        for i in range(4*x,4*x+4):
            a(f"v_add_lshl_u32 v{BK+i}, v{BK+i}, v{RKS+i}, 3\nds_write_b64 v{BK+i}, {vr(PR+2*i,2)} offset:{SG}")
    a(f"""s_mov_b64 exec, -1
v_cndmask_b32 v24, v24, v96, {sr(sT+2,2)}
v_cmp_gt_u32 vcc, {C//2-768}, v0
{BIG.format(2)}
v_mov_b32 v3, 0
v_cndmask_b32 v2, v2, v{vS4}, vcc
s_waitcnt lgkmcnt(0)
s_barrier""")
    for i in range(4): a(f"ds_read_b128 {vr(8+4*i,4)}, v{vS4} offset:{SG+4096*i}")
    for i in range(4):
        a(f"s_waitcnt lgkmcnt({3-i})")
        vm(f"buffer_store_dwordx4 {vr(8+4*i,4)}, v{2 if i==3 else vS4}, {sr(WS,4)}, s{(sNT,sM,sNP,sNbF)[i]} offen{ST}","rec")
    vm(f"buffer_load_dwordx2 v[32:33], v3, {sr(DBG,4)}, 0 offen{SC}","tag")
    TS(); RS(2)
    vw("w2"); a("s_barrier")
    order=[(s,b) for bp in (0,2) for s in range(8) for b in (bp,bp+1)]
    def emit(l,tag=None):
        if isinstance(l,tuple): l,tag=l
        if l.startswith("ds_"): dsi(l,("x",len(a.L)))
        elif l.startswith("buffer_"): vm(l,tag)
        else: a(l)
    def gemm(va,off,first,fl,late,n0=19,per=3):
        q.clear()
        def rdw(i):
            s,b=order[i]
            for u in range(2): dsi(f"ds_read_b64_tr_b16 {vr(RING+4*(i&7)+2*u,2)}, v{va+b} offset:{off+(16*s+4*u)*256}",("w",i,u))
        rdh=lambda s: dsi(f"ds_read_b128 {ar(aHL+4*s,4)}, v{hA+s}",("h",s))
        if first: rdh(0)
        rdw(0); rdw(1)
        if first:
            for s in range(1,8): rdh(s)
        rdw(2); rdw(3)
        for i,(s,b) in enumerate(order):
            dsw(("w",i,1))
            if first and i<16 and b==0 and q.index(("h",s))>q.index(("w",i,1)): dsw(("h",s))
            a(mf(ACC+16*b, vr(RING+4*(i&7),4), ar(aHL+4*s,4), "0" if s==0 else None))
            if i+4<32: rdw(i+4)
            for l in fl.get(i,[]): emit(l)
            if i>=n0:
                for _ in range(per):
                    if late: emit(late.pop(0))
        assert not late
    def spread(fl,G,i0,tag):
        for i,g in enumerate(G):
            fl.setdefault(i0+i,[]).extend(g[:-1]); fl.setdefault(i0+i+1,[]).insert(0,(g[-1],tag))
    lg=sr(sLG,2)
    def outw(b):
        L=[]
        for f in range(2):
            r=ACC+16*b+8*f
            L+=[f"v_pk_mul_f32 {vr(r+2*j,2)}, {vr(r+2*j,2)}, {lg}" for j in range(4)]
            L+=[f"v_cvt_pk_bf16_f32 v{r+j}, v{r+2*j}, v{r+2*j+1}" for j in range(4)]
            L+=[f"ds_write_b128 v{hA+2*b+f}, {vr(r,4)}"]
        return L
    fl={}
    spread(fl,VS,0,"ws"); spread(fl,VH,9,"wh")
    fl[19]=[f"s_add_u32 s{POS}, s{WS}, {WS_POS}",f"s_addc_u32 s{POS+1}, s{WS+1}, 0",f"s_mov_b32 s{POS+2}, {N*16}",f"s_mov_b32 s{OUT+2}, {N*262}"]
    gemm(vW,0,True,fl,outw(0)+outw(1))
    a("s_nop 7\ns_nop 1")
    for l in outw(2)+outw(3): a(l)
    a(f"s_waitcnt lgkmcnt(0)\ns_load_dwordx2 {sr(OUT,2)}, s[0:1], 64")
    for i in range(8): a(f"ds_read_b128 {vr(BST+4*i,4)}, v35 offset:{1056*i}")
    TS()
    BS_=[" "+o[4:].replace("+"," ") for o in opt if o.startswith("bst:")]; BS_=BS_[0].rstrip() if BS_ else ST
    bst=[(f"buffer_store_dwordx4 {vr(BST+4*i,4)}, v{vG+(i&3)}, {sr(H,4)}, s{sBS+(i>>2)} offen offset:{1024*(i&3)}{BS_}","b") for i in range(8)]
    bst+=[(f"buffer_store_dwordx4 {vr(vPP,4)}, v{vPT}, {sr(POS,4)}, 0 offen{ST}","b")]
    if "nob" in opt: bst=bst[8:]
    def publish(last):
        vw(last)
        a(f"""K2_TG:
v_readfirstlane_b32 s{sTgB}, v33
v_readfirstlane_b32 s{sTgA}, v32
s_cmp_eq_u32 s{sTgB}, 0
s_cbranch_scc1 K2_TGW
K2_TGD:
s_and_b32 s{sTgB}, s{sTgB}, -2
v_mov_b32 v25, s{sTgA}
v_or_b32 v24, s{sTgB}, v24
s_waitcnt lgkmcnt(0)
s_barrier""")
        vm(f"buffer_store_dwordx2 v[24:25], v29, {sr(WS,4)}, s{sTW} offen{ST}","off")
        TS(); RS(3)
    def atw(b):
        L=[]
        for qq in range(4):
            r=ACC+16*b+4*qq
            L+=[f"v_pk_mul_f32 {vr(r,2)}, {vr(r,2)}, {lg}",f"v_pk_mul_f32 {vr(r+2,2)}, {vr(r+2,2)}, {lg}",
                f"v_cvt_pk_bf16_f32 v{r}, v{r}, v{r+1}",f"v_cvt_pk_bf16_f32 v{r+1}, v{r+2}, v{r+3}",
                f"ds_write_b64 v34, {vr(r,2)} offset:{64*b+16*qq}"]
        return L
    fl={0:[f"ds_write_b128 v{vS4}, {vr(vPP,4)} offset:{PD}"]}
    if bpos==0:
        vw("ws"," lgkmcnt(0)"); a("s_barrier")
        for i,l in enumerate(bst): fl.setdefault(i,[]).append(l)
    else: publish("ws")
    for b in range(4):
        fl.setdefault(1+b,[]).append(f"v_subrev_u32 v{12+b}, {STG-W3T}, v{vW+b}")
        fl[10+2*b]=[f"ds_read_b64_tr_b16 {ar(aW3+4*b,2)}, v{12+b}"]; fl[11+2*b]=[f"ds_read_b64_tr_b16 {ar(aW3+4*b+2,2)}, v{12+b} offset:1024"]
    gemm(vW,32768,False,fl,atw(0)+atw(1),19,4)
    a(f"s_nop 7\ns_nop 1")
    for l in atw(2)+atw(3): a(l)
    TS()
    if bpos==0: publish("b")
    else: vw("wh"); a("s_barrier")
    W=[]
    for b in range(4):
        W+=[f"v_accvgpr_read_b32 v{8+j}, a{aW3+4*b+j}" for j in range(4)]
        W+=[x for j in range(4) for x in (f"v_lshlrev_b32 v{12+2*j}, 16, v{8+j}",f"v_and_b32 v{13+2*j}, 0xffff0000, v{8+j}")]
        W+=[f"v_pk_mul_f32 {vr(12+2*j,2)}, {vr(12+2*j,2)}, {lg}" for j in range(4)]
        W+=[f"v_cvt_pk_bf16_f32 v{8+j}, v{12+2*j}, v{13+2*j}" for j in range(4)]
        W+=[f"v_accvgpr_write_b32 a{aW3+4*b+j}, v{8+j}" for j in range(4)]
    W+=[f"v_lshlrev_b32 v12, 16, v{vDr}",f"v_and_b32 v13, 0xffff0000, v{vDr}",f"v_pk_mul_f32 v[12:13], v[12:13], {lg}",f"v_add_u32 v22, {OFT}, v1",
        f"v_cvt_pk_bf16_f32 v12, v12, v13",f"ds_write_b32 v26, v12 offset:{WD}"]+[f"v_mul_f32 v{vWx+b}, {NLN2}, v{vWx+b}" for b in range(4)]
    fl={}
    for i in range(19):
        fl[i]=W[:6]; W=W[6:]
    assert not W
    def yw(b): return [f"v_pk_mul_f32 {vr(ACC+16*b+2*j,2)}, {vr(ACC+16*b+2*j,2)}, {lg}" for j in range(8)]+[f"v_accvgpr_write_b32 a{aY(b)+j}, v{ACC+16*b+j}" for j in range(16)]
    gemm(vWp,0,False,fl,yw(0)+yw(1),19,4)
    pl=f"""buffer_load_dwordx4 v[8:11], v1, {sr(WS,4)}, s{sT} offen{SC}
buffer_load_dwordx4 v[12:15], v1, {sr(WS,4)}, s{sT} offen offset:1024{SC}"""
    a(f"""s_lshl_b32 s{sT}, s{sB}, 11
s_cmp_lg_u32 s{sW}, 3
s_cselect_b32 s{WS+2}, 0, s{WS+2}
s_mov_b32 s{sT+1}, {C*4096}
v_lshlrev_b32 v20, 2, v4
{pl}
v_mul_lo_u32 v16, v20, s{sT+1}
s_mov_b32 s{WS+2}, {WS_END}
v_add_u32 v17, s{sT+1}, v16
v_add_u32 v18, s{sT+1}, v17
v_add_u32 v19, s{sT+1}, v18
s_movk_i32 s{sNb}, {SPIN}""")
    for l in yw(2)+yw(3): a(l)
    TS()
    a(f"""
s_cmp_lg_u32 s{sW}, 3
s_cbranch_scc1 K2_S3
s_branch K2_PC
K2_PL:
{pl}
K2_PC:
s_sub_u32 s{sNb}, s{sNb}, 1
s_waitcnt vmcnt(1)
v_xor_b32 v8, s{sTgB}, v8
v_xor_b32 v10, s{sTgB}, v10
v_xor_b32 v9, s{sTgA}, v9
v_xor_b32 v11, s{sTgA}, v11
s_waitcnt vmcnt(0)
v_xor_b32 v12, s{sTgB}, v12
v_xor_b32 v14, s{sTgB}, v14
v_or3_b32 v20, v8, v10, v12
v_xor_b32 v13, s{sTgA}, v13
v_or_b32 v20, v20, v14
v_xor_b32 v15, s{sTgA}, v15
v_lshrrev_b32 v20, 23, v20
v_or3_b32 v21, v9, v11, v13
v_or3_b32 v20, v20, v21, v15
v_cmp_ne_u32 vcc, 0, v20
s_cmp_eq_u64 vcc, 0
s_cbranch_scc0 K2_PW
v_add_u32 v8, v16, v8
v_add_u32 v9, v17, v10
v_add_u32 v10, v18, v12
v_add_u32 v11, v19, v14
K2_PD:
ds_write_b128 v22, v[8:11]
K2_S3:
s_waitcnt lgkmcnt(0)
s_barrier
""")
    TS(); RS(4)
    a(f"""K2_R1:
ds_read_b128 v[24:27], v22
s_add_u32 s{sT+1}, s{sWR}, s{sR0}
s_movk_i32 s{sT}, {WR}
s_waitcnt lgkmcnt(0)""")
    a(f"""
v_and_b32 v16, 0xfff, v24
v_and_b32 v17, 0xfff, v25
v_and_b32 v18, 0xfff, v26
v_and_b32 v19, 0xfff, v27
v_add_u32 v17, v16, v17
v_add_u32 v36, v18, v19
v_add_u32 v36, v17, v36
v_add_u32 v18, v17, v18
v_mov_b32 v19, v36
""")
    steps=["row_shr:1 row_mask:0xf bank_mask:0xf bound_ctrl:0","row_shr:2 row_mask:0xf bank_mask:0xf bound_ctrl:0",
           "row_shr:4 row_mask:0xf bank_mask:0xf bound_ctrl:0","row_shr:8 row_mask:0xf bank_mask:0xf bound_ctrl:0",
           "row_bcast:15 row_mask:0xa bank_mask:0xf","row_bcast:31 row_mask:0xc bank_mask:0xf"]
    for i,s in enumerate(steps):
        a(f"v_add_u32_dpp v36, v36, v36 {s}")
        if i<2: a(f"v_lshrrev_b32 v{24+2*i}, 12, v{24+2*i}\nv_lshrrev_b32 v{25+2*i}, 12, v{25+2*i}")
        elif i<5: a("s_nop 1")
    a(f"""
v_subrev_u32 v40, s{sT+1}, v36
v_readlane_b32 s{sNT}, v36, 63
v_sub_u32 v36, v40, v19
v_add_u32 v37, v36, v16
v_add_u32 v38, v36, v17
v_add_u32 v39, v36, v18
""")
    for u in range(4): a(f"v_sub_u32 v{24+u}, v{24+u}, v{36+u}")
    for u in range(5): a(f"v_med3_i32 v{36+u}, v{36+u}, 0, s{sT}")
    for u in range(4): a(f"v_lshl_add_u32 v{41+u}, v{36+u}, 2, s{sMB}")
    for u in range(4): a(f"v_cmpx_lt_i32 vcc, v{36+u}, v{37+u}\nds_write_b32 v{41+u}, v{24+u}\ns_mov_b64 exec, -1")
    IDX=40; RC=8; ND=160; RK=168
    for j in range(7): a(f"ds_read_b32 v{IDX+j}, v47 offset:{256*j}")
    a(f"""s_sub_u32 s{sM}, s{sNT}, s{sR0}
s_min_u32 s{sM}, s{sM}, s{sCap}
s_sub_i32 s{sT}, s{sM}, s{sWR}""")
    for j in range(7):
        a(f"v_cmp_gt_i32 {sr(sMask+2*j,2)}, s{sT}, v4")
        if j<6: a(f"s_sub_i32 s{sT}, s{sT}, 64")
    a(f"s_mov_b32 s{sT}, {WS_REC}\ns_waitcnt lgkmcnt(0)")
    scan(a,[IDX+j for j in range(7)],"max")
    ld=lambda j: a(f"v_add_lshl_u32 v{IDX+j}, v{IDX+j}, v4, 3\nbuffer_load_dwordx2 {vr(RC+2*j,2)}, v{IDX+j}, {sr(WS,4)}, s{sT} offen offset:{512*j}{SC}")
    for j in range(6): a(f"v_readlane_b32 s{sU+j}, v{IDX+j}, 63")
    ld(0)
    for j in range(1,7):
        a(f"v_max_u32 v{IDX+j}, s{sU+j-1}, v{IDX+j}")
        if j<6: a(f"s_max_u32 s{sU+j}, s{sU+j}, s{sU+j-1}")
        ld(j)
    TS(); RS(5)
    a(f"""s_cmp_lg_u32 s{sInit}, 0
s_cbranch_scc1 K2_NY
s_mov_b32 s{sInit}, 1
v_lshlrev_b32 v2, 4, v{vT}
v_mov_b32 v64, 0
v_mov_b32 v65, 0
v_mov_b32 v66, 0
v_mov_b32 v67, 0
v_add_u32 v2, {SB}, v2
v_add_u32 v3, 0x8000, v2
v_min_u32 v3, {LEND-16}, v3""")
    nb=len(bst) if bpos else 0
    for i in range(9):
        if i<nb: a(bst[i][0])
        a(f"ds_write_b128 v2, v[64:67] offset:{4096*i}" if i<8 else "ds_write_b128 v3, v[64:67]")
    TS()
    a(f"s_waitcnt vmcnt({nb})\nK2_YD:\nv_mov_b32 v27, 1")
    TS(); RS(6)
    for j in range(7): a(f"v_lshrrev_b32 v{ND+j}, 17, v{RC+2*j}")
    for j in range(7): a(f"s_mov_b64 exec, {sr(sMask+2*j,2)}\nds_add_rtn_u32 v{RK+j}, v{ND+j}, v27 offset:{CNT}")
    a(f"""s_mov_b64 exec, -1
v_mov_b32 v30, 0
v_mov_b32 v31, 1.0
v_add_u32 v29, {BASE}, v28
v_lshlrev_b32 v22, 3, v{vT}
""")
    f2c=bpos and "f2c" in opt; f2s=bpos and not f2c
    def f2store():
        a(f"""s_cmp_eq_u32 s{sInit}, 1
s_cselect_b32 s{WS+2}, s{WS+2}, 0
v_cmp_eq_u32 vcc, 192, v{vT}
{BIG.format(23)}
v_mov_b32 v24, s{sTgB}
v_mov_b32 v25, s{sTgA}
s_lshl_b32 s{sT}, s2, 3
v_cndmask_b32 v23, v23, 0, vcc
s_add_u32 s{sT}, s{sT}, {WS_F2}
s_waitcnt vmcnt(0) lgkmcnt(0)
s_barrier
buffer_store_dwordx2 v[24:25], v23, {sr(WS,4)}, s{sT} offen{ST}
s_mov_b32 s{WS+2}, {WS_END}
s_mov_b32 s{sT}, {WS_F2}""")
    if f2c: f2store(); a(f"s_max_u32 s{sInit}, s{sInit}, 2")
    else: a("s_waitcnt lgkmcnt(0)\ns_barrier")
    TS()
    a(f"""
ds_read_b64 v[36:37], v28 offset:{CNT}
s_waitcnt lgkmcnt(0)
v_add_u32 v38, v36, v37
v_mov_b32 v39, v38
""")
    scan(a,[39])
    a(f"""
v_sub_u32 v56, v39, v38
v_add_u32 v56, {NB}, v56
v_add_u32 v57, v56, v36
ds_write_b64 v28, v[56:57] offset:{BASE}
v_readlane_b32 s{sNP}, v39, 63
ds_read2_b32 v[58:59], v29 offset0:7 offset1:8
""")
    for j in range(7): a(f"ds_read_b32 v{IDX+j}, v{ND+j} offset:{BASE}")
    a(f"""
s_mov_b32 s{sK}, 0
s_cmp_eq_u32 s{sNP}, 0
s_cbranch_scc1 {"K2_E0" if f2s else "K2_K0"}
s_add_u32 s{sT}, s{sNP}, {NB}
s_waitcnt lgkmcnt(7)
v_sub_u32 v60, v58, v56
v_sub_u32 v61, v59, v57
v_cmp_gt_u32 {sr(sU,2)}, 31, v60
v_cmp_gt_u32 {sr(sU+2,2)}, s{sT}, v58
v_cmp_gt_u32 {sr(sU+4,2)}, 31, v61
v_cmp_gt_u32 vcc, s{sT}, v59
s_and_b64 {sr(sU,2)}, {sr(sU,2)}, {sr(sU+2,2)}
s_and_b64 vcc, vcc, {sr(sU+4,2)}
s_or_b64 vcc, vcc, {sr(sU,2)}
s_and_b32 vcc_hi, vcc_hi, 0x1ffff
s_cmp_lg_u64 vcc, 0
s_cbranch_scc1 K2_PAD
K2_PADRET:
v_cmp_lt_u32 vcc, 0, v38
s_add_u32 s{sU+4}, s{sNP}, 31
s_lshr_b32 s{sU+4}, s{sU+4}, 5
s_flbit_i32_b64 s{sT}, vcc
s_sub_u32 s{sT}, 63, s{sT}
v_readlane_b32 s{sT+1}, v37, s{sT}
s_lshl_b32 s{sT+2}, s{sU+4}, 5
s_sub_u32 s{sT+2}, s{sT+2}, s{sNP}
s_cmp_lg_u32 s{sT+1}, 0
s_addc_u32 s{sT}, s{sT}, s{sT}
v_cmp_gt_u32 vcc, s{sT+2}, v4
s_lshl_b32 s{sT+1}, s{sT}, 19
s_add_u32 s{sT}, s{sT}, s{sN0}
s_add_u32 s{sT+2}, s{sNP}, {NB}
v_mov_b32 v60, 0
v_mov_b32 v61, 0
v_mov_b32 v62, s{sT+1}
v_mov_b32 v63, 0
v_mov_b32 v58, s{sT}
v_add_lshl_u32 v56, v4, s{sT+2}, 4
v_add_lshl_u32 v57, v4, s{sT+2}, 1
s_mov_b64 exec, vcc
ds_write_b128 v56, v[60:63]
ds_write_b16 v57, v58 offset:{SRC-2*NB}
s_mov_b64 exec, -1
s_waitcnt lgkmcnt(2)
""")
    for j in range(7):
        a(f"v_add_lshl_u32 v{ND+j}, v{IDX+j}, v{RK+j}, 4\nv_add_lshl_u32 v{IDX+j}, v{IDX+j}, v{RK+j}, 1")
    for j in range(7):
        a(f"""s_mov_b64 exec, {sr(sMask+2*j,2)}
ds_write2_b64 v{ND+j}, v[30:31], {vr(RC+2*j,2)} offset0:0 offset1:1
ds_write_b16 v{IDX+j}, v{RC+2*j} offset:{SRC-2*NB}""")
    a(f"""
s_mov_b64 exec, -1
s_lshr_b32 s{sT}, s{sU+4}, 2
s_and_b32 s{sT+1}, s{sU+4}, 3
s_mul_i32 s{sT+2}, s{sT}, s{sW}
s_min_u32 s{sT+3}, s{sW}, s{sT+1}
s_add_u32 s{sT+2}, s{sT+2}, s{sT+3}
s_cmp_lt_u32 s{sW}, s{sT+1}
s_addc_u32 s{sK}, s{sT}, 0
s_lshl_b32 s{sT}, s{sT+2}, 9
s_add_u32 s{sT}, s{sT}, {REC}
s_lshl_b32 s{sT+1}, s{sT+2}, 6
s_add_u32 s{sT+1}, s{sT+1}, {SRC}
v_lshl_add_u32 v{aRec}, v5, 4, s{sT}
v_lshl_add_u32 v{aPB}, v4, 4, s{sT}
v_lshl_add_u32 v{aPS}, v4, 1, s{sT+1}
v_and_b32 v2, 48, v4
v_add_u32 v{aSrc}, s{sT+1}, v2
v_mul_u32_u24 v2, 496, v6
v_lshl_add_u32 v2, v5, 9, v2
v_add_u32 v2, s{sT}, v2
v_cmp_eq_u32 vcc, 0, v6
v_mov_b32 v3, {TB}
s_sub_u32 s{sKm1}, s{sK}, 1
v_cndmask_b32 v{vX}, v{aRec}, v3, vcc
s_sub_u32 s{sKh}, s{sK}, 3
""")
    if bpos:
        if f2s: a("K2_E0:"); f2store()
        else: a(f"s_mov_b32 s{sT}, {WS_F2}")
        a(f"""s_cmp_eq_u32 s{sInit}, 3
s_cbranch_scc1 K2_FD
s_movk_i32 s{sNb}, {SPIN}
s_mov_b32 s{sInit}, 3
K2_FL:
buffer_load_dwordx2 v[24:25], v22, {sr(WS,4)}, s{sT} offen{SC}
s_waitcnt vmcnt(0)
v_xor_b32 v24, s{sTgB}, v24
v_xor_b32 v25, s{sTgA}, v25
v_or_b32 v24, v24, v25
v_cmp_ne_u32 vcc, 0, v24
s_cmp_eq_u64 vcc, 0
s_cbranch_scc0 K2_FCW
K2_FD:""")
    a(f"""s_cmp_eq_u32 s{sK}, 0
s_waitcnt lgkmcnt(0)
s_barrier
s_cbranch_scc1 K2_K0
""")
    TS(); RS(7)
    dump("sort")
    a(f"""
ds_read_u16 v8, v{aPS}
ds_read_b128 v[12:15], v{aSrc}
ds_read_b32 v9, v{aRec} offset:12
ds_read_b128 v[16:19], v{aSrc} offset:64
ds_read_u16 v{vS16}, v{aPS} offset:128
ds_read_u16 v10, v{aPB} offset:10
ds_read_u16 v{vN8}, v{aPB} offset:{1024+10}
ds_read_u16 v{vFL}, v2 offset:10
ds_read_b128 {vr(vSrc,4)}, v{aSrc} offset:128
ds_read_b32 v{vEid}, v{aRec} offset:{512+12}
s_mov_b32 m0, s{sM0}
s_waitcnt lgkmcnt(9)
v_lshlrev_b32 v20, 4, v8
buffer_load_dwordx3 v[24:26], v20, {sr(POS,4)}, 0 offen{SC}
s_waitcnt lgkmcnt(7)
v_dot2_u32_u16 v{vEA}, v9, s{sCEA}, v{vH16}
""")
    for i in range(8):
        d=dma(i,12,vDA+i)
        if i==4: a(f"s_mov_b32 m0, s{sM0+1}")
        a(d[0]); a(d[1])
    a(f"""buffer_load_dwordx4 {ar(aE,4)}, v{vEA}, {sr(EA,4)}, 0 offen
s_cmp_gt_u32 s{sK}, 1
s_cselect_b32 s{H+2}, s{sNRH}, 0
s_cselect_b32 s{EA+2}, s{sNRE}, 0
s_mov_b32 m0, s{sM0+2}
s_waitcnt lgkmcnt(3)""")
    for i in range(8):
        d=dma(i,16,vDA+i)
        if i==4: a(f"s_mov_b32 m0, s{sM0+3}")
        a(d[0]); a(d[1])
    a(f"""
v_lshlrev_b32 v20, 4, v{vS16}
buffer_load_dwordx3 {vr(vPs,3)}, v20, {sr(POS,4)}, 0 offen{SC}
v_lshlrev_b32 v10, 1, v10
v_lshlrev_b32 v11, 1, v{vN8}
ds_read_b96 v[28:30], v10 offset:{PD}
ds_read_b96 {vr(vPd,3)}, v11 offset:{PD}""")
    TS()
    F=[f"v_cmp_gt_u32 vcc, s{sK}, v5","v_mov_b32 v3, 0xffff",f"s_mov_b32 s{sk}, -1",f"s_mov_b32 s{sTF}, -2",
       f"s_movk_i32 s{sOne10}, 0x3F80",f"s_mov_b32 s{sOne01}, 1.0","s_waitcnt lgkmcnt(0)",
       f"v_cndmask_b32 v{vFL}, v3, v{vFL}, vcc",f"v_mov_b32 v{D2}, 0",
       f"v_readlane_b32 s{sNb}, v{vFL}, 0",f"s_add_u32 s{sT+1}, s{sNb}, 56",f"s_mul_i32 s{sT+2}, s{sNb}, 33",
       f"v_cmp_lt_u32 vcc, s{sT+1}, v{vFL}",f"s_lshr_b32 s{sT+2}, s{sT+2}, 1",
       f"v_mad_u32_u24 v{vOH}, v{mulL}, s{sT+2}, v{cAW0}",f"v_mad_u32_u24 v{vEA}, v{mulL}, s{sT+2}, v{cAW1}",
       f"s_sub_i32 s{sT+3}, 0, s{sNb}",f"s_ff1_i32_b32 s{sTW}, vcc_hi",f"s_sub_u32 s{sTW}, s{sTW}, 1",f"s_mov_b32 s{sEv}, s{sTW}",
       f"v_mad_i32_i24 v{vX}, v{mulL}, s{sT+3}, v{vX}",f"v_add_u32 v{cSc}, s{sT+3}, v{cSc}"]
    for b in range(4): F+=[f"ds_read_b64_tr_b16 {ar(aAW+4*b,2)}, v{vOH} offset:{64*b}",f"ds_read_b64_tr_b16 {ar(aAW+4*b+2,2)}, v{vEA} offset:{64*b}"]
    F+=[f"v_mov_b32 v{D2+i}, 0" for i in range(1,64)]+[f"v_mov_b32 v{T_+i}, 0" for i in range(32)]+[f"v_accvgpr_write_b32 a{aSf+i}, 0" for i in range(8)]
    a.extend(F)
    TS()
    a("s_waitcnt vmcnt(18)")
    for l in phaseB(24,28,aPB,0): a(l)
    a(f"ds_read_b128 {vr(vRec,4)}, v{aRec}\ns_waitcnt vmcnt(10)")
    for s in range(8): a(f"ds_read_b128 {ar(aH+4*s,4)}, v{aAh+s}")
    if "noh" in opt: a(f"s_mov_b32 s{sNRH}, 0")
    if "noea" in opt: a(f"s_mov_b32 s{sNRE}, 0")
    if "nopg" in opt: a(f"s_mov_b32 s{POS+2}, 0")
    if "rt" in opt: a("s_memrealtime s[98:99]" if not any(o.startswith("rs") for o in opt) else "s_memrealtime s[96:97]\ns_waitcnt lgkmcnt(0)\ns_mov_b32 s98, s96")
    a("s_waitcnt lgkmcnt(0)")
    TS()
    a.extend(slotBlite())
    A0,A1,B0,B1=slotA(0),slotA(1),slotB(0),slotB(1)
    bnd=f"s_cmp_ge_i32 s{sk}, s{sEv}\ns_waitcnt lgkmcnt(0)\ns_cbranch_scc1 K2_H"
    def TL(i):
        if "tl" in opt: a(f"s_memtime s[96:97]\ns_add_u32 s98, s{sk}, 2\ns_lshl_b64 exec, 1, s98\ns_waitcnt lgkmcnt(0)\nv_mov_b32 v{vWx+i}, s96\ns_mov_b64 exec, -1\ns_nop 3")
    a("K2_LOOP:"); TL(0); a.extend(A0); TL(1); a(bnd); a("K2_B0:"); TL(2); a.extend(B0)
    TL(0); a.extend(A1); TL(1); a(bnd); a("K2_B1:"); TL(2); a.extend(B1); a("s_branch K2_LOOP")
    check(B1+A0,"wrap")
    Z=ar(aZ,4)
    a(f"""
K2_H:
s_cmp_lg_u32 s{sk}, s{sTF}
s_cbranch_scc1 K2_NOFL
s_add_u32 s{sT+2}, s{sk}, 31
s_mul_i32 s{sT}, s{sNbF}, 34
v_readlane_b32 s{sT+2}, v{vFL}, s{sT+2}
v_add_u32 v{vOH}, s{sT}, v{cMT}
v_add_u32 v{vEA}, s{sT}, v{cPT}
""")
    mad=lambda q,pb: f"v{vOH} offset:{544*q+128*pb}"
    pk=[]
    for b in range(4):
        wxp=vr(vWx+(b&2),2); o=b&1
        for j in range(8):
            if b==0: pk.append(f"v_pk_mul_f32 {vr(FT+2*j,2)}, {vr(D2+2*j,2)}, {wxp} op_sel:[0,{o}] op_sel_hi:[1,{o}]")
            else: pk.append(f"v_pk_fma_f32 {vr(FT+2*j,2)}, {vr(D2+16*b+2*j,2)}, {wxp}, {vr(FT+2*j,2)} op_sel:[0,{o},0] op_sel_hi:[1,{o},1]")
    rd=[f"ds_read_b32 v{2*q+pb}, {mad(q,pb)}" for q in range(4) for pb in range(2)]+[f"ds_read_b32 v10, v{vEA}"]
    for i,l in enumerate(pk):
        a(l)
        if i<9: a(rd[i])
    a(f"""s_sub_u32 s{sT+2}, s{sT+2}, s{sNbF}
s_mul_i32 s{sT+3}, s{sT+2}, 34
s_lshl_b32 s{sT+2}, s{sT+2}, 1
s_add_u32 s{sT+3}, s{sT+3}, {MT+256+12}
v_mov_b32 v9, s{sId}""")
    for j in range(8): a(f"v_cvt_pk_bf16_f32 v{P_+j}, v{FT+2*j}, v{FT+2*j+1}")
    lo=lambda q,pb: D2+32*pb+4*q+3
    dots=[]; cv=[]
    for pb in range(2):
        for qq in range(4):
            dots+=[f"v_dot2_f32_bf16 v{lo(qq,pb)}, v{2*qq+pb}, s{sOne10}, v{lo(qq,pb)}",f"v_dot2_f32_bf16 v{lo(qq,pb)+16}, v{2*qq+pb}, s{sOne01}, v{lo(qq,pb)+16}"]
            cv.append(f"v_cvt_pk_bf16_f32 v{P_+8+4*pb+qq}, v{lo(qq,pb)}, v{lo(qq,pb)+16}")
    a("s_waitcnt lgkmcnt(0)")
    a(dots[0]); a(dots[1])
    a(mf(FT,vr(P_,4),ar(aSel,4),"0"))
    for l in dots[2:8]: a(l)
    a(mf(FT,vr(P_+4,4),ar(aSel+4,4)))
    for l in dots[8:11]+cv[:4]: a(l)
    a(mf(D2,Z,Z,"0"))
    for l in dots[11:16]: a(l)
    a("s_nop 0")
    a(mf(D2+16,Z,Z,"0"))
    for l in cv[4:8]: a(l)
    ad=[f"v_add_f32 v{FT+i}, v{FT+i}, v{FT+i+w}" for w in (8,4,2,1) for i in range(w)]
    for l in ad[:2]: a(l)
    a(mf(D2+32,Z,Z,"0"))
    for l in ad[2:8]: a(l)
    a(mf(D2+48,Z,Z,"0"))
    for l in ad[8:]: a(l)
    a(f"v_mov_b32 v11, v{FT}")
    for qq in range(4):
        a(f"v_cmpx_ge_i32 vcc, s{sT+2}, v{vH16}")
        if qq<3: a(f"s_sub_i32 s{sT+2}, s{sT+2}, 32")
        for pb in range(2):
            m=mad(qq,pb).split(); a(f"ds_write_b32 {m[0]}, v{P_+8+4*pb+qq} {m[1]}")
    a(f"""
s_mov_b64 exec, -1
s_nop 0
v_permlane32_swap_b32 v11, v{FT}
v_add_f32 v10, v10, v11
v_add_f32 v10, v10, v{FT}
v_cmpx_ge_u32 vcc, s{sT+3}, v{cPT}
ds_write_b32 v{vEA}, v10
s_mov_b64 exec, 1
ds_write_b32 v{vFx}, v9
s_mov_b64 exec, -1
s_cmp_eq_u32 s{sk}, s{sK}
s_cbranch_scc1 K2_REND
K2_NOFL:
s_cmp_eq_u32 s{sk}, s{sKm1}
s_cbranch_scc1 K2_TAIL
s_mov_b32 s{sEv}, s{sTW}
s_cmp_lg_u32 s{sk}, s{sTW}
s_cbranch_scc1 K2_RET
s_add_u32 s{sTF}, s{sk}, 1
s_mov_b32 s{sNbF}, s{sNb}
v_readlane_b32 s{sT}, v{vFL}, s{sTF}
s_mov_b32 s{sEv}, s{sTF}
s_add_u32 s{sT+1}, s{sT}, 56
s_mul_i32 s{sT+2}, s{sT}, 33
v_cmp_lt_u32 vcc, s{sT+1}, v{vFL}
s_lshr_b32 s{sT+2}, s{sT+2}, 1
v_mad_u32_u24 v{vOH}, v{mulL}, s{sT+2}, v{cAW0}
v_mad_u32_u24 v{vEA}, v{mulL}, s{sT+2}, v{cAW1}
s_sub_i32 s{sT+3}, s{sNb}, s{sT}
s_mov_b32 s{sNb}, s{sT}
""")
    for b in range(4):
        a(f"ds_read_b64_tr_b16 {ar(aAW+4*b,2)}, v{vOH} offset:{64*b}\nds_read_b64_tr_b16 {ar(aAW+4*b+2,2)}, v{vEA} offset:{64*b}")
    a(f"""
v_mad_i32_i24 v{vX}, v{mulL}, s{sT+3}, v{vX}
v_add_u32 v{cSc}, s{sT+3}, v{cSc}
s_ff1_i32_b32 s{sTW}, vcc_hi
s_sub_u32 s{sTW}, s{sTW}, 1
K2_RET:
s_bitcmp1_b32 s{sk}, 0
s_cbranch_scc1 K2_B1
s_branch K2_B0
K2_TAIL:
""")
    whdma()
    cvt,ex,ad,rc,mu=spine(DY)
    it=[(18,seg(0,0,0)),(22,seg(0,0,1)),(26,seg(0,1,0)),(30,seg(0,1,1)),(34,P1(0)),(50,P1(1)),(60,f"ds_read_b32 v12, v{vFx} offset:4")]
    a.extend(place(cvt+ex+rc+mu,it))
    for l in cvt: a(l)
    a(f"s_mov_b32 s{sk}, s{sK}\ns_mov_b32 s{sTF}, s{sK}")
    for l in [seg(2,0,0),seg(2,0,1),seg(2,1,0),seg(2,1,1)]: a(l)
    a(f"""
ds_write_b64 v{aSc}, {ar(aZ,2)}
ds_write_b64 v{aSc+1}, {ar(aZ,2)}
s_mov_b32 s{sNbF}, s{sNb}
s_cmp_eq_u32 s{sW}, 3
s_cbranch_scc1 K2_H
K2_FW:
s_waitcnt lgkmcnt(0)
v_readfirstlane_b32 s{sT}, v12
ds_read_b32 v12, v{vFx} offset:4
s_cmp_eq_u32 s{sT}, s{sId}
s_cbranch_scc1 K2_H
s_branch K2_FW
K2_TGW:
s_sub_u32 s{sNb}, s{sNb}, 1
s_cbranch_scc1 K2_TGD
buffer_load_dwordx2 v[32:33], v3, {sr(DBG,4)}, 0 offen{SC}
s_waitcnt vmcnt(0)
s_branch K2_TG
K2_PW:
s_cmp_lg_u32 s{sNb}, 0
s_cbranch_scc1 K2_PL
v_mov_b32 v8, 0
v_mov_b32 v9, 0
v_mov_b32 v10, 0
v_mov_b32 v11, 0
s_branch K2_PD
K2_NY:
s_waitcnt vmcnt(0)
s_branch K2_YD
K2_FCW:
s_sub_u32 s{sNb}, s{sNb}, 1
s_cbranch_scc1 {"K2_FD" if bpos else "K2_END"}
s_branch {"K2_FL" if bpos else "K2_END"}
K2_ROUND:
v_and_b32 v4, 63, v{vT}
v_mov_b32 v8, 0
v_mov_b32 v9, 0
v_mov_b32 v10, 0
v_mov_b32 v11, 0
v_lshlrev_b32 v1, 4, v4
v_lshlrev_b32 v28, 3, v4
v_add_u32 v2, s{sMB}, v1
ds_write_b128 v2, v[8:11]
ds_write_b128 v2, v[8:11] offset:1024
ds_write_b64 v28, v[8:9] offset:{CNT}
v_and_b32 v5, 31, v4
v_lshrrev_b32 v6, 5, v4
v_lshl_add_u32 v47, v4, 2, s{sMB}
v_add_u32 v22, {OFT}, v1
s_lshl_b32 s{sT}, s{sW}, 11
s_add_u32 s{sT}, s{sT}, {SB}
v_lshl_add_u32 v{cSc}, v5, 6, s{sT}
v_lshl_add_u32 v{aSc}, v5, 6, s{sT}
v_lshl_add_u32 v{aSc+1}, v5, 6, s{sT}
s_add_u32 s{sId}, s{sR0}, 1
s_mov_b32 s{H+2}, s{sNRH}
s_mov_b32 s{EA+2}, s{sNRE}
s_waitcnt lgkmcnt(0)
s_branch K2_R1
K2_PAD:
s_waitcnt lgkmcnt(0)
s_barrier
v_cmp_gt_u32 vcc, 49, v4
v_add_u32 v60, 3, v36
v_add_u32 v61, 3, v37
v_and_b32 v60, -4, v60
v_and_b32 v61, -4, v61
v_max_u32 v60, 4, v60
v_max_u32 v61, 4, v61
v_cndmask_b32 v60, 0, v60, vcc
v_cndmask_b32 v61, 0, v61, vcc
v_add_u32 v38, v60, v61
v_mov_b32 v39, v38
""")
    scan(a,[39])
    a(f"""
v_sub_u32 v56, v39, v38
v_add_u32 v56, {NB}, v56
v_add_u32 v57, v56, v60
v_readlane_b32 s{sNP}, v39, 63
ds_write_b64 v28, v[56:57] offset:{BASE}
s_cmp_le_u32 s{sNP}, {CAP}
s_cbranch_scc1 K2_PAD2
s_movk_i32 s{sCap}, {CAP-4*NB}
s_waitcnt lgkmcnt(0)
s_barrier
s_branch K2_ROUND
K2_PAD2:
""")
    for j in range(7): a(f"ds_read_b32 v{IDX+j}, v{ND+j} offset:{BASE}")
    a(f"""
v_mov_b32 v152, 0
v_mov_b32 v153, 0
v_mov_b32 v155, 0
""")
    for u in range(2):
        a(f"""v_add_u32 v36, s{sW}, v{36+u}
v_cmp_lt_u32 vcc, v36, v{60+u}
v_lshl_or_b32 v58, v4, 1, {u}
v_lshlrev_b32 v154, 19, v58
v_add_u32 v58, s{sN0}, v58
v_add_lshl_u32 v59, v36, v{56+u}, 4
v_add_lshl_u32 v36, v36, v{56+u}, 1
s_mov_b64 exec, vcc
ds_write_b128 v59, v[152:155]
ds_write_b16 v36, v58 offset:{SRC-2*NB}
s_mov_b64 exec, -1""")
    a(f"""
v_mov_b32 v37, v61
s_waitcnt lgkmcnt(0)
s_branch K2_PADRET
K2_K0:
v_mov_b32 v9, s{sId}
ds_write_b32 v{vFx}, v9
""")
    whdma()
    a(f"""
K2_REND:
s_add_u32 s{sR0}, s{sR0}, s{sM}
s_movk_i32 s{sCap}, {CAP}
v_and_b32 v252, 63, v{vT}
v_and_b32 v212, 31, v252
v_lshl_add_u32 v212, s{sW}, 5, v212
v_mul_u32_u24 v215, 272, v212
v_add_u32 v215, {MT}, v215
v_add_u32 v213, v{vH16}, v215
v_lshlrev_b32 v214, 4, v212
v_bfe_u32 v253, v252, 2, 1
v_mul_u32_u24 v208, {16384+128}, v253
v_bfe_u32 v253, v252, 3, 1
v_mul_u32_u24 v253, 320, v253
v_lshl_add_u32 v253, v{vH16}, 6, v253
v_add_u32 v208, v208, v253
v_bfe_u32 v253, v252, 4, 1
v_lshl_or_b32 v208, v253, 5, v208
v_and_b32 v253, 1, v252
v_lshl_or_b32 v208, v253, 4, v208
v_bfe_u32 v253, v252, 1, 1
v_lshl_or_b32 v208, v253, 3, v208
v_add_u32 v208, {STG}, v208
v_xor_b32 v209, 64, v208
v_xor_b32 v210, 0x80, v208
v_xor_b32 v211, 0xc0, v208
s_cmp_lt_u32 s{sR0}, s{sNT}
s_waitcnt vmcnt(0) lgkmcnt(0)
s_barrier
s_cbranch_scc1 K2_ROUND
""")
    if "rt" in opt: a("s_memrealtime s[96:97]\ns_waitcnt lgkmcnt(0)")
    TS()
    if "tl" in opt:
        a(f"s_mov_b32 s{WS+2}, 0x8000000\ns_lshl_b32 s{sT}, s2, 2\ns_add_u32 s{sT}, s{sT}, s{sW}\ns_lshl_b32 s{sT}, s{sT}, 10\ns_add_u32 s{sT}, s{sT}, {TLB}\nv_and_b32 v1, 63, v{vT}\nv_lshlrev_b32 v1, 2, v1")
        for i in range(3): a(f"buffer_store_dword v{vWx+i}, v1, {sr(WS,4)}, s{sT} offen offset:{256*i}")
        a("s_waitcnt vmcnt(0)")
    MFR=64; HF=128; TT=96; OS=112; WRG=64
    q.clear()
    eord=[(s,b) for b in range(4) for s in range(8)]
    def rdw(i):
        s,b=eord[i]
        for u in range(2): dsi(f"ds_read_b64_tr_b16 {ar(WRG+4*(i&15)+2*u,2)}, v{208+b} offset:{(s>>2)*32768+(s&3)*2048+u*512}",("w",i,u))
    rdm=lambda s: dsi(f"ds_read_b128 {vr(MFR+4*s,4)}, v213 offset:{32*s}",("m",s))
    rdm(0); rdw(0); rdm(1); rdw(1); rdm(2); rdw(2); rdm(3); rdw(3)
    for s in range(4,8): rdm(s)
    yrd=lambda b: [f"v_accvgpr_read_b32 v{16*b+x}, a{aY(b)+x}" for x in range(16)]
    hf=lambda b: [mf(HF+16*b, ar(aSel,4), ar(aHL+8*b,4), "0"), mf(HF+16*b, ar(aSel+4,4), ar(aHL+8*b+4,4))]
    h0=hf(0); y0=yrd(0)
    a(h0[0]); a.extend(y0[:8]); a(h0[1]); a.extend(y0[8:]); a('s_nop 0')
    side=yrd(1)+[("ds",f"ds_read_b96 v[200:202], v214 offset:{PD}","pd"),("ds",f"ds_read_b96 v[204:206], v215 offset:256","pt"),
           f"v_add_u32 v199, s{sN0}, v212",f"v_mul_u32_u24 v197, 6, v199",f"v_add_u32 v197, {N*256}, v197",
           f"v_cmp_gt_u32 vcc, s{sNN}, v212",f"v_bfrev_b32 v198, 2",f"v_lshl_add_u32 v199, v199, 8, v{vH16}",
           f"v_lshl_add_u32 v197, v{vH16}, 26, v197",f"v_cndmask_b32 v199, v198, v199, vcc",f"v_cndmask_b32 v197, v198, v197, vcc",
           f"s_mov_b32 s{sT+2}, {LOG2E}",f"s_mov_b32 s{sT+3}, {LOG2E}"]+yrd(2)+[
           ("wait","pt"),
           "v_add_f32 v200, v200, v204","v_add_f32 v201, v201, v205","v_add_f32 v202, v202, v206",
           "v_cvt_pk_bf16_f32 v200, v200, v201","v_cvt_pk_bf16_f32 v202, v202, v202",
           f"buffer_store_short v200, v197, {sr(OUT,4)}, 0 offen",f"buffer_store_short_d16_hi v200, v197, {sr(OUT,4)}, 0 offen offset:2",
           f"buffer_store_short v202, v197, {sr(OUT,4)}, 0 offen offset:4"]+yrd(3)
    def silu(b):
        D=16*b; c=sr(sT+2,2)
        e1=[f"v_exp_f32 v{TT+i}, v{D+i}" for i in range(16)]
        p1=[f"v_pk_fma_f32 {vr(TT+2*j,2)}, {vr(TT+2*j,2)}, {c}, {c}" for j in range(8)]
        r1=[f"v_rcp_f32 v{TT+i}, v{TT+i}" for i in range(16)]
        p2=[f"v_pk_fma_f32 {vr(TT+2*j,2)}, {vr(D+2*j,2)}, {vr(TT+2*j,2)}, {vr(HF+D+2*j,2)}" for j in range(8)]
        cv=[f"v_cvt_pk_bf16_f32 v{OS+8*(b&1)+j}, v{TT+2*j}, v{TT+2*j+1}" for j in range(8)]
        st=[f"buffer_store_dwordx4 {vr(OS+8*(b&1)+4*x,4)}, v199, {sr(OUT,4)}, 0 offen offset:{64*b+32*x}" for x in range(2)]
        return e1+p1+r1+p2+cv+st
    side+=[("at",10)]+silu(0)+[("at",20)]+silu(1)+[("at",30)]+silu(2)
    cur=[0]
    def doside(n):
        g=0
        while side and g<n:
            l=side[0]
            if isinstance(l,tuple):
                if l[0]=="at":
                    if cur[0]<l[1]: return
                elif l[0]=="ds": dsi(l[1],l[2]); g+=4
                elif l[0]=="wait": dsw(l[1]); g+=4
            else: a(l); g+=cost(l)
            side.pop(0)
    n=0
    for i,(s,b) in enumerate(eord):
        cur[0]=n
        dsw(("w",i,1))
        if b==0 and q.index(("m",s))>q.index(("w",i,1)): dsw(("m",s))
        a(mf(16*b, ar(WRG+4*(i&15),4), vr(MFR+4*s,4))); n+=1
        if i+4<32: rdw(i+4)
        doside(24 if i<8 else 40)
        if s==7 and b<3:
            for m in hf(b+1):
                cur[0]=n; a(m); n+=1; doside(24 if i<8 else 40)
    cur[0]=10**6; doside(10**6)
    for l in silu(3): a(l)
    dump("end")
    if ts:
        TS()
        a(f"s_mov_b32 s{WS+2}, 0x8000000\ns_lshl_b32 s{sT}, s2, 2\ns_add_u32 s{sT}, s{sT}, s{sW}\ns_lshl_b32 s{sT}, s{sT}, 6\ns_add_u32 s{sT}, s{sT}, {TSB}\nv_mov_b32 v1, 0")
        for i in range(tsn[0]): a(f"v_mov_b32 v2, s{sTS+i}\nbuffer_store_dword v2, v1, {sr(WS,4)}, s{sT} offen offset:{4*i}")
        a(f"v_mov_b32 v2, s{sK}\nbuffer_store_dword v2, v1, {sr(WS,4)}, s{sT} offen offset:60")
    if "rt" in opt: a(f"""s_waitcnt vmcnt(0)
s_memrealtime s[42:43]
s_load_dwordx2 s[44:45], s[0:1], 80
s_lshl_b32 s46, s2, 4
s_add_u32 s46, s46, {RTB}
s_waitcnt lgkmcnt(0)
v_mov_b32 v2, s100
v_mov_b32 v3, s42
v_mov_b32 v4, s98
v_mov_b32 v5, s{99 if any(o.startswith('rs') for o in opt) else 96}
v_mov_b32 v1, s46
global_store_dwordx4 v1, v[2:5], s[44:45]""")
    a("K2_END:")
    for o in opt:
        if o.startswith("pol:"):
            _,r,b=o.split(":"); r=sr({"ea":EA,"h":H,"pos":POS,"out":OUT}[r],4); b=b.replace("+"," ")
            a.L=[(l[:-4]+" "+b+" lds" if l.endswith(" lds") else l+" "+b) if l.startswith("buffer_") and r in l else l for l in a.L]
    check(a.L,"kf")
    return kernel(name, a, 512, acc=256)
if __name__=="__main__":
    t=kf(); print(len(t.split("\n")))
    for nm,s in (("A0",slotA(0)),("A1",slotA(1)),("B0",slotB(0)),("B1",slotB(1))):
        print(nm,len(s),sum(cost(l) for l in s))
```
